```python
import torch

def _softmax(x, axis=-1):
    return torch.softmax(x, dim=axis)
def _gelu(x):
    return torch.nn.functional.gelu(x, approximate="tanh")
def _silu(x):
    return torch.nn.functional.silu(x)
def _sigmoid(x):
    return torch.sigmoid(x)
def _layernorm(x, axis=-1, eps=1e-5):
    m = x.mean(dim=axis, keepdim=True)
    v = x.var(dim=axis, keepdim=True, unbiased=False)
    return (x - m) / torch.sqrt(v + eps)
def _scatter_add(tgt, idx, src, axis=0):
    return tgt.clone().index_add_(axis, idx, src)
def _segment_sum(src, seg, n):
    out = torch.zeros((n,) + src.shape[1:], dtype=src.dtype)
    return out.index_add_(0, seg, src)
def _pad(x, pw):
    flat = tuple(v for pair in reversed(pw) for v in pair)
    return torch.nn.functional.pad(x, flat)

kernel_name = 'sequential_preLN__mha_block__moe_arch_mod__prompt'

def setup_inputs():

    _w = (lambda a: (lambda t: t.to(torch.bfloat16) if t.is_floating_point() else t)(torch.as_tensor(a)))
    def _A_setup():
        B, S, D, H = 1, 2048, 576, 32
        return {
            "x": _w((lambda *s: torch.randn(*s, dtype=torch.bfloat16) * 0.05)(B, S, D)),
            "wqkv": _w((lambda *s: torch.randn(*s, dtype=torch.bfloat16) * 0.05)(D, 3 * D)),
            "wo": _w((lambda *s: torch.randn(*s, dtype=torch.bfloat16) * 0.05)(D, D)),
        }
    _A_in = _A_setup()

    def _B_setup():
        B, S, D, F, C = 1, 2048, 576, 4608, 1
        return {
            "x": _w((lambda *s: torch.randn(*s, dtype=torch.bfloat16) * 0.05)(B, S, D)),
            "w_r": _w((lambda *s: torch.randn(*s, dtype=torch.bfloat16) * 0.05)(D)),
            "w_gate": _w((lambda *s: torch.randn(*s, dtype=torch.bfloat16) * 0.05)(D, F)),
            "w_up": _w((lambda *s: torch.randn(*s, dtype=torch.bfloat16) * 0.05)(D, F)),
            "w_down": _w((lambda *s: torch.randn(*s, dtype=torch.bfloat16) * 0.05)(F, D)),
        }
    _B_in = _B_setup()

    return {
        "A_x": _A_in["x"],
        "A_wqkv": _A_in["wqkv"],
        "A_wo": _A_in["wo"],
        "B_x": _B_in["x"],
        "B_w_r": _B_in["w_r"],
        "B_w_gate": _B_in["w_gate"],
        "B_w_up": _B_in["w_up"],
        "B_w_down": _B_in["w_down"],
    }

def reference(A_x, A_wqkv, A_wo, B_x, B_w_r, B_w_gate, B_w_up, B_w_down):
    def _A_ref(x, wqkv, wo):
        B, S, D = x.shape
        H = 32
        Dh = D // H
        qkv = (lambda x, *d: x.permute(*d))((x @ wqkv).reshape(B, S, 3, H, Dh), 2, 0, 3, 1, 4)
        q, k, v = qkv[0], qkv[1], qkv[2]
        scores = torch.einsum("bhqd,bhkd->bhqk", q, k) * (Dh ** -0.5)
        p = _softmax(scores, axis=-1)
        o = torch.einsum("bhqk,bhkd->bhqd", p, v)
        return (lambda x, *d: x.permute(*d))(o, 0, 2, 1, 3).reshape(B, S, D) @ wo

    def _B_ref(x, w_r, w_gate, w_up, w_down):
        B, S, D = x.shape
        C = 1
        r = x @ w_r
        idx = torch.argsort(-r, axis=-1)[:, :C]
        idx_e = (lambda x, n, axis: torch.repeat_interleave(x, n, dim=axis))(idx.reshape(B, C, 1), D, axis=2)
        x_sel = (lambda x, i, axis: torch.take_along_dim(x, i, dim=axis))(x, idx_e, axis=1)
        g = _silu(x_sel @ w_gate)
        u = x_sel @ w_up
        y = (g * u) @ w_down
        r_sel = _sigmoid((lambda x, i, axis: torch.take_along_dim(x, i, dim=axis))(r, idx, axis=1))
        y = y * r_sel.reshape(B, C, 1)
        b_off = (torch.arange(B) * S).reshape(B, 1)
        flat_idx = (idx + b_off).reshape(B * C)
        zero = (x * 0.0).reshape(B * S, D)
        upd = _scatter_add(zero, flat_idx, y.reshape(B * C, D), axis=0)
        return x + upd.reshape(B, S, D)

    x = A_x
    h = x + _A_ref(_layernorm(x, axis=-1), A_wqkv, A_wo)
    h2 = h + _B_ref(_layernorm(h, axis=-1), B_w_r, B_w_gate, B_w_up, B_w_down)
    return h2
```

```python
import re
def islit(x):
    x = x.rstrip(",")
    try:
        v = int(x, 0)
    except ValueError:
        return False
    return not (-16 <= v <= 64)
class K:
    def __init__(self, name):
        self.name = name
        self.lines = []
        self.nlabel = 0
    def e(self, s):
        for l in s.strip("\n").split("\n"):
            l = l.strip()
            if not l: continue
            m = re.match(r"s_cselect_b32 (s\d+), (\S+), (\S+)$", l)
            if m and islit(m.group(2)) and islit(m.group(3)):
                self.lines.append(f"  s_mov_b32 {m.group(1)}, {m.group(3)}")
                l = f"s_cselect_b32 {m.group(1)}, {m.group(2)}, {m.group(1)}"
            self.lines.append("  " + l)
    def label(self, l):
        self.lines.append(l + ":")
    def newlabel(self, base="L"):
        self.nlabel += 1
        return f"{self.name}_{base}{self.nlabel}"
    def text(self):
        return "\n".join(self.lines) + "\n"

def vr(b, n):
    return f"v[{b}:{b+n-1}]" if n > 1 else f"v{b}"
def sr(b, n):
    return f"s[{b}:{b+n-1}]" if n > 1 else f"s{b}"

def srd(k, d, ptr, nbytes):
    k.e(f"""s_mov_b32 s{d}, s{ptr}
s_and_b32 s{d+1}, s{ptr+1}, 0xffff
s_mov_b32 s{d+2}, {nbytes}
s_mov_b32 s{d+3}, 0x20000""")

def kernel_text(k):
    return f""".globl {k.name}
.p2align 8
.type {k.name},@function
{k.name}:
{k.text()}"""

def kernel_desc(name, nvgpr, nsgpr, accum=None):
    accum = accum or ((nvgpr + 3) // 4 * 4)
    return f""".p2align 6
.amdhsa_kernel {name}
  .amdhsa_next_free_vgpr {nvgpr}
  .amdhsa_next_free_sgpr {nsgpr}
  .amdhsa_accum_offset {accum}
  .amdhsa_group_segment_fixed_size 0
  .amdhsa_kernarg_size 88
  .amdhsa_user_sgpr_count 2
  .amdhsa_user_sgpr_kernarg_segment_ptr 1
  .amdhsa_system_sgpr_workgroup_id_x 1
.end_amdhsa_kernel
"""
```

```python
from asmlib import *
from layout import *
import os
PROF = int(os.environ.get("PROF", "0"))
STATPK = int(os.environ.get("STATPK", "1"))

def gen_k1():
    k = K("k1_kernel")
    e = k.e
    def stamp(i):
        if PROF:
            e(f"s_memtime s[{88+2*i}:{89+2*i}]")
    XA, WA = 16, 20
    WSR, WOR, WRR, ZR = 24, 28, 32, 52
    LANE, M, HALF = 1, 2, 3
    T = 22
    Lend = "k1_end"
    e(f"""s_cmp_ge_u32 s2, 256
s_cbranch_scc1 {Lend}
s_load_dwordx4 s[4:7], s[0:1], 0
s_load_dwordx2 s[12:13], s[0:1], 80
{"s_memtime s[88:89]" if PROF else ""}
v_lshrrev_b32 v{T}, 6, v0
v_and_b32 v{LANE}, 63, v0
v_readfirstlane_b32 s38, v{T}
v_and_b32 v{M}, 31, v0
v_bfe_u32 v{HALF}, v0, 5, 1
s_and_b32 s36, s2, 7
s_lshl_b32 s36, s36, 1
s_bfe_u32 s46, s2, 0x10003
s_add_u32 s36, s36, s46
s_lshr_b32 s37, s2, 4
s_mov_b32 s47, 0x3f803f80
s_cmp_ge_u32 s38, 8
s_cbranch_scc1 k1_compute
""")
    XOE, XOO, WOFF = 4, 5, 6
    WOT, WOH = 16, 8
    e(f"""s_load_dwordx2 s[8:9], s[0:1], 16
s_load_dwordx2 s[10:11], s[0:1], 32
v_lshrrev_b32 v{T}, 3, v{LANE}
v_lshrrev_b32 v{T+1}, 4, v{LANE}
v_and_b32 v{T+2}, 7, v{LANE}
v_xor_b32 v{T+2}, v{T+2}, v{T+1}
v_mul_u32_u24 v{T}, 1152, v{T}
v_lshl_add_u32 v{XOE}, v{T+2}, 4, v{T}
v_xor_b32 v{XOO}, 64, v{XOE}
v_and_b32 v{T+3}, 15, v{LANE}
v_lshlrev_b32 v{T+4}, 2, v{T+1}
v_xor_b32 v{T+3}, v{T+3}, v{T+4}
v_mul_u32_u24 v{T+4}, 3456, v{T+1}
v_lshl_add_u32 v{WOFF}, v{T+3}, 4, v{T+4}
s_mul_i32 s50, s37, 216
s_sub_u32 s46, s37, 11
s_lshl_b32 s46, s46, 8
s_add_u32 s46, s46, 2304
s_cmp_ge_u32 s37, 11
s_cselect_b32 s50, s46, s50
s_cselect_b32 s46, 16, 14
v_cmp_gt_u32 vcc, s46, v{T+3}
v_mov_b32 v{T+4}, {HUGE}
s_lshl_b32 s41, s36, 7
s_lshl_b32 s46, s38, 4
v_cndmask_b32 v{WOFF}, v{T+4}, v{WOFF}, vcc
s_add_u32 s41, s41, s46
s_mul_i32 s41, s41, 1152
s_mul_i32 s42, s38, {8*3456}
s_add_u32 s42, s42, s50
s_lshl_b32 s43, s38, 11
s_waitcnt lgkmcnt(0)
""")
    srd(k, XA, 4, S * D * 2)
    srd(k, WA, 6, D * 3 * D * 2)

    def dma_instrs():
        out = []
        for j in range(2):
            out.append(f"""s_add_u32 m0, s43, {j*1024}
s_add_u32 s46, s41, {j*9216}
buffer_load_dwordx4 v{XOE if j % 2 == 0 else XOO}, s[{XA}:{XA+3}], s46 offen lds""")
            out.append(f"""s_add_u32 m0, s43, {16384+j*1024}
s_add_u32 s46, s42, {j*13824}
buffer_load_dwordx4 v{WOFF}, s[{WA}:{WA+3}], s46 offen lds""")
        return out
    def dma_adv():
        e(f"""s_add_u32 s41, s41, 128
s_add_u32 s42, s42, {64*3456}
s_add_u32 s43, s43, 32768
s_and_b32 s43, s43, 0x1ffff""")
    def dma_stage():
        for x in dma_instrs(): e(x)
        dma_adv()

    dma_stage()
    srd(k, WSR, 12, WS_SIZE)
    srd(k, WOR, 8, D * D * 2)
    srd(k, WRR, 10, D * 2)
    e(f"""s_lshl_b32 s51, s38, 8
s_add_u32 s51, s51, s2
s_mul_i32 s56, s51, 1821
s_lshr_b32 s56, s56, 16
s_mul_i32 s57, s56, 36
s_sub_u32 s57, s51, s57
s_mul_i32 s58, s57, {18*1152}
s_sub_u32 s46, s57, 32
s_mul_i32 s46, s46, {144*1152}
s_add_u32 s46, s46, {16*1152}
s_cmp_ge_u32 s57, 32
s_cselect_b32 s58, s46, s58
s_cselect_b32 s59, {72*1152}, {8*1152}
s_cselect_b32 s60, {18*1152}, {2*1152}
s_cmp_ge_u32 s51, 648
s_cselect_b32 s58, {HUGE}, s58
v_and_b32 v{T}, 0x13, v{M}
v_and_b32 v{T+1}, 4, v{M}
v_lshl_or_b32 v{T}, v{T+1}, 1, v{T}
v_and_b32 v{T+1}, 8, v{M}
v_lshrrev_b32 v{T+1}, 1, v{T+1}
v_or_b32 v{T}, v{T}, v{T+1}
s_lshl_b32 s56, s56, 5
v_add_u32 v{T}, s56, v{T}
v_lshlrev_b32 v{T}, 1, v{T}
v_mul_lo_u32 v{T+1}, v{HALF}, s59
v_add_u32 v{T}, v{T}, v{T+1}
""")
    for jj in range(4):
        e(f"""buffer_load_ushort v{WOT+jj}, v{T}, s[{WOR}:{WOR+3}], s58 offen
buffer_load_ushort v{WOH+jj}, v{T}, s[{WOR}:{WOR+3}], s58 offen offset:1152""")
        if jj < 3:
            e("s_add_u32 s58, s58, s60")
    dma_stage()
    dma_stage()
    HX, HW = 32, 33
    HXA = [34, 35]; HWA = 38
    SX, SQ = 40, 42
    SW = 44
    DX, DW = 64, 72
    UU = 96
    SCR = 32768
    e(f"""v_and_b32 v{T}, 15, v{LANE}
s_lshl_b32 s46, s38, 4
v_add_u32 v{T}, s46, v{T}
v_bfe_u32 v{T+1}, v{T}, 1, 3
v_lshrrev_b32 v{T+2}, 4, v{LANE}
v_xor_b32 v{T+1}, v{T+1}, v{T+2}
v_lshlrev_b32 v{T}, 7, v{T}
v_lshl_add_u32 v{HX}, v{T+1}, 4, v{T}
v_and_b32 v{T}, 1, v{LANE}
s_lshl_b32 s46, s38, 1
v_add_u32 v{T}, s46, v{T}
v_lshrrev_b32 v{T+1}, 1, v{LANE}
v_and_b32 v{T+2}, 3, v{T+1}
v_lshlrev_b32 v{T+2}, 2, v{T+2}
v_xor_b32 v{T}, v{T}, v{T+2}
v_lshlrev_b32 v{T+1}, 8, v{T+1}
v_lshl_add_u32 v{HW}, v{T}, 4, v{T+1}
v_add_u32 v{HW}, 16384, v{HW}
s_mov_b32 s49, 0xffff0000
s_mov_b32 s44, 0
s_mov_b32 s45, 0
""")
    for r in range(40, 52):
        e(f"v_mov_b32 v{r}, 0")
    def stat_ops():
        ops = []
        for i in range(8):
            u = UU + 2 * (i % 4)
            ops.append([f"v_lshlrev_b32 v{u}, 16, v{DX+i}", f"v_and_b32 v{u+1}, 0xffff0000, v{DX+i}",
                        f"v_add_f32 v{SX}, v{SX}, v{u}", f"v_add_f32 v{SX+1}, v{SX+1}, v{u+1}",
                        f"v_fmac_f32 v{SQ}, v{u}, v{u}", f"v_fmac_f32 v{SQ+1}, v{u+1}, v{u+1}"])
        for i in range(8):
            u = UU + 8 + 2 * (i % 4)
            w = SW + 2 * (i % 4)
            ops.append([f"v_lshlrev_b32 v{u}, 16, v{DW+i}", f"v_and_b32 v{u+1}, 0xffff0000, v{DW+i}",
                        f"v_add_f32 v{w}, v{w}, v{u}", f"v_add_f32 v{w+1}, v{w+1}, v{u+1}"])
        return ops
    def helper_stage(with_dma):
        e(f"""s_barrier
v_add_u32 v{HXA[0]}, s45, v{HX}
v_add_u32 v{HWA}, s45, v{HW}
v_xor_b32 v{HXA[1]}, 64, v{HXA[0]}
ds_read_b128 {vr(DX,4)}, v{HXA[0]}
ds_read_b128 {vr(DX+4,4)}, v{HXA[1]}
ds_read_b128 {vr(DW,4)}, v{HWA}
ds_read_b128 {vr(DW+4,4)}, v{HWA} offset:8192""")
        ops = stat_ops()
        d = dma_instrs() if with_dma else []
        for j in range(4):
            if with_dma: e(d[j])
        if with_dma: dma_adv()
        for j in range(4):
            e(f"s_waitcnt lgkmcnt({3-j})")
            grp = ops[4*j:4*j+4] if not os.environ.get("NOSTAT") else []
            for g in grp: e(g[0]); e(g[1])
            for g in grp:
                for x in g[2:]: e(x)
        e(f"""s_add_u32 s45, s45, 32768
s_and_b32 s45, s45, 0x1ffff
s_add_u32 s44, s44, 1""")
    LL, LT = "k1_lloop", "k1_ltail"
    k.label(LL)
    e("s_waitcnt vmcnt(8)")
    helper_stage(True)
    e(f"""s_cmp_lt_u32 s44, 6
s_cbranch_scc1 {LL}
s_waitcnt vmcnt(8)""")
    k.label(LT)
    helper_stage(False)
    e(f"""s_cmp_eq_u32 s44, 7
s_cbranch_scc0 k1_lt2
s_waitcnt vmcnt(4)
s_branch {LT}""")
    k.label("k1_lt2")
    e(f"""s_waitcnt vmcnt(0)
s_cmp_eq_u32 s44, 8
s_cbranch_scc1 {LT}""")
    A_T, B_T = 22, 23
    e(f"""v_add_f32 v{SX}, v{SX}, v{SX+1}
v_add_f32 v{SX+1}, v{SQ}, v{SQ+1}""")
    vals = [SX, SX + 1] + [SW + j for j in range(8)]
    CP = 64
    for sw in ["v_permlane32_swap_b32", "v_permlane16_swap_b32"]:
        for i, v in enumerate(vals): e(f"v_mov_b32 v{CP+i}, v{v}")
        for i, v in enumerate(vals): e(f"{sw} v{v}, v{CP+i}")
        for i, v in enumerate(vals): e(f"v_add_f32 v{v}, v{v}, v{CP+i}")
    for sh in ["row_ror:2", "row_ror:4", "row_ror:8"]:
        for j in range(8):
            e(f"v_add_f32_dpp v{SW+j}, v{SW+j}, v{SW+j} {sh} row_mask:0xf bank_mask:0xf")
    e(f"""v_and_b32 v{T+5}, 15, v{LANE}
v_and_b32 v{T+6}, 1, v{LANE}
s_lshl_b32 s46, s38, 6
v_lshl_add_u32 v{T+6}, v{T+6}, 5, s46
ds_write_b128 v{T+6}, {vr(SW,4)} offset:{SCR+1024}
ds_write_b128 v{T+6}, {vr(SW+4,4)} offset:{SCR+1024+16}
v_mov_b32 v{SQ}, v{SX+1}
""")
    e(f"""v_mul_f32 v{T+2}, {f32hex(1.0/576)}, v{SX}
v_mul_f32 v{T+3}, {f32hex(1.0/576)}, v{SQ}
v_fma_f32 v{T+3}, -v{T+2}, v{T+2}, v{T+3}
v_max_f32 v{T+3}, 0, v{T+3}
v_cvt_pk_bf16_f32 v{T+2}, v{T+2}, v{T+2}
v_cvt_pk_bf16_f32 v{T+3}, v{T+3}, v{T+3}
v_and_b32 v{T+2}, s49, v{T+2}
v_and_b32 v{T+3}, s49, v{T+3}
v_add_f32 v{T+3}, {f32hex(1e-5)}, v{T+3}
v_cvt_pk_bf16_f32 v{T+3}, v{T+3}, v{T+3}
v_and_b32 v{T+3}, s49, v{T+3}
v_sqrt_f32 v{T+3}, v{T+3}
v_sub_f32 v{B_T}, 0, v{T+2}
v_cvt_pk_bf16_f32 v{T+3}, v{T+3}, v{T+3}
v_and_b32 v{T+3}, s49, v{T+3}
v_rcp_f32 v{A_T}, v{T+3}
s_lshl_b32 s46, s38, 7
v_lshl_add_u32 v{T+4}, v{T+5}, 3, s46
ds_write_b64 v{T+4}, v[{A_T}:{B_T}] offset:{SCR}
s_waitcnt lgkmcnt(0)
s_barrier
""")
    e(f"""s_lshl_b32 s46, s51, 10
s_add_u32 s46, s46, {WS_WOP}
s_cmp_ge_u32 s51, 648
s_cselect_b32 s46, {HUGE}, s46
v_lshlrev_b32 v{T}, 4, v{LANE}
v_lshl_or_b32 v{WOT}, v{WOH}, 16, v{WOT}
v_lshl_or_b32 v{WOT+1}, v{WOH+1}, 16, v{WOT+1}
v_lshl_or_b32 v{WOT+2}, v{WOH+2}, 16, v{WOT+2}
v_lshl_or_b32 v{WOT+3}, v{WOH+3}, 16, v{WOT+3}
buffer_store_dwordx4 {vr(WOT,4)}, v{T}, s[{WSR}:{WSR+3}], s46 offen
s_cmp_lt_u32 s2, 240
s_cbranch_scc1 {Lend}
s_add_u32 s{ZR}, s12, {WS_ST}
s_addc_u32 s{ZR+1}, s13, 0
s_and_b32 s{ZR+1}, s{ZR+1}, 0xffff
s_mov_b32 s{ZR+2}, {ZERO_BYTES}
s_mov_b32 s{ZR+3}, 0x20000
s_sub_u32 s46, s2, 240
s_lshl_b32 s46, s46, 12
v_lshlrev_b32 v{T+1}, 4, v0
v_mov_b32 v32, 0
v_mov_b32 v33, 0
v_mov_b32 v34, 0
v_mov_b32 v35, 0
buffer_store_dwordx4 v[32:35], v{T+1}, s[{ZR}:{ZR+3}], s46 offen
s_cmp_lg_u32 s51, 2047
s_cbranch_scc1 {Lend}
v_lshlrev_b32 v{T+1}, 2, v{LANE}
""")
    for i in range(5):
        e(f"buffer_load_dword v{36+i}, v{T+1}, s[{WRR}:{WRR+3}], 0 offen offset:{256*i}")
    e(f"v_mov_b32 v{T+2}, 0\ns_waitcnt vmcnt(0)")
    for i in range(5):
        e(f"v_dot2_f32_bf16 v{T+2}, v{36+i}, s47, v{T+2}")
    e("s_nop 3")
    for sh in ["row_shr:1", "row_shr:2", "row_shr:4", "row_shr:8"]:
        e(f"""v_mov_b32 v{T+3}, 0
s_nop 1
v_mov_b32_dpp v{T+3}, v{T+2} {sh} row_mask:0xf bank_mask:0xf
v_add_f32 v{T+2}, v{T+2}, v{T+3}""")
    for sh, rm in [("row_bcast:15", "0xa"), ("row_bcast:31", "0xc")]:
        e(f"""v_mov_b32 v{T+3}, 0
s_nop 1
v_mov_b32_dpp v{T+3}, v{T+2} {sh} row_mask:{rm} bank_mask:0xf
v_add_f32 v{T+2}, v{T+2}, v{T+3}""")
    e(f"""v_mov_b32 v{T+1}, {WS_WSUM}
s_mov_b32 exec_lo, 0
s_mov_b32 exec_hi, 0x80000000
buffer_store_dword v{T+2}, v{T+1}, s[{WSR}:{WSR+3}], 0 offen
s_endpgm
""")
    k.label("k1_compute")
    XRD0, XRD1, WRD0, WRD1 = 7, 8, 9, 10
    XA0, XA1, WA0, WA1 = 11, 12, 13, 14
    XSUM, XSQ, WCS = 16, 18, 20
    XAK = [[XA0, 4, 5, 6], [XA1, 15, 16, 17]]
    U = 220
    bufA = dict(X=[32, 36], W=[40, 44])
    bufB = dict(X=[48, 52], W=[56, 60])
    acc = lambda t, f: 64 + 32 * t + 16 * f
    e(f"""s_and_b32 s38, s38, 3
s_lshr_b32 s39, s38, 1
s_and_b32 s40, s38, 1
s_cmp_ge_u32 s37, 11
s_cselect_b32 s48, 1, 0
s_mov_b32 s49, 0xffff0000
v_bfe_u32 v{T}, v{M}, 1, 3
v_xor_b32 v{T}, v{T}, v{HALF}
v_lshlrev_b32 v{T+1}, 7, v{M}
v_lshl_add_u32 v{T+1}, v{T}, 4, v{T+1}
s_lshl_b32 s46, s38, 12
v_add_u32 v{XRD0}, s46, v{T+1}
v_xor_b32 v{XRD1}, 4096, v{XRD0}
""")
    R_, CQ, A_, KROW, QUAD, PERM = T, T+1, T+2, T+3, T+4, T+5
    e(f"""v_bfe_u32 v{R_}, v{LANE}, 2, 2
v_and_b32 v{CQ}, 3, v{LANE}
v_bfe_u32 v{A_}, v{LANE}, 4, 1
v_lshl_add_u32 v{KROW}, v{HALF}, 3, v{R_}
v_lshl_add_u32 v{QUAD}, v{A_}, 2, v{CQ}
v_and_b32 v{PERM}, 1, v{CQ}
v_lshlrev_b32 v{PERM}, 1, v{PERM}
v_lshrrev_b32 v{T+6}, 1, v{CQ}
v_or_b32 v{PERM}, v{PERM}, v{T+6}
v_mad_u32_u24 v{PERM}, v{A_}, 5, v{PERM}
s_lshl_b32 s61, s40, 1
s_add_u32 s62, s61, 1
s_add_u32 s61, s61, s39
s_sub_u32 s62, s62, s39
""")
    for f, (sft, dst) in enumerate([(61, WRD0), (62, WRD1)]):
        UB = T + 6
        e(f"""s_mul_i32 s46, s{sft}, 72
v_lshl_add_u32 v{UB}, v{PERM}, 3, s46
v_min_u32 v{T+7}, 2, v{QUAD}
v_mul_u32_u24 v{T+7}, 72, v{T+7}
v_add_u32 v{T+7}, 32, v{T+7}
s_cmp_eq_u32 s{sft}, 3
s_cselect_b64 vcc, -1, 0
s_lshl_b32 s46, s{sft}, 6
v_lshl_add_u32 v{T+8}, v{QUAD}, 3, s46
v_cndmask_b32 v{UB}, v{UB}, v{T+7}, vcc
s_cmp_eq_u32 s48, 1
s_cselect_b64 vcc, -1, 0
s_nop 1
v_cndmask_b32 v{UB}, v{UB}, v{T+8}, vcc
v_lshrrev_b32 v{T+7}, 4, v{UB}
v_lshlrev_b32 v{T+8}, 2, v{R_}
v_xor_b32 v{T+7}, v{T+7}, v{T+8}
v_and_b32 v{UB}, 15, v{UB}
v_lshl_add_u32 v{UB}, v{T+7}, 4, v{UB}
v_lshl_add_u32 v{UB}, v{KROW}, 8, v{UB}
v_add_u32 v{dst}, 16384, v{UB}
""")
    for r in list(range(64, 128)) + list(range(48, 64)):
        e(f"v_mov_b32 v{r}, 0")
    e("s_mov_b32 s44, 0\ns_mov_b32 s45, 0\ns_waitcnt lgkmcnt(0)")
    srd(k, WSR, 12, WS_SIZE)

    def reads(ks, b):
        if os.environ.get("NOREAD"):
            return
        e(f"""ds_read_b128 {vr(b['X'][0],4)}, v{XAK[0][ks]}
ds_read_b128 {vr(b['X'][1],4)}, v{XAK[1][ks]}
ds_read_b64_tr_b16 {vr(b['W'][0],2)}, v{WA0} offset:{16*ks*256}
ds_read_b64_tr_b16 {vr(b['W'][0]+2,2)}, v{WA0} offset:{(16*ks+4)*256}
ds_read_b64_tr_b16 {vr(b['W'][1],2)}, v{WA1} offset:{16*ks*256}
ds_read_b64_tr_b16 {vr(b['W'][1]+2,2)}, v{WA1} offset:{(16*ks+4)*256}""")

    def mfmas(b, isV):
        i = 0
        for t in range(2):
            for f in range(2):
                a = acc(t, f)
                X, W = vr(b['X'][t], 4), vr(b['W'][f], 4)
                if os.environ.get("NOMFMA"):
                    pass
                elif isV:
                    e(f"v_mfma_f32_32x32x16_bf16 {vr(a,16)}, {X}, {W}, {vr(a,16)}")
                else:
                    e(f"v_mfma_f32_32x32x16_bf16 {vr(a,16)}, {W}, {X}, {vr(a,16)}")

    def mainloop(isV):
        L = k.newlabel("loop")
        k.lines.append(".p2align 3")
        k.label(L)
        e(f"""s_barrier
v_add_u32 v{XA0}, s45, v{XRD0}
v_add_u32 v{XA1}, s45, v{XRD1}
v_add_u32 v{WA0}, s45, v{WRD0}
v_add_u32 v{WA1}, s45, v{WRD1}""")
        if PROF:
            e("s_cmp_lg_u32 s44, 0\ns_cbranch_scc1 " + L + "x")
            stamp(1)
            k.label(L + "x")
        reads(0, bufA)
        for t in range(2):
            for ks in range(1, 4):
                e(f"v_xor_b32 v{XAK[t][ks]}, {ks<<5}, v{XAK[t][0]}")
        mfmas(bufB, isV)
        reads(1, bufB)
        e("s_waitcnt lgkmcnt(6)")
        mfmas(bufA, isV)
        reads(2, bufA)
        e("s_waitcnt lgkmcnt(6)")
        mfmas(bufB, isV)
        reads(3, bufB)
        e("s_waitcnt lgkmcnt(6)")
        mfmas(bufA, isV)
        e(f"""s_add_u32 s45, s45, 32768
s_and_b32 s45, s45, 0x1ffff
s_add_u32 s44, s44, 1
s_cmp_lt_u32 s44, 9
s_waitcnt lgkmcnt(0)
s_cbranch_scc1 {L}""")
        mfmas(bufB, isV)
        stamp(2)

    SCR = 32768
    def stats_final():
        e("s_barrier")

    LV = "k1_vpath"
    LDONE = "k1_done"
    e(f"s_cmp_eq_u32 s48, 1\ns_cbranch_scc1 {LV}")
    mainloop(False)
    stats_final()
    AB = [22, 24]
    CS = [128, 144]
    e(f"""s_lshl_b32 s46, s38, 8
v_lshl_add_u32 v{T+4}, v{M}, 3, s46
v_xor_b32 v{T+5}, 256, v{T+4}
ds_read_b64 v[22:23], v{T+4} offset:{SCR}
ds_read_b64 v[24:25], v{T+5} offset:{SCR}
""")
    for f, sft in enumerate([61, 62]):
        e(f"""s_mul_i32 s46, s{sft}, 144
s_cmp_eq_u32 s{sft}, 3
s_cselect_b32 s46, 64, s46
s_cselect_b32 s66, 144, 32
s_cselect_b32 s67, 272, 0
v_mul_lo_u32 v{T+4}, v{HALF}, s66
v_add_u32 v{T+4}, s46, v{T+4}
v_add_u32 v{T+5}, s67, v{T+4}
ds_read_b128 {vr(CS[f],4)}, v{T+4} offset:{SCR+1024}
ds_read_b128 {vr(CS[f]+4,4)}, v{T+5} offset:{SCR+1024+16}
ds_read_b128 {vr(CS[f]+8,4)}, v{T+4} offset:{SCR+1024+80}
ds_read_b128 {vr(CS[f]+12,4)}, v{T+4} offset:{SCR+1024+96}""")
    e(f"v_lshlrev_b32 v{T+7}, 4, v{LANE}")
    L16 = T + 7
    e(f"""s_lshl_b32 s63, s36, 2
s_xor_b32 s64, s38, 1
s_add_u32 s64, s64, s63
s_add_u32 s63, s63, s38
s_mul_i32 s65, s37, 3
s_waitcnt lgkmcnt(0)
""")
    SC = 32
    for f, sft in enumerate([61, 62]):
        Lrem, Lnext = k.newlabel("rem"), k.newlabel("next")
        e(f"""s_cmp_eq_u32 s{sft}, 3
s_cbranch_scc1 {Lrem}
s_add_u32 s66, s65, s{sft}
s_cmp_ge_u32 s66, 32
s_cbranch_scc1 {Lnext}
s_and_b32 s67, s66, 15
s_lshl_b32 s67, s67, 1
s_cmp_lt_u32 s66, 16
s_cselect_b32 s68, {f32hex(QSCALE)}, 1.0
s_cselect_b32 s69, 65536, {KVH}
s_cselect_b32 s72, {HUGE}, {WS_KNM}
""")
        for t, stt in enumerate([63, 64]):
            a = acc(t, f)
            e(f"""s_lshr_b32 s70, s{stt}, 1
s_mul_i32 s70, s70, {BLK}
s_and_b32 s71, s{stt}, 1
s_lshl_b32 s71, s71, 10
s_add_u32 s70, s70, s71
s_lshl_b32 s71, s{stt}, 10
s_add_u32 s71, s71, {WS_QM}
s_cmp_lt_u32 s66, 16
s_cselect_b32 s70, s71, s70
s_mul_i32 s71, s67, s69
s_add_u32 s70, s70, s71
s_add_u32 s71, s70, s69
v_mul_f32 v{SC}, s68, v{AB[t]}
""")
            for i in range(8):
                e(f"v_pk_fma_f32 {vr(a+2*i,2)}, {vr(CS[f]+2*i,2)}, v[{AB[t]}:{AB[t]+1}], {vr(a+2*i,2)} op_sel:[0,1,0] op_sel_hi:[1,1,1]")
            for i in range(8):
                e(f"v_pk_mul_f32 {vr(a+2*i,2)}, {vr(a+2*i,2)}, v[{SC}:{SC+1}] op_sel_hi:[1,0]")
            P = 40 + 8 * t
            for i in range(8):
                e(f"v_cvt_pk_bf16_f32 v{P+i}, v{a+2*i}, v{a+2*i+1}")
            e(f"""buffer_store_dwordx4 {vr(P,4)}, v{L16}, s[{WSR}:{WSR+3}], s70 offen
buffer_store_dwordx4 {vr(P+4,4)}, v{L16}, s[{WSR}:{WSR+3}], s71 offen""")
            N0, N1 = 34, 36
            for hb, N in enumerate([N0, N1]):
                b = a + 8 * hb
                e(f"v_pk_mul_f32 v[{N}:{N+1}], {vr(b,2)}, {vr(b,2)}")
                for i in range(1, 4):
                    e(f"v_pk_fma_f32 v[{N}:{N+1}], {vr(b+2*i,2)}, {vr(b+2*i,2)}, v[{N}:{N+1}]")
                e(f"v_add_f32 v{N}, v{N}, v{N+1}")
            e(f"""s_lshl_b32 s70, s67, 8
s_lshl_b32 s71, s{stt}, 2
v_permlane32_swap_b32 v{N0}, v{N1}
v_add_f32 v{N0}, v{N0}, v{N1}
s_add_u32 s70, s70, s71
s_add_u32 s70, s70, s72
v_max_f32_dpp v{N0}, v{N0}, v{N0} row_shr:1 row_mask:0xf bank_mask:0xf
v_lshlrev_b32 v{N1}, 8, v{HALF}
s_nop 0
v_max_f32_dpp v{N0}, v{N0}, v{N0} row_shr:2 row_mask:0xf bank_mask:0xf
s_nop 1
v_max_f32_dpp v{N0}, v{N0}, v{N0} row_shr:4 row_mask:0xf bank_mask:0xf
s_nop 1
v_max_f32_dpp v{N0}, v{N0}, v{N0} row_shr:8 row_mask:0xf bank_mask:0xf
s_nop 1
v_max_f32_dpp v{N0}, v{N0}, v{N0} row_bcast:15 row_mask:0xa bank_mask:0xf
s_mov_b32 exec_lo, 0x80000000
s_mov_b32 exec_hi, 0x80000000
buffer_store_dword v{N0}, v{N1}, s[{WSR}:{WSR+3}], s70 offen
s_mov_b64 exec, -1
""")
        e(f"s_branch {Lnext}")
        k.label(Lrem)
        for t, stt in enumerate([63, 64]):
            a = acc(t, f)
            e(f"""s_lshr_b32 s70, s{stt}, 1
s_mul_i32 s70, s70, {BLK}
s_and_b32 s71, s{stt}, 1
s_lshl_b32 s71, s71, 7
s_add_u32 s70, s70, s71
s_add_u32 s70, s70, 4480
s_lshl_b32 s71, s{stt}, 7
s_add_u32 s71, s71, {WS_QR}
s_lshl_b32 s73, s{stt}, 2
s_add_u32 s73, s73, {WS_KNR}
""")
            for j in range(3):
                b = 76 + 4 * j
                e(f"""s_add_u32 s66, s65, {j}
s_and_b32 s67, s66, 15
s_lshl_b32 s67, s67, 1
s_lshl_b32 s74, s67, 8
s_add_u32 s74, s74, s73
s_cmp_lt_u32 s66, 16
s_cselect_b32 s{b+1}, 8192, {KVH}
s_cselect_b32 s{b+2}, {f32hex(QSCALE)}, 1.0
s_cselect_b32 s{b}, s71, s70
s_cselect_b32 s{b+3}, {HUGE}, s74
s_mul_i32 s67, s67, s{b+1}
s_add_u32 s{b}, s{b}, s67
s_cmp_ge_u32 s66, 32
s_cselect_b32 s{b}, {HUGE}, s{b}
s_cselect_b32 s{b+3}, {HUGE}, s{b+3}
""")
            V = 32
            e(f"""v_cmp_eq_u32 vcc, 1, v{HALF}
v_mov_b32 v{V}, s76
v_mov_b32 v{V+1}, s77
v_mov_b32 v{V+2}, s78
v_mov_b32 v{V+3}, s79
v_mov_b32 v{V+4}, s80
v_mov_b32 v{V+5}, s81
v_mov_b32 v{V+6}, s82
v_mov_b32 v{V+7}, s83
v_cndmask_b32 v{V}, v{V}, v{V+4}, vcc
v_cndmask_b32 v{V+1}, v{V+1}, v{V+5}, vcc
v_cndmask_b32 v{V+2}, v{V+2}, v{V+6}, vcc
v_cndmask_b32 v{V+3}, v{V+3}, v{V+7}, vcc
v_mov_b32 v{V+4}, s84
v_mov_b32 v{V+7}, s87
v_mov_b32 v{V+5}, {HUGE}
v_cndmask_b32 v{V+4}, v{V+4}, v{V+5}, vcc
v_cndmask_b32 v{V+7}, v{V+7}, v{V+5}, vcc
v_lshl_add_u32 v{V}, v{M}, 2, v{V}
v_lshl_add_u32 v{V+4}, v{M}, 2, v{V+4}
v_add_u32 v{V+1}, v{V}, v{V+1}
v_add_u32 v{V+5}, s85, v{V+4}
v_mul_f32 v{V+2}, v{V+2}, v{AB[t]}
v_mul_f32 v{V+6}, s86, v{AB[t]}
""")
            for i in range(8):
                e(f"v_fma_f32 v{a+i}, v{CS[f]+i}, v{AB[t]+1}, v{a+i}")
            for i in range(8):
                e(f"v_mul_f32 v{a+i}, v{a+i}, v{V+2 if i < 4 else V+6}")
            P = 40
            for i in range(4):
                e(f"""v_cvt_pk_bf16_f32 v{P+i}, v{a+2*i}, v{a+2*i+1}
v_mul_f32 v{P+4+i}, v{a+2*i}, v{a+2*i}
v_fma_f32 v{P+4+i}, v{a+2*i+1}, v{a+2*i+1}, v{P+4+i}""")
            for i, ad in enumerate([V, V+1, V+4, V+5]):
                e(f"buffer_store_dword v{P+i}, v{ad}, s[{WSR}:{WSR+3}], 0 offen")
            for sh in ["row_shr:1", "row_shr:2", "row_shr:4", "row_shr:8"]:
                for i in range(4):
                    e(f"v_max_f32_dpp v{P+4+i}, v{P+4+i}, v{P+4+i} {sh} row_mask:0xf bank_mask:0xf")
            for i in range(4):
                e(f"v_max_f32_dpp v{P+4+i}, v{P+4+i}, v{P+4+i} row_bcast:15 row_mask:0xa bank_mask:0xf")
            e(f"""s_mov_b32 exec_lo, 0x80000000
s_mov_b32 exec_hi, 0x80000000
buffer_store_dword v{P+4}, v{V+3}, s[{WSR}:{WSR+3}], 0 offen
buffer_store_dword v{P+5}, v{V+3}, s[{WSR}:{WSR+3}], 0 offen offset:256
buffer_store_dword v{P+6}, v{V+7}, s[{WSR}:{WSR+3}], 0 offen
buffer_store_dword v{P+7}, v{V+7}, s[{WSR}:{WSR+3}], 0 offen offset:256
s_mov_b64 exec, -1
""")
        k.label(Lnext)
    e(f"s_branch {LDONE}")
    k.label(LV)
    mainloop(True)
    stats_final()
    RW = 128
    CSL = [21, 26]
    ADR = [(18, 19), (20, 27)]
    e(f"""s_lshl_b32 s46, s61, 7
v_lshl_add_u32 v{T+5}, v{M}, 2, s46
ds_read_b32 v{CSL[0]}, v{T+5} offset:{SCR+1024}
s_lshl_b32 s46, s62, 7
v_lshl_add_u32 v{T+5}, v{M}, 2, s46
ds_read_b32 v{CSL[1]}, v{T+5} offset:{SCR+1024}
s_lshl_b32 s46, s38, 8
v_lshl_add_u32 v{T+8}, v{HALF}, 5, s46
v_xor_b32 v{T+9}, 256, v{T+8}
s_lshl_b32 s63, s36, 2
s_xor_b32 s64, s38, 1
s_add_u32 s64, s64, s63
s_add_u32 s63, s63, s38
s_sub_u32 s65, s37, 11
s_lshl_b32 s65, s65, 7
v_mov_b32 v32, s47
v_mov_b32 v33, s47
v_mov_b32 v34, s47
v_mov_b32 v35, s47
""")
    def rwread(t):
        for a in range(4):
            e(f"""ds_read_b128 {vr(RW+8*a,4)}, v{T+8+t} offset:{SCR+a*64}
ds_read_b128 {vr(RW+8*a+4,4)}, v{T+8+t} offset:{SCR+a*64+16}""")
    rwread(0)
    SLOTC = 0 | (13 << 5) | (9 << 10) | (4 << 15) | (17 << 20)
    for f, sft in enumerate([61, 62]):
        AD, AO = ADR[f]
        e(f"""s_lshl_b32 s66, s{sft}, 5
s_add_u32 s66, s66, s65
v_add_u32 v{T+2}, s66, v{M}
v_mul_u32_u24 v{T+3}, 3641, v{T+2}
v_lshrrev_b32 v{T+3}, 16, v{T+3}
v_mul_u32_u24 v{T+6}, 18, v{T+3}
v_sub_u32 v{T+2}, v{T+2}, v{T+6}
v_lshrrev_b32 v{T+6}, 2, v{T+2}
v_mul_u32_u24 v{T+6}, 5, v{T+6}
s_mov_b32 s46, {SLOTC}
v_bfe_u32 v{T+6}, s46, v{T+6}, 5
v_and_b32 v{T+7}, 3, v{T+2}
v_add_u32 v{T+6}, v{T+6}, v{T+7}
s_mov_b32 s46, {KVH}
v_mul_lo_u32 v{T+3}, v{T+3}, s46
v_mul_u32_u24 v{T+7}, 304, v{HALF}
v_add_u32 v{T+3}, v{T+3}, v{T+7}
s_cmp_ge_u32 s66, 576
s_cselect_b32 s46, {HUGE}, 0
v_add_u32 v{T+3}, s46, v{T+3}
v_lshl_add_u32 v{AD}, v{T+6}, 4, v{T+3}
v_add_u32 v{AO}, 128, v{T+3}
v_cmp_eq_u32 vcc, 0, v{T+2}
v_mov_b32 v{T+7}, {HUGE}
s_nop 0
v_cndmask_b32 v{AO}, v{T+7}, v{AO}, vcc
""")
    for t, stt in enumerate([63, 64]):
        e(f"""s_lshr_b32 s70, s{stt}, 1
s_mul_i32 s70, s70, {BLK}
s_and_b32 s71, s{stt}, 1
s_mul_i32 s71, s71, 1216
s_add_u32 s70, s70, s71
s_add_u32 s70, s70, 2048
s_waitcnt lgkmcnt(0)
""")
        for f in range(2):
            a = acc(t, f)
            for r in range(16):
                e(f"v_fma_f32 v{a+r}, v{CSL[f]}, v{RW+2*r+1}, v{a+r}")
            for r in range(16):
                e(f"v_mul_f32 v{a+r}, v{a+r}, v{RW+2*r}")
        if t == 0:
            rwread(1)
        for f in range(2):
            a = acc(t, f)
            AD, AO = ADR[f]
            P = 40 + 8 * f
            for i in range(8):
                e(f"v_cvt_pk_bf16_f32 v{P+i}, v{a+2*i}, v{a+2*i+1}")
            e(f"""buffer_store_dwordx4 {vr(P,4)}, v{AD}, s[{WSR}:{WSR+3}], s70 offen
buffer_store_dwordx4 {vr(P+4,4)}, v{AD}, s[{WSR}:{WSR+3}], s70 offen offset:608
buffer_store_dwordx4 v[32:35], v{AO}, s[{WSR}:{WSR+3}], s70 offen
buffer_store_dwordx4 v[32:35], v{AO}, s[{WSR}:{WSR+3}], s70 offen offset:608
""")
    k.label(LDONE)
    if PROF:
        e(f"""s_memtime s[94:95]
s_waitcnt vmcnt(0)
s_memtime s[96:97]
s_waitcnt lgkmcnt(0)
s_sub_u32 s90, s90, s88
s_sub_u32 s92, s92, s88
s_sub_u32 s94, s94, s88
s_sub_u32 s96, s96, s88
v_mov_b32 v140, s90
v_mov_b32 v141, s92
v_mov_b32 v142, s94
v_mov_b32 v143, s96
s_lshl_b32 s46, s2, 2
s_add_u32 s46, s46, s38
s_lshl_b32 s46, s46, 4
s_add_u32 s46, s46, 0xF10000
v_mov_b32 v144, 0
s_mov_b64 exec, 1
buffer_store_dwordx4 v[140:143], v144, s[{WSR}:{WSR+3}], s46 offen
s_mov_b64 exec, -1""")
    k.label(Lend)
    e("s_endpgm")
    return k, 160, 100
```

```python
from asmlib import *
from layout import *
K2_LDS = 152 * 1024

import os
PROF = int(os.environ.get("PROF", "0"))
def gen_k2():
    k = K("k2_kernel")
    e = k.e
    def stamp(i):
        if PROF:
            e(f"s_memtime s[{40+2*i}:{41+2*i}]")
    WSR = 8
    LANE, M, HALF, L16 = 1, 2, 3, 4
    AKM, AVT, AKR = 5, 6, 7
    BKM, BVT, BKR = 8, 9, 10
    T = 11
    QM = 16
    QR = 20
    KR = 22
    KM = [24, 28]
    VF = [32, 36, 40, 44]
    P = 48
    O = 64
    SA, SB = 80, 112
    Lend = "k2_end"
    e(f"""s_cmp_ge_u32 s2, 256
s_cbranch_scc1 {Lend}
s_load_dwordx2 s[4:5], s[0:1], 80
{"s_memtime s[40:41]" if PROF else ""}
{"s_memrealtime s[48:49]" if PROF else ""}
v_and_b32 v{LANE}, 63, v0
v_lshrrev_b32 v{T}, 6, v0
v_and_b32 v{M}, 31, v0
v_readfirstlane_b32 s14, v{T}
v_bfe_u32 v{HALF}, v0, 5, 1
v_lshlrev_b32 v{L16}, 4, v{LANE}
s_and_b32 s12, s2, 7
s_lshl_b32 s12, s12, 2
s_bfe_u32 s16, s2, 0x20003
s_add_u32 s12, s12, s16
s_lshr_b32 s13, s2, 5
s_lshl_b32 s15, s13, 3
s_add_u32 s15, s15, s14
s_mul_i32 s16, s12, {KVH}
s_lshl_b32 s17, s12, 6
s_add_u32 s17, s17, s15
s_lshl_b32 s18, s17, 10
s_add_u32 s18, s18, {WS_QM}
s_lshl_b32 s19, s17, 7
s_add_u32 s19, s19, {WS_QR}
s_lshl_b32 s20, s12, 8
s_add_u32 s20, s20, {WS_KNM}
v_lshlrev_b32 v{T}, 2, v{M}
v_lshlrev_b32 v{T+1}, 2, v{LANE}
s_lshl_b32 s21, s14, 10
s_add_u32 s22, s16, s21
s_waitcnt lgkmcnt(0)
""")
    srd(k, WSR, 4, WS_SIZE)
    W = f"s[{WSR}:{WSR+3}]"
    e(f"""buffer_load_dwordx4 {vr(QM,4)}, v{L16}, {W}, s18 offen
buffer_load_dword v{QR}, v{T}, {W}, s19 offen
buffer_load_dword v{T+2}, v{T+1}, {W}, s20 offen
s_add_u32 s20, s20, {WS_KNR-WS_KNM}
buffer_load_dword v{T+3}, v{T+1}, {W}, s20 offen
""")
    for r in range(19):
        e(f"""s_mov_b32 m0, s21
s_add_u32 s21, s21, 8192
buffer_load_dwordx4 v{L16}, {W}, s22 offen lds
s_add_u32 s22, s22, 8192""")
    SLC = 0 | (9 << 5) | (13 << 10) | (4 << 15) | (17 << 20)
    e(f"""v_lshrrev_b32 v{T}, 2, v{M}
v_mul_u32_u24 v{T}, 5, v{T}
s_mov_b32 s23, {SLC}
v_bfe_u32 v{T}, s23, v{T}, 5
v_and_b32 v{T+4}, 3, v{M}
v_add_u32 v{T}, v{T}, v{T+4}
v_cmp_lt_u32 vcc, 17, v{M}
v_mov_b32 v{KR+1}, 0x3f803f80
v_mul_u32_u24 v{T+4}, 304, v{HALF}
v_cndmask_b32 v{T}, v{T}, 8, vcc
v_lshl_add_u32 v{BVT}, v{T}, 4, v{T+4}
v_add_u32 v{BVT}, 2048, v{BVT}
v_mov_b32 v{BKM}, v{L16}
v_add_u32 v{BKR}, 4480, v{T+1}
v_mov_b32 v{T+4}, 0
s_waitcnt vmcnt(19)
v_add_f32 v{T+2}, v{T+2}, v{T+3}
v_dot2_f32_bf16 v{T+4}, v{QM}, v{QM}, v{T+4}
v_dot2_f32_bf16 v{T+4}, v{QM+1}, v{QM+1}, v{T+4}
v_max_f32_dpp v{T+2}, v{T+2}, v{T+2} row_shr:1 row_mask:0xf bank_mask:0xf
v_dot2_f32_bf16 v{T+4}, v{QM+2}, v{QM+2}, v{T+4}
v_dot2_f32_bf16 v{T+4}, v{QM+3}, v{QM+3}, v{T+4}
v_max_f32_dpp v{T+2}, v{T+2}, v{T+2} row_shr:2 row_mask:0xf bank_mask:0xf
s_nop 1
v_max_f32_dpp v{T+2}, v{T+2}, v{T+2} row_shr:4 row_mask:0xf bank_mask:0xf
v_mov_b32 v{T+3}, v{T+4}
s_nop 0
v_max_f32_dpp v{T+2}, v{T+2}, v{T+2} row_shr:8 row_mask:0xf bank_mask:0xf
v_permlane32_swap_b32 v{T+3}, v{T+4}
s_nop 0
v_max_f32_dpp v{T+2}, v{T+2}, v{T+2} row_bcast:15 row_mask:0xa bank_mask:0xf
v_add_f32 v{T+4}, v{T+3}, v{T+4}
v_dot2_f32_bf16 v{T+4}, v{QR}, v{QR}, v{T+4}
v_max_f32_dpp v{T+2}, v{T+2}, v{T+2} row_bcast:31 row_mask:0xc bank_mask:0xf
s_nop 1
v_readlane_b32 s24, v{T+2}, 63
s_nop 1
v_mul_f32 v{T+4}, s24, v{T+4}
v_sqrt_f32 v{T+4}, v{T+4}
s_mov_b32 s26, 0
v_mul_f32 v{T+4}, {f32hex(-1.02)}, v{T+4}
v_cvt_pk_bf16_f32 v{QR+1}, v{T+4}, 0
s_waitcnt vmcnt(16)
s_barrier
s_mov_b32 s27, 0
""")
    LMAIN = "k2_main"
    stamp(1)
    k.label(LMAIN)
    e(f"""v_mov_b32 v{AKM}, v{BKM}
v_mov_b32 v{AVT}, v{BVT}
v_mov_b32 v{AKR}, v{BKR}
ds_read_b32 v{KR}, v{BKR}
ds_read_b128 {vr(KM[0],4)}, v{BKM}
ds_read_b128 {vr(KM[1],4)}, v{BKM} offset:1024
""")
    for r in list(range(O, O + 16)) + list(range(P + 12, P + 16)) + list(range(VF[3], VF[3] + 4)):
        e(f"v_mov_b32 v{r}, 0")
    e(f"""s_waitcnt lgkmcnt(2)
v_mfma_f32_32x32x4_2b_bf16 {vr(SA,32)}, {vr(KR,2)}, {vr(QR,2)}, 0
ds_read_b32 v{KR}, v{BKR} offset:{BLK}
s_nop 15
s_nop 2
s_waitcnt lgkmcnt(1)
v_mfma_f32_32x32x16_bf16 {vr(SA,16)}, {vr(KM[0],4)}, {vr(QM,4)}, {vr(SA,16)}
v_mfma_f32_32x32x16_bf16 {vr(SA+16,16)}, {vr(KM[1],4)}, {vr(QM,4)}, {vr(SA+16,16)}
s_mov_b32 s25, s26
s_nop 1
""")
    def PV(i):
        return f"v_mfma_f32_32x32x16_bf16 {vr(O,16)}, {vr(VF[i],4)}, {vr(P+4*i,4)}, {vr(O,16)}"
    def block(b, Sc, Sn):
        e(f"""s_waitcnt lgkmcnt(0)
v_mfma_f32_32x32x4_2b_bf16 {vr(Sn,32)}, {vr(KR,2)}, {vr(QR,2)}, 0
{PV(3)}
ds_read_b128 {vr(VF[0],4)}, v{AVT} offset:{b*BLK}
ds_read_b128 {vr(VF[1],4)}, v{AVT} offset:{b*BLK+608}
ds_read_b128 {vr(KM[0],4)}, v{AKM} offset:{(b+1)*BLK}
ds_read_b128 {vr(KM[1],4)}, v{AKM} offset:{(b+1)*BLK+1024}
ds_read_b128 {vr(VF[2],4)}, v{AVT} offset:{b*BLK+1216}
ds_read_b128 {vr(VF[3],4)}, v{AVT} offset:{b*BLK+1824}
ds_read_b32 v{KR}, v{AKR} offset:{(b+2)*BLK}""")
        E = lambda i: f"v_exp_f32 v{Sc+i}, v{Sc+i}"
        C = lambda i: f"v_cvt_pk_bf16_f32 v{P+i}, v{Sc+2*i}, v{Sc+2*i+1}"
        for g in range(4):
            b8, c4 = 8 * g, 4 * g
            e(E(b8)); e(E(b8 + 1))
            if g == 1:
                e("s_waitcnt lgkmcnt(6)"); e(PV(0))
            elif g == 2:
                e("s_waitcnt lgkmcnt(5)"); e(PV(1))
                e("s_waitcnt lgkmcnt(3)")
                e(f"v_mfma_f32_32x32x16_bf16 {vr(Sn,16)}, {vr(KM[0],4)}, {vr(QM,4)}, {vr(Sn,16)}")
            elif g == 3:
                e("s_waitcnt lgkmcnt(2)"); e(PV(2))
            e(E(b8 + 2)); e(E(b8 + 3)); e(C(c4)); e(E(b8 + 4)); e(E(b8 + 5))
            if g == 2:
                e(f"v_mfma_f32_32x32x16_bf16 {vr(Sn+16,16)}, {vr(KM[1],4)}, {vr(QM,4)}, {vr(Sn+16,16)}")
            e(C(c4 + 1)); e(E(b8 + 6)); e(E(b8 + 7)); e(C(c4 + 2)); e(C(c4 + 3))
    L = "k2_loop"; LB = "k2_body"; LS2 = "k2_s2"
    k.lines.append(".p2align 3")
    k.label(L)
    e(f"""s_cmp_gt_u32 s25, 3
s_cbranch_scc1 {LB}
s_cmp_lg_u32 s25, 1
s_cbranch_scc1 {LS2}
s_waitcnt vmcnt(12)
s_barrier""")
    k.label(LS2)
    e(f"""s_cmp_lg_u32 s25, 3
s_cbranch_scc1 {LB}
s_waitcnt vmcnt(0)
s_barrier""")
    k.label(LB)
    block(0, SA, SB)
    block(1, SB, SA)
    e(f"""v_add_u32 v{AKM}, {2*BLK}, v{AKM}
v_add_u32 v{AVT}, {2*BLK}, v{AVT}
v_add_u32 v{AKR}, {2*BLK}, v{AKR}
s_add_u32 s25, s25, 1
s_add_u32 s27, s27, 1
s_cmp_lt_u32 s27, 16
s_cbranch_scc1 {L}
s_waitcnt lgkmcnt(0)
{PV(3)}
s_nop 15
""")
    stamp(2)
    LOK = "k2_ok"; LFB = "k2_fbloop"
    MX = T
    e(f"""v_cmp_nle_f32 vcc, {f32hex(2.0**-90)}, v{O+10}
s_cmp_lg_u32 s26, 0
s_cbranch_scc1 {LOK}
s_cbranch_vccz {LOK}
v_mov_b32 v{QR+1}, 0
v_mov_b32 v{MX}, 0xff800000
v_mov_b32 v{AKM}, v{BKM}
v_mov_b32 v{AKR}, v{BKR}
s_mov_b32 s27, 0
""")
    k.label(LFB)
    e(f"""ds_read_b32 v{KR}, v{AKR}
ds_read_b128 {vr(KM[0],4)}, v{AKM}
ds_read_b128 {vr(KM[1],4)}, v{AKM} offset:1024
s_waitcnt lgkmcnt(0)
v_mfma_f32_32x32x4_2b_bf16 {vr(SA,32)}, {vr(KR,2)}, {vr(QR,2)}, 0
s_nop 15
s_nop 3
v_mfma_f32_32x32x16_bf16 {vr(SA,16)}, {vr(KM[0],4)}, {vr(QM,4)}, {vr(SA,16)}
v_mfma_f32_32x32x16_bf16 {vr(SA+16,16)}, {vr(KM[1],4)}, {vr(QM,4)}, {vr(SA+16,16)}
v_add_u32 v{AKM}, {BLK}, v{AKM}
v_add_u32 v{AKR}, {BLK}, v{AKR}
s_nop 15
""")
    for i in range(16):
        e(f"v_max3_f32 v{MX}, v{SA+2*i}, v{SA+2*i+1}, v{MX}")
    e(f"""s_add_u32 s27, s27, 1
s_cmp_lt_u32 s27, 32
s_cbranch_scc1 {LFB}
v_mov_b32 v{MX+1}, v{MX}
s_nop 1
v_permlane32_swap_b32 v{MX}, v{MX+1}
v_max_f32 v{MX}, v{MX}, v{MX+1}
v_sub_f32 v{MX}, 0, v{MX}
v_cvt_pk_bf16_f32 v{MX+1}, v{MX}, v{MX}
v_and_b32 v{MX+1}, 0xffff0000, v{MX+1}
v_sub_f32 v{MX+2}, v{MX}, v{MX+1}
v_cvt_pk_bf16_f32 v{QR+1}, v{MX+1}, v{MX+2}
s_mov_b32 s26, 4
s_mov_b32 s27, 0
s_branch {LMAIN}
""")
    k.label(LOK)
    e(f"""v_rcp_f32 v{T}, v{O+10}
s_mul_i32 s18, s15, 36
s_add_u32 s19, s18, s12
s_lshl_b32 s19, s19, 10
s_add_u32 s19, s19, {WS_OP}
s_lshr_b32 s20, s12, 3
s_add_u32 s18, s18, s20
s_add_u32 s18, s18, 32
s_lshl_b32 s18, s18, 10
s_bfe_u32 s20, s12, 0x10002
s_lshl_b32 s20, s20, 9
s_add_u32 s18, s18, s20
s_and_b32 s20, s12, 3
s_lshl_b32 s20, s20, 2
s_add_u32 s18, s18, s20
s_add_u32 s18, s18, {WS_OP}
""")
    for i in range(10):
        e(f"v_mul_f32 v{O+i}, v{O+i}, v{T}")
    for i in range(5):
        e(f"v_cvt_pk_bf16_f32 v{P+i}, v{O+2*i}, v{O+2*i+1}")
    e(f"""buffer_store_dwordx4 {vr(P,4)}, v{L16}, {W}, s19 offen
s_mov_b32 exec_hi, 0
buffer_store_dword v{P+4}, v{L16}, {W}, s18 offen
""")
    if PROF:
        e(f"""s_waitcnt vmcnt(0)
s_memtime s[46:47]
s_memrealtime s[50:51]
s_waitcnt lgkmcnt(0)
s_sub_u32 s42, s42, s40
s_sub_u32 s44, s44, s40
s_sub_u32 s46, s46, s40
s_sub_u32 s50, s50, s48
v_mov_b32 v20, s42
v_mov_b32 v21, s44
v_mov_b32 v22, s46
v_mov_b32 v23, s50
s_lshl_b32 s18, s2, 3
s_add_u32 s18, s18, s14
s_lshl_b32 s18, s18, 4
s_add_u32 s18, s18, 0xF00000
v_mov_b32 v24, 0
s_mov_b32 exec_lo, 1
buffer_store_dwordx4 v[20:23], v24, {W}, s18 offen""")
    k.label(Lend)
    e("s_endpgm")
    return k, 144, 56
```

```python
from asmlib import *
from layout import *
import os
K3_LDS = 49152

def gen_k3():
    k = K("k3_kernel")
    e = k.e
    WSR, XR, WRR = 8, 12, 16
    LANE, M, HALF, L16 = 1, 2, 3, 4
    T = 5
    XV = 16
    WV = 24
    FR = 32
    ACC = 176
    Lend = "k3_end"
    e(f"""s_cmp_ge_u32 s2, 288
s_cbranch_scc1 {Lend}
s_load_dwordx2 s[4:5], s[0:1], 80
s_load_dwordx2 s[6:7], s[0:1], 0
s_load_dwordx2 s[20:21], s[0:1], 32
v_lshrrev_b32 v{T}, 6, v0
v_and_b32 v{LANE}, 63, v0
v_readfirstlane_b32 s22, v{T}
v_and_b32 v{M}, 31, v0
v_bfe_u32 v{HALF}, v0, 5, 1
v_lshlrev_b32 v{L16}, 4, v{LANE}
s_and_b32 s23, s2, 31
s_lshr_b32 s24, s2, 5
s_mul_i32 s25, s23, {2*36*1024}
s_mul_i32 s26, s22, {9*1024}
s_add_u32 s25, s25, s26
s_add_u32 s25, s25, {WS_OP}
s_mul_i32 s27, s24, {2*36*1024}
s_add_u32 s27, s27, s26
s_add_u32 s27, s27, {WS_WOP}
s_add_u32 s28, s25, {36*1024}
s_add_u32 s29, s27, {36*1024}
s_waitcnt lgkmcnt(0)
""")
    srd(k, WSR, 4, WS_SIZE)
    W = f"s[{WSR}:{WSR+3}]"
    for ks in range(9):
        b = FR + 16 * ks
        off = (ks % 4) * 1024
        if ks and ks % 4 == 0:
            e("s_add_u32 s25, s25, 4096\ns_add_u32 s27, s27, 4096\ns_add_u32 s28, s28, 4096\ns_add_u32 s29, s29, 4096")
        e(f"""buffer_load_dwordx4 {vr(b,4)}, v{L16}, {W}, s25 offen offset:{off}
buffer_load_dwordx4 {vr(b+8,4)}, v{L16}, {W}, s27 offen offset:{off}
buffer_load_dwordx4 {vr(b+4,4)}, v{L16}, {W}, s28 offen offset:{off}
buffer_load_dwordx4 {vr(b+12,4)}, v{L16}, {W}, s29 offen offset:{off}""")
    srd(k, XR, 6, S * D * 2)
    srd(k, WRR, 20, D * 2)
    e(f"""s_lshr_b32 s30, s22, 1
s_and_b32 s31, s22, 1
s_lshl_b32 s32, s23, 1
s_add_u32 s32, s32, s30
s_lshl_b32 s33, s24, 1
s_add_u32 s33, s33, s31
s_mul_i32 s34, s32, {32*1152}
s_lshl_b32 s35, s33, 6
s_add_u32 s34, s34, s35
v_mul_u32_u24 v{T}, 1152, v{M}
v_lshl_add_u32 v{T}, v{HALF}, 4, v{T}
v_lshlrev_b32 v{T+1}, 4, v{HALF}
buffer_load_dwordx4 {vr(XV,4)}, v{T}, s[{XR}:{XR+3}], s34 offen
buffer_load_dwordx4 {vr(XV+4,4)}, v{T}, s[{XR}:{XR+3}], s34 offen offset:32
buffer_load_dwordx4 {vr(WV,4)}, v{T+1}, s[{WRR}:{WRR+3}], s35 offen
buffer_load_dwordx4 {vr(WV+4,4)}, v{T+1}, s[{WRR}:{WRR+3}], s35 offen offset:32
""")
    acc = lambda a, b: ACC + 32 * a + 16 * b
    for ks in range(9):
        b = FR + 16 * ks
        e(f"s_waitcnt vmcnt({4 + 4*(8-ks)})")
        for a in range(2):
            for n in range(2):
                c = vr(acc(a, n), 16) if ks else "0"
                e(f"v_mfma_f32_32x32x16_bf16 {vr(acc(a,n),16)}, {vr(b+8+4*n,4)}, {vr(b+4*a,4)}, {c}")
    e("s_nop 7\ns_nop 3")
    for j in range(4):
        Ls = k.newlabel("sk")
        e(f"""s_cmp_eq_u32 s22, {j}
s_cbranch_scc1 {Ls}
s_sub_u32 s36, s22, {j+1}
s_and_b32 s36, s36, 3
s_lshl_b32 s36, s36, 12
v_add_u32 v{T+2}, s36, v{L16}""")
        for q in range(4):
            e(f"ds_write_b128 v{T+2}, {vr(ACC+16*j+4*q,4)} offset:{j*12288+q*1024}")
        k.label(Ls)
    OWN = 32
    LD = "k3_own_done"
    for j in range(4):
        Ln = k.newlabel("on")
        e(f"s_cmp_lg_u32 s22, {j}\ns_cbranch_scc1 {Ln}")
        for r in range(16):
            e(f"v_mov_b32 v{OWN+r}, v{ACC+16*j+r}")
        e(f"s_branch {LD}")
        k.label(Ln)
    k.label(LD)
    e(f"""s_mul_i32 s36, s22, 12288
v_add_u32 v{T+2}, s36, v{L16}
s_waitcnt lgkmcnt(0)
s_barrier""")
    PT = 48
    for sidx in range(3):
        for q in range(4):
            e(f"ds_read_b128 {vr(PT+16*sidx+4*q,4)}, v{T+2} offset:{sidx*4096+q*1024}")
    XF, WF = 96, 112
    e("s_waitcnt vmcnt(0)")
    for i in range(8):
        e(f"""v_lshlrev_b32 v{XF+2*i}, 16, v{XV+i}
v_and_b32 v{XF+2*i+1}, 0xffff0000, v{XV+i}
v_lshlrev_b32 v{WF+2*i}, 16, v{WV+i}
v_and_b32 v{WF+2*i+1}, 0xffff0000, v{WV+i}""")
    for sidx in range(3):
        e(f"s_waitcnt lgkmcnt({8-4*sidx})")
        for r in range(16):
            e(f"v_add_f32 v{OWN+r}, v{OWN+r}, v{PT+16*sidx+r}")
    HP = 128
    for i in range(8):
        e(f"v_cvt_pk_bf16_f32 v{HP+i}, v{OWN+2*i}, v{OWN+2*i+1}")
    for i in range(8):
        e(f"""v_lshlrev_b32 v{OWN+2*i}, 16, v{HP+i}
v_and_b32 v{OWN+2*i+1}, 0xffff0000, v{HP+i}""")
    for r in range(16):
        e(f"v_add_f32 v{OWN+r}, v{OWN+r}, v{XF+r}")
    for i in range(8):
        e(f"v_cvt_pk_bf16_f32 v{HP+i}, v{OWN+2*i}, v{OWN+2*i+1}")
    e(f"""s_add_u32 s34, s34, {WS_H}
buffer_store_dwordx4 {vr(HP,4)}, v{T}, {W}, s34 offen
buffer_store_dwordx4 {vr(HP+4,4)}, v{T}, {W}, s34 offen offset:32""")
    for i in range(8):
        e(f"""v_lshlrev_b32 v{OWN+2*i}, 16, v{HP+i}
v_and_b32 v{OWN+2*i+1}, 0xffff0000, v{HP+i}""")
    S0, S1, S2 = 136, 138, 140
    e(f"""v_add_f32 v{S0}, v{OWN}, v{OWN+1}
v_mul_f32 v{S1}, v{OWN}, v{OWN}
v_mul_f32 v{S2}, v{OWN}, v{WF}
v_mul_f32 v{S1+1}, v{OWN+1}, v{OWN+1}
v_mul_f32 v{S2+1}, v{OWN+1}, v{WF+1}
v_add_f32 v{S0+1}, v{OWN+2}, v{OWN+3}""")
    for r in range(2, 16):
        if r >= 4:
            e(f"v_add_f32 v{S0+(r%2)}, v{S0+(r%2)}, v{OWN+r}")
        e(f"""v_fmac_f32 v{S1+(r%2)}, v{OWN+r}, v{OWN+r}
v_fmac_f32 v{S2+(r%2)}, v{OWN+r}, v{WF+r}""")
    e(f"""v_add_f32 v{S0}, v{S0}, v{S0+1}
v_add_f32 v{S1}, v{S1}, v{S1+1}
v_add_f32 v{S2}, v{S2}, v{S2+1}
v_mov_b32 v{S2+1}, v{S2}
s_lshl_b32 s36, s32, 7
s_add_u32 s36, s36, {WS_ST}
v_permlane32_swap_b32 v{S0}, v{S1}
v_permlane32_swap_b32 v{S2}, v{S2+1}
v_lshlrev_b32 v{T+3}, 2, v{M}
v_lshl_add_u32 v{T+3}, v{HALF}, 13, v{T+3}
v_add_f32 v{S0}, v{S0}, v{S1}
v_add_f32 v{S2}, v{S2}, v{S2+1}
buffer_atomic_add_f32 v{S0}, v{T+3}, {W}, s36 offen
s_add_u32 s36, s36, 16384
s_mov_b32 exec_hi, 0
buffer_atomic_add_f32 v{S2}, v{T+3}, {W}, s36 offen
""")
    k.label(Lend)
    e("s_endpgm")
    return k, 240, 48
```

```python
from asmlib import *
from layout import *
import os
L_WG, L_WU, L_WD = 4096, 40960, 77824
L_X2 = 0
L_RED = 1152
L_PART = 1280
L_ACT = 1792
L_FLAG = 2304
K4_LDS = 114688
NFFN = 144

def gen_k4():
    k = K("k4_kernel")
    e = k.e
    WSR, GR, UR, DR, OUTR = 8, 12, 16, 20, 24
    LANE, T = 1, 2
    ST = 16
    HR = 28
    HS = 36
    Lend = "k4_end"
    INV = f32hex(1.0 / 576); EPS = f32hex(1e-5)
    e(f"""s_cmp_ge_u32 s2, 256
s_cbranch_scc1 {Lend}
s_load_dwordx2 s[4:5], s[0:1], 80
s_load_dwordx4 s[28:31], s[0:1], 40
s_load_dwordx4 s[32:35], s[0:1], 56
v_lshrrev_b32 v{T}, 6, v0
v_and_b32 v{LANE}, 63, v0
v_readfirstlane_b32 s36, v{T}
v_lshlrev_b32 v{T+1}, 4, v0
v_lshlrev_b32 v{T+2}, 4, v{LANE}
s_lshl_b32 s37, s2, 3
s_add_u32 s37, s37, s36
s_mul_i32 s38, s37, 1152
s_add_u32 s39, s38, {WS_H}
s_lshl_b32 s40, s37, 2
s_add_u32 s40, s40, {WS_ST}
v_cmp_gt_u32 vcc, 8, v{LANE}
v_add_u32 v{T+3}, 1024, v{T+2}
v_mov_b32 v{T+4}, {HUGE}
s_waitcnt lgkmcnt(0)
v_cndmask_b32 v{T+3}, v{T+4}, v{T+3}, vcc
""")
    srd(k, WSR, 4, WS_SIZE)
    W = f"s[{WSR}:{WSR+3}]"
    e(f"""s_mov_b32 s41, {WS_ST}
buffer_load_dwordx4 {vr(ST,4)}, v{T+1}, {W}, s41 offen
s_add_u32 s41, s41, 8192
buffer_load_dwordx4 {vr(ST+4,4)}, v{T+1}, {W}, s41 offen
s_add_u32 s41, s41, 8192
buffer_load_dwordx4 {vr(ST+8,4)}, v{T+1}, {W}, s41 offen
buffer_load_dwordx4 {vr(HR,4)}, v{T+2}, {W}, s39 offen
buffer_load_dwordx4 {vr(HR+4,4)}, v{T+3}, {W}, s39 offen
s_add_u32 s42, s4, s40
s_addc_u32 s43, s5, 0
s_load_dword s44, s[42:43], 0
s_load_dword s45, s[42:43], 8192
s_add_u32 s46, s4, {WS_WSUM}
s_addc_u32 s47, s5, 0
s_load_dword s48, s[46:47], 0
""")
    srd(k, GR, 28, D * F * 2)
    srd(k, UR, 30, D * F * 2)
    srd(k, DR, 32, D * F * 2)
    srd(k, OUTR, 34, S * D * 2)
    LNOD = "k4_nodma"
    e(f"""s_cmp_ge_u32 s2, {NFFN}
s_cbranch_scc1 {LNOD}
v_lshrrev_b32 v{T+4}, 2, v{LANE}
v_mul_u32_u24 v{T+4}, 9216, v{T+4}
v_and_b32 v{T+5}, 3, v{LANE}
v_lshl_add_u32 v{T+4}, v{T+5}, 4, v{T+4}
s_mul_i32 s50, s36, {16*9216}
s_lshl_b32 s51, s2, 6
s_add_u32 s50, s50, s51
s_lshl_b32 s51, s36, 10
s_mul_i32 s52, s2, 36864
s_add_u32 s52, s52, s51
""")
    for i in range(5):
        if i == 4:
            e(f"s_cmp_ge_u32 s36, 4\ns_cbranch_scc1 {LNOD}")
        e(f"""s_add_u32 m0, s51, {L_WG + i*8192}
s_nop 0
buffer_load_dwordx4 v{T+4}, s[{GR}:{GR+3}], s50 offen lds
s_add_u32 m0, s51, {L_WU + i*8192}
s_nop 0
buffer_load_dwordx4 v{T+4}, s[{UR}:{UR+3}], s50 offen lds
s_add_u32 m0, s51, {L_WD + i*8192}
s_add_u32 s50, s50, {8*16*9216}
buffer_load_dwordx4 v{T+2}, s[{DR}:{DR+3}], s52 offen lds
s_add_u32 s52, s52, 8192""")
    k.label(LNOD)
    KEY = 40
    e(f"""v_lshlrev_b32 v{T+5}, 2, v0
v_sub_u32 v{T+5}, 2047, v{T+5}
s_waitcnt lgkmcnt(0)
s_cmp_ge_u32 s2, {NFFN}
s_cbranch_scc1 k4_w0
s_cmp_ge_u32 s36, 4
s_cbranch_scc1 k4_w1
s_waitcnt vmcnt(17)
s_branch k4_w2""")
    k.label("k4_w1")
    e("s_waitcnt vmcnt(14)\ns_branch k4_w2")
    k.label("k4_w0")
    e("s_waitcnt vmcnt(2)")
    k.label("k4_w2")
    for i in range(4):
        a, b, c = T + 6, T + 7, T + 8
        e(f"""v_mul_f32 v{a}, {INV}, v{ST+i}
v_mul_f32 v{b}, {INV}, v{ST+4+i}
v_fma_f32 v{b}, -v{a}, v{a}, v{b}
v_max_f32 v{b}, 0, v{b}
v_add_f32 v{b}, {EPS}, v{b}
v_rsq_f32 v{b}, v{b}
v_fma_f32 v{a}, -v{a}, s48, v{ST+8+i}
v_mul_f32 v{a}, v{a}, v{b}
v_ashrrev_i32 v{c}, 31, v{a}
v_or_b32 v{c}, 0x80000000, v{c}
v_xor_b32 v{a}, v{a}, v{c}
v_and_b32 v{a}, 0xfffff800, v{a}
v_subrev_u32 v{c}, {i}, v{T+5}
v_or_b32 v{KEY+i}, v{a}, v{c}""")
    e(f"""v_max_u32 v{KEY}, v{KEY}, v{KEY+1}
v_max_u32 v{KEY+2}, v{KEY+2}, v{KEY+3}
v_max_u32 v{KEY}, v{KEY}, v{KEY+2}
s_lshl_b32 s49, s36, 2
v_mov_b32 v{T+6}, s49
v_max_u32_dpp v{KEY}, v{KEY}, v{KEY} row_shr:1 row_mask:0xf bank_mask:0xf
s_nop 1
v_max_u32_dpp v{KEY}, v{KEY}, v{KEY} row_shr:2 row_mask:0xf bank_mask:0xf
s_nop 1
v_max_u32_dpp v{KEY}, v{KEY}, v{KEY} row_shr:4 row_mask:0xf bank_mask:0xf
s_nop 1
v_max_u32_dpp v{KEY}, v{KEY}, v{KEY} row_shr:8 row_mask:0xf bank_mask:0xf
s_nop 1
v_max_u32_dpp v{KEY}, v{KEY}, v{KEY} row_bcast:15 row_mask:0xa bank_mask:0xf
s_nop 1
v_max_u32_dpp v{KEY}, v{KEY}, v{KEY} row_bcast:31 row_mask:0xc bank_mask:0xf
s_mov_b32 exec_lo, 0
s_mov_b32 exec_hi, 0x80000000
ds_write_b32 v{T+6}, v{KEY} offset:{L_RED}
s_mov_b64 exec, -1
v_mov_b32 v{T+6}, 0
s_waitcnt lgkmcnt(0)
s_barrier
ds_read_b128 v[44:47], v{T+6} offset:{L_RED}
ds_read_b128 v[48:51], v{T+6} offset:{L_RED+16}
s_waitcnt lgkmcnt(0)
v_max3_u32 v44, v44, v45, v46
v_max3_u32 v48, v48, v49, v50
v_max3_u32 v44, v44, v47, v51
v_max_u32 v44, v44, v48
v_and_b32 v44, 0x7ff, v44
v_sub_u32 v44, 2047, v44
s_nop 0
v_readfirstlane_b32 s53, v44
""")
    LSEL = "k4_nosel"
    e(f"""s_mul_i32 s54, s53, 1152
s_add_u32 s55, s54, {WS_H}
s_lshl_b32 s56, s53, 2
s_add_u32 s56, s56, {WS_ST}
s_add_u32 s56, s4, s56
s_addc_u32 s57, s5, 0
s_load_dword s58, s[56:57], 0
s_load_dword s59, s[56:57], 8192
s_load_dword s60, s[56:57], 16384
v_cmp_gt_u32 vcc, 72, v0
v_mov_b32 v{T+7}, {HUGE}
s_nop 0
v_cndmask_b32 v{T+6}, v{T+7}, v{T+1}, vcc
s_cmp_ge_u32 s2, {NFFN}
s_cbranch_scc1 {LSEL}
s_cmp_ge_u32 s36, 2
s_cbranch_scc1 {LSEL}
buffer_load_dwordx4 {vr(HS,4)}, v{T+6}, {W}, s55 offen
""")
    k.label(LSEL)
    def lnparams(ssum, ssq, mb, rs, t):
        e(f"""v_mov_b32 v{mb}, s{ssum}
v_mov_b32 v{rs}, s{ssq}
v_mul_f32 v{mb}, {INV}, v{mb}
v_mul_f32 v{rs}, {INV}, v{rs}
v_fma_f32 v{rs}, -v{mb}, v{mb}, v{rs}
v_max_f32 v{rs}, 0, v{rs}
v_cvt_pk_bf16_f32 v{mb}, v{mb}, v{mb}
v_cvt_pk_bf16_f32 v{rs}, v{rs}, v{rs}
v_and_b32 v{mb}, 0xffff0000, v{mb}
v_and_b32 v{rs}, 0xffff0000, v{rs}
v_add_f32 v{rs}, {EPS}, v{rs}
v_cvt_pk_bf16_f32 v{rs}, v{rs}, v{rs}
v_and_b32 v{rs}, 0xffff0000, v{rs}
v_sqrt_f32 v{rs}, v{rs}
s_nop 0
v_cvt_pk_bf16_f32 v{rs}, v{rs}, v{rs}
v_and_b32 v{rs}, 0xffff0000, v{rs}
v_rcp_f32 v{rs}, v{rs}
s_nop 0""")
    def ln_chunk(src, n, mb, rs, hf, x2p):
        for i in range(n):
            e(f"""v_lshlrev_b32 v{hf+2*i}, 16, v{src+i}
v_and_b32 v{hf+2*i+1}, 0xffff0000, v{src+i}""")
        D0 = 96
        for i in range(2 * n):
            e(f"v_sub_f32 v{D0+i}, v{hf+i}, v{mb}")
        for i in range(n):
            e(f"v_cvt_pk_bf16_f32 v{x2p+i}, v{D0+2*i}, v{D0+2*i+1}")
        for i in range(n):
            e(f"""v_lshlrev_b32 v{D0+2*i}, 16, v{x2p+i}
v_and_b32 v{D0+2*i+1}, 0xffff0000, v{x2p+i}""")
        for i in range(2 * n):
            e(f"v_mul_f32 v{D0+i}, v{D0+i}, v{rs}")
        for i in range(n):
            e(f"v_cvt_pk_bf16_f32 v{x2p+i}, v{D0+2*i}, v{D0+2*i+1}")
    MB, RS = 52, 53
    HF, X2P = 56, 72
    lnparams(44, 45, MB, RS, None)
    e(f"""s_cmp_ge_u32 s2, {NFFN}
s_cbranch_scc1 k4_x0
s_cmp_ge_u32 s36, 4
s_cbranch_scc1 k4_x1
s_cmp_ge_u32 s36, 2
s_cbranch_scc1 k4_x3
s_waitcnt vmcnt(16)
s_branch k4_x2""")
    k.label("k4_x3")
    e("s_waitcnt vmcnt(15)\ns_branch k4_x2")
    k.label("k4_x1")
    e("s_waitcnt vmcnt(12)\ns_branch k4_x2")
    k.label("k4_x0")
    e("s_waitcnt vmcnt(0)")
    k.label("k4_x2")
    ln_chunk(HR, 8, MB, RS, HF, X2P)
    D0 = 96
    for i in range(8):
        e(f"""v_lshlrev_b32 v{D0+2*i}, 16, v{X2P+i}
v_and_b32 v{D0+2*i+1}, 0xffff0000, v{X2P+i}""")
    for i in range(16):
        e(f"v_add_f32 v{D0+i}, v{D0+i}, v{HF+i}")
    for i in range(8):
        e(f"v_cvt_pk_bf16_f32 v{X2P+i}, v{D0+2*i}, v{D0+2*i+1}")
    e(f"""s_cmp_eq_u32 s37, s53
s_cselect_b32 s38, {HUGE}, s38
buffer_store_dwordx4 {vr(X2P,4)}, v{T+2}, s[{OUTR}:{OUTR+3}], s38 offen
buffer_store_dwordx4 {vr(X2P+4,4)}, v{T+3}, s[{OUTR}:{OUTR+3}], s38 offen
s_cmp_ge_u32 s2, {NFFN}
s_cbranch_scc1 {Lend}
""")
    SMB, SRS = 54, 55
    SHF, SX2 = 80, 88
    LX = "k4_nox2"
    e(f"""s_waitcnt lgkmcnt(0)
s_cmp_ge_u32 s36, 2
s_cbranch_scc1 {LX}""")
    lnparams(58, 59, SMB, SRS, None)
    e("s_waitcnt vmcnt(2)")
    ln_chunk(HS, 4, SMB, SRS, SHF, SX2)
    e(f"""v_cmp_gt_u32 vcc, 72, v0
s_and_saveexec_b64 s[62:63], vcc
ds_write_b128 v{T+1}, {vr(SX2,4)} offset:{L_X2}
s_mov_b64 exec, s[62:63]""")
    k.label(LX)
    e(f"""v_lshrrev_b32 v{T+6}, 4, v{LANE}
v_bfe_u32 v{T+7}, v{LANE}, 2, 2
v_lshl_add_u32 v{T+7}, v{T+6}, 3, v{T+7}
v_and_b32 v{T+8}, 3, v{LANE}
v_lshlrev_b32 v{T+8}, 3, v{T+8}
v_lshl_add_u32 v{T+9}, v{T+7}, 6, v{T+8}
s_and_b32 s61, s36, 1
s_lshl_b32 s61, s61, 5
s_bfe_u32 s64, s36, 0x10001
s_mul_i32 s64, s64, {L_WU-L_WG}
s_add_u32 s61, s61, s64
s_add_u32 s61, s61, {L_WG}
s_lshr_b32 s64, s36, 2
s_mul_i32 s65, s64, {288*64}
s_add_u32 s61, s61, s65
v_add_u32 v{T+9}, s61, v{T+9}
s_mul_i32 s65, s64, {288*2}
v_lshl_add_u32 v{T+10}, v{T+6}, 4, s65
v_mul_u32_u24 v{T+11}, 1152, v{T+7}
v_add_u32 v{T+11}, v{T+11}, v{T+8}
s_lshl_b32 s65, s36, 5
s_add_u32 s65, s65, {L_WD}
v_add_u32 v{T+11}, s65, v{T+11}
s_waitcnt vmcnt(0) lgkmcnt(0)
s_barrier
""")
    AF, BF, ACC = 96, 132, 168
    for ks in range(9):
        e(f"""ds_read_b128 {vr(AF+4*ks,4)}, v{T+10} offset:{L_X2+ks*64}
ds_read_b64_tr_b16 {vr(BF+4*ks,2)}, v{T+9} offset:{ks*32*64}
ds_read_b64_tr_b16 {vr(BF+4*ks+2,2)}, v{T+9} offset:{ks*32*64+4*64}""")
    for ks in range(9):
        e(f"s_waitcnt lgkmcnt({min(15, 3*(8-ks))})")
        c = vr(ACC, 4) if ks else "0"
        e(f"v_mfma_f32_16x16x32_bf16 {vr(ACC,4)}, {vr(AF+4*ks,4)}, {vr(BF+4*ks,4)}, {c}")
    DF = 96
    for j in range(5):
        e(f"""ds_read_b64_tr_b16 {vr(DF+4*j,2)}, v{T+11} offset:{j*256}
ds_read_b64_tr_b16 {vr(DF+4*j+2,2)}, v{T+11} offset:{j*256+4*1152}""")
    e(f"""s_lshl_b32 s65, s36, 6
v_and_b32 v{T+12}, 15, v{LANE}
v_lshl_add_u32 v{T+12}, v{T+12}, 2, s65
ds_write_b32 v{T+12}, v{ACC} offset:{L_PART}
v_and_b32 v{T+12}, 31, v{LANE}
v_lshlrev_b32 v{T+12}, 2, v{T+12}
s_waitcnt lgkmcnt(0)
s_barrier
ds_read_b32 v172, v{T+12} offset:{L_PART}
ds_read_b32 v173, v{T+12} offset:{L_PART+256}
ds_read_b32 v174, v{T+12} offset:{L_PART+128}
ds_read_b32 v175, v{T+12} offset:{L_PART+384}
s_waitcnt lgkmcnt(0)
v_add_f32 v172, v172, v173
v_add_f32 v174, v174, v175
v_cvt_pk_bf16_f32 v172, v172, v174
v_lshlrev_b32 v173, 16, v172
v_and_b32 v174, 0xffff0000, v172
v_mul_f32 v175, {f32hex(-1.4426950408889634)}, v173
v_exp_f32 v175, v175
s_nop 0
v_add_f32 v175, 1.0, v175
v_rcp_f32 v175, v175
s_nop 0
v_mul_f32 v173, v173, v175
v_cvt_pk_bf16_f32 v173, v173, v173
v_and_b32 v173, 0xffff0000, v173
v_mul_f32 v173, v173, v174
v_cvt_pk_bf16_f32 v173, v173, v173
s_lshl_b32 s65, s36, 6
v_lshrrev_b32 v{T+12}, 1, v{T+12}
v_add_u32 v{T+12}, s65, v{T+12}
ds_write_b16 v{T+12}, v173 offset:{L_ACT}
v_lshl_add_u32 v{T+13}, v{T+6}, 4, s65
s_waitcnt lgkmcnt(0)
ds_read_b128 v[172:175], v{T+13} offset:{L_ACT}
s_waitcnt lgkmcnt(0)
""")
    YA = 120
    for j in range(5):
        e(f"v_mfma_f32_16x16x32_bf16 {vr(YA+4*j,4)}, v[172:175], {vr(DF+4*j,4)}, 0")
    e(f"""v_cmp_eq_u32 s[62:63], 1, v{T+6}
v_cmp_eq_u32 s[64:65], 2, v{T+6}
v_cmp_eq_u32 s[66:67], 3, v{T+6}
v_and_b32 v{T+12}, 15, v{LANE}
v_lshlrev_b32 v{T+12}, 2, v{T+12}
v_lshl_add_u32 v{T+13}, v{T+6}, 9, v{T+12}
s_and_b32 s68, s2, {YREP-1}
s_mul_i32 s68, s68, 2304
s_lshl_b32 s69, s36, 6
s_add_u32 s68, s68, s69
s_add_u32 s68, s68, {WS_Y}
s_add_u32 s69, s68, 2048
s_cmp_ge_u32 s36, 4
s_cselect_b32 s69, {HUGE}, s69
v_cndmask_b32 v{YA}, v{YA}, v{YA+4}, s[62:63]
v_cndmask_b32 v{YA}, v{YA}, v{YA+8}, s[64:65]
v_cndmask_b32 v{YA}, v{YA}, v{YA+12}, s[66:67]
buffer_atomic_add_f32 v{YA}, v{T+13}, {W}, s68 offen
s_mov_b64 exec, 0xffff
buffer_atomic_add_f32 v{YA+16}, v{T+12}, {W}, s69 offen
s_mov_b64 exec, -1
s_waitcnt vmcnt(0)
s_barrier
s_cmp_ge_u32 s36, 2
s_cbranch_scc1 {Lend}
s_cmp_eq_u32 s36, 1
s_cbranch_scc1 k4_cnt
v_mov_b32 v{T+12}, {WS_CNT}
v_mov_b32 v{T+13}, 1
v_mov_b32 v{T+14}, 0
s_mov_b64 exec, 1
buffer_atomic_add v{T+13}, v{T+12}, {W}, 0 offen sc0
s_waitcnt vmcnt(0)
ds_write_b32 v{T+14}, v{T+13} offset:{L_FLAG}
s_mov_b64 exec, -1
s_waitcnt lgkmcnt(0)
""")
    k.label("k4_cnt")
    e(f"""v_mov_b32 v{T+14}, 0
s_barrier
ds_read_b32 v{T+13}, v{T+14} offset:{L_FLAG}
s_waitcnt lgkmcnt(0)
v_readfirstlane_b32 s70, v{T+13}
s_nop 3
s_cmp_lg_u32 s70, {NFFN-1}
s_cbranch_scc1 {Lend}
v_lshlrev_b32 v{T+12}, 5, v0
v_cmp_gt_u32 vcc, 72, v0
v_mov_b32 v{T+7}, {HUGE}
s_mov_b32 s71, {WS_Y}
v_cndmask_b32 v{T+12}, v{T+7}, v{T+12}, vcc
""")
    YL = 96
    for r in range(YREP):
        e(f"""buffer_load_dwordx4 {vr(YL+8*r,4)}, v{T+12}, {W}, s71 offen sc0 sc1
buffer_load_dwordx4 {vr(YL+8*r+4,4)}, v{T+12}, {W}, s71 offen offset:16 sc0 sc1
s_add_u32 s71, s71, 2304""")
    SG = T + 8
    e(f"""v_mov_b32 v{SG}, s60
v_fma_f32 v{SG}, -v{SMB}, s48, v{SG}
v_mul_f32 v{SG}, v{SG}, v{SRS}
v_cvt_pk_bf16_f32 v{SG}, v{SG}, v{SG}
v_and_b32 v{SG}, 0xffff0000, v{SG}
v_mul_f32 v{SG}, {f32hex(-1.4426950408889634)}, v{SG}
v_exp_f32 v{SG}, v{SG}
s_nop 0
v_add_f32 v{SG}, 1.0, v{SG}
v_rcp_f32 v{SG}, v{SG}
s_nop 0
v_cvt_pk_bf16_f32 v{SG}, v{SG}, v{SG}
v_and_b32 v{SG}, 0xffff0000, v{SG}
s_waitcnt vmcnt(0)""")
    for r in range(1, YREP):
        for i in range(8):
            e(f"v_add_f32 v{YL+i}, v{YL+i}, v{YL+8*r+i}")
    PK = 40
    def rnd(base):
        for i in range(4):
            e(f"v_cvt_pk_bf16_f32 v{PK+i}, v{base+2*i}, v{base+2*i+1}")
        for i in range(4):
            e(f"""v_lshlrev_b32 v{base+2*i}, 16, v{PK+i}
v_and_b32 v{base+2*i+1}, 0xffff0000, v{PK+i}""")
    rnd(YL)
    for i in range(8):
        e(f"v_mul_f32 v{YL+i}, v{YL+i}, v{SG}")
    rnd(YL)
    for i in range(4):
        e(f"""v_lshlrev_b32 v{YL+8+2*i}, 16, v{SX2+i}
v_and_b32 v{YL+8+2*i+1}, 0xffff0000, v{SX2+i}""")
    for i in range(8):
        e(f"v_add_f32 v{YL+i}, v{YL+i}, v{YL+8+i}")
    rnd(YL)
    for i in range(8):
        e(f"v_add_f32 v{YL+i}, v{YL+i}, v{SHF+i}")
    for i in range(4):
        e(f"v_cvt_pk_bf16_f32 v{PK+i}, v{YL+2*i}, v{YL+2*i+1}")
    e(f"""v_cmp_gt_u32 vcc, 72, v0
v_mov_b32 v{T+7}, {HUGE}
s_nop 0
v_cndmask_b32 v{T+6}, v{T+7}, v{T+1}, vcc
buffer_store_dwordx4 {vr(PK,4)}, v{T+6}, s[{OUTR}:{OUTR+3}], s54 offen
""")
    k.label(Lend)
    e("s_endpgm")
    return k, 180, 80
```

```python
KVH   = 151552
BLK   = 4736
WS_KV = 0
WS_QM = 0x500000
WS_QR = 0x700000
WS_KNM = 0x740000
WS_KNR = 0x742000
WS_OP = 0x800000
WS_WOP = 0xA80000
WS_H  = 0xC00000
WS_ST = 0xE80000
WS_Y  = 0xE86000
WS_CNT = 0xE8A800
ZERO_BYTES = 0xA840
WS_WSUM = 0xE8B000
WS_SIZE = 0x1000000
YREP = 8
S = 2048; D = 576; H = 32; DH = 18; F = 4608
import math, struct
QSCALE = math.log2(math.e) / math.sqrt(18.0)
def f32hex(x):
    return "0x%08x" % struct.unpack("<I", struct.pack("<f", x))[0]
HUGE = 0x40000000
```

```python
import sys
from asmlib import *
from layout import *
import importlib
def build(kernels, path):
    head = "; LN1+QKV | attention | out-proj | LN2+router+FFN   (generated by gen/gen.py)\n"
    body = '.amdgcn_target "amdgcn-amd-amdhsa--gfx950"\n.text\n'
    desc = '.section .rodata,"a"\n'
    for gf, grid, block, lds in kernels:
        k, nv, ns = gf()
        head += f"; @launch kernel={k.name} grid=({grid},1,1) block=({block},1,1) lds={lds}\n"
        body += kernel_text(k)
        desc += kernel_desc(k.name, nv, ns)
    open(path, "w").write(head + body + desc)
if __name__ == "__main__":
    from k1 import gen_k1
    ks = [(gen_k1, 256, 768, 131072)]
    try:
        from k2 import gen_k2, K2_LDS
        ks.append((gen_k2, 256, 512, K2_LDS))
        from k3 import gen_k3, K3_LDS
        ks.append((gen_k3, 288, 256, K3_LDS))
        from k4 import gen_k4, K4_LDS
        ks.append((gen_k4, 256, 512, K4_LDS))
    except ImportError as ex:
        print("partial build:", ex)
    out = sys.argv[1] if len(sys.argv) > 1 else "sequential_preLN__mha_block__moe_arch_mod__prompt.s"
    build(ks, out)
```

```python
from asmlib import *
from layout import *
import os
PROF = int(os.environ.get("PROF", "0"))
STATPK = int(os.environ.get("STATPK", "1"))

def gen_k1():
    k = K("k1_kernel")
    e = k.e
    def stamp(i):
        if PROF:
            e(f"s_memtime s[{88+2*i}:{89+2*i}]")
    XA, WA = 16, 20
    WSR, WOR, WRR, ZR = 24, 28, 32, 52
    LANE, M, HALF = 1, 2, 3
    T = 22
    Lend = "k1_end"
    e(f"""s_cmp_ge_u32 s2, 256
s_cbranch_scc1 {Lend}
s_load_dwordx4 s[4:7], s[0:1], 0
s_load_dwordx2 s[12:13], s[0:1], 80
{"s_memtime s[88:89]" if PROF else ""}
v_lshrrev_b32 v{T}, 6, v0
v_and_b32 v{LANE}, 63, v0
v_readfirstlane_b32 s38, v{T}
v_and_b32 v{M}, 31, v0
v_bfe_u32 v{HALF}, v0, 5, 1
s_and_b32 s36, s2, 7
s_lshl_b32 s36, s36, 1
s_bfe_u32 s46, s2, 0x10003
s_add_u32 s36, s36, s46
s_lshr_b32 s37, s2, 4
s_mov_b32 s47, 0x3f803f80
s_mul_i32 s50, s37, 216
s_sub_u32 s46, s37, 11
s_lshl_b32 s46, s46, 8
s_add_u32 s46, s46, 2304
s_cmp_ge_u32 s37, 11
s_cselect_b32 s50, s46, s50
s_cselect_b32 s48, 1, 0
s_lshr_b32 s67, s38, 2
s_and_b32 s38, s38, 3
s_waitcnt lgkmcnt(0)
""")
    srd(k, XA, 4, S * D * 2)
    srd(k, WA, 6, D * 3 * D * 2)
    srd(k, WSR, 12, WS_SIZE)
    e(f"""s_cmp_eq_u32 s67, 1
s_cbranch_scc1 k1_prod0""")
    XOE, XOO, WOFF = 4, 5, 6
    WOT, WOH = 16, 8
    DBG = 56
    SCR = 32768
    e(f"""s_load_dwordx2 s[8:9], s[0:1], 16
s_load_dwordx2 s[10:11], s[0:1], 32
s_load_dwordx2 s[14:15], s[0:1], 72
v_lshrrev_b32 v{T}, 3, v{LANE}
v_lshrrev_b32 v{T+1}, 4, v{LANE}
v_and_b32 v{T+2}, 7, v{LANE}
v_xor_b32 v{T+2}, v{T+2}, v{T+1}
v_mul_u32_u24 v{T}, 1152, v{T}
v_lshl_add_u32 v{XOE}, v{T+2}, 4, v{T}
v_xor_b32 v{XOO}, 64, v{XOE}
v_and_b32 v{T+3}, 15, v{LANE}
v_lshlrev_b32 v{T+4}, 2, v{T+1}
v_xor_b32 v{T+3}, v{T+3}, v{T+4}
v_mul_u32_u24 v{T+4}, 3456, v{T+1}
v_lshl_add_u32 v{WOFF}, v{T+3}, 4, v{T+4}
s_lshl_b32 s46, s48, 1
s_add_u32 s46, s46, 14
v_cmp_gt_u32 s[60:61], s46, v{T+3}
v_mov_b32 v{T+4}, {HUGE}
s_lshl_b32 s41, s36, 7
s_lshl_b32 s46, s38, 5
v_cndmask_b32 v{WOFF}, v{T+4}, v{WOFF}, s[60:61]
s_add_u32 s41, s41, s46
s_mul_i32 s41, s41, 1152
s_mul_i32 s42, s38, {16*3456}
s_add_u32 s42, s42, s50
s_lshl_b32 s43, s38, 12
""")

    def dma_stage():
        for j in range(4):
            e(f"""s_add_u32 m0, s43, {j*1024}
s_add_u32 s46, s41, {j*9216}
buffer_load_dwordx4 v{XOE if j % 2 == 0 else XOO}, s[{XA}:{XA+3}], s46 offen lds
s_add_u32 m0, s43, {16384+j*1024}
s_add_u32 s46, s42, {j*13824}
buffer_load_dwordx4 v{WOFF}, s[{WA}:{WA+3}], s46 offen lds""")
        e(f"""s_add_u32 s41, s41, 128
s_add_u32 s42, s42, {64*3456}
s_add_u32 s43, s43, 32768
s_and_b32 s43, s43, 0x1ffff""")

    e("s_mov_b32 s44, 0")
    POLL = 12
    LL, LL2, LPROD, LCONT, LSIG = "k1_lloop", "k1_lskip", "k1_prod", "k1_cont", "k1_sig"
    k.label(LL)
    e(f"""s_cmp_lt_u32 s44, 3
s_cbranch_scc1 {LL2}
s_waitcnt vmcnt(16)
s_barrier""")
    k.label(LL2)
    dma_stage()
    e(f"""s_add_u32 s44, s44, 1
s_cmp_eq_u32 s44, 1
s_cbranch_scc1 k1_wo
s_cmp_eq_u32 s44, 5
s_cbranch_scc1 {LSIG}
s_cmp_eq_u32 s44, 8
s_cbranch_scc0 {LCONT}
buffer_load_dword v{POLL+2}, v{POLL}, s[{DBG}:{DBG+3}], 0 offen sc1
""")
    k.label(LCONT)
    e(f"""s_cmp_lt_u32 s44, 9
s_cbranch_scc1 {LL}
s_waitcnt vmcnt(8)
s_barrier
s_mov_b32 s62, 0
s_branch k1_pchk
""")
    k.label("k1_poll")
    e(f"""s_sleep 8
buffer_load_dword v{POLL+2}, v{POLL}, s[{DBG}:{DBG+3}], 0 offen sc1
s_waitcnt vmcnt(0)""")
    k.label("k1_pchk")
    e(f"""v_readfirstlane_b32 s63, v{POLL+2}
s_add_u32 s62, s62, 1
s_cmp_ge_u32 s63, {17 if os.environ.get("K1FB") else 16}
s_cbranch_scc1 k1_polled
s_cmp_lt_u32 s62, {int(os.environ.get("K1POLL", "64"))}
s_cbranch_scc1 k1_poll
s_mov_b32 s64, 0
s_mov_b32 s73, 1
s_branch {LPROD}""")
    k.label("k1_polled")
    e(f"""s_waitcnt vmcnt(8)
s_barrier
s_lshl_b32 s46, s36, 10
s_lshl_b32 s62, s38, 8
s_add_u32 s46, s46, s62
s_add_u32 s46, s46, {WS_XST}
v_lshlrev_b32 v{T}, 3, v{M}
buffer_load_dwordx2 v[32:33], v{T}, s[{WSR}:{WSR+3}], s46 offen sc1
v_add_u32 v{T}, s62, v{T}
s_waitcnt vmcnt(1)
s_barrier
s_waitcnt vmcnt(0)
ds_write_b64 v{T}, v[32:33] offset:{SCR}
s_waitcnt lgkmcnt(0)
s_barrier
s_branch k1_side
""")
    k.label("k1_wo")
    e(f"""s_lshl_b32 s46, s36, 2
v_mov_b32 v{POLL}, s46
s_waitcnt lgkmcnt(0)""")
    srd(k, WOR, 8, D * D * 2)
    srd(k, WRR, 10, D * 2)
    srd(k, DBG, 14, 256)
    e(f"""s_lshl_b32 s51, s38, 8
s_add_u32 s51, s51, s2
s_mul_i32 s68, s51, 1821
s_lshr_b32 s68, s68, 16
s_mul_i32 s69, s68, 36
s_sub_u32 s69, s51, s69
s_mul_i32 s70, s69, {18*1152}
s_sub_u32 s46, s69, 32
s_mul_i32 s46, s46, {144*1152}
s_add_u32 s46, s46, {16*1152}
s_cmp_ge_u32 s69, 32
s_cselect_b32 s70, s46, s70
s_cselect_b32 s71, {72*1152}, {8*1152}
s_cselect_b32 s72, {18*1152}, {2*1152}
s_cmp_ge_u32 s51, 648
s_cselect_b32 s70, {HUGE}, s70
v_and_b32 v{T}, 0x13, v{M}
v_and_b32 v{T+1}, 4, v{M}
v_lshl_or_b32 v{T}, v{T+1}, 1, v{T}
v_and_b32 v{T+1}, 8, v{M}
v_lshrrev_b32 v{T+1}, 1, v{T+1}
v_or_b32 v{T}, v{T}, v{T+1}
s_lshl_b32 s68, s68, 5
v_add_u32 v{T}, s68, v{T}
v_lshlrev_b32 v{T}, 1, v{T}
v_mul_lo_u32 v{T+1}, v{HALF}, s71
v_add_u32 v{T}, v{T}, v{T+1}
""")
    for jj in range(4):
        e(f"""buffer_load_ushort v{WOT+jj}, v{T}, s[{WOR}:{WOR+3}], s70 offen
buffer_load_ushort v{WOH+jj}, v{T}, s[{WOR}:{WOR+3}], s70 offen offset:1152""")
        if jj < 3:
            e("s_add_u32 s70, s70, s72")
    e(f"s_branch {LCONT}")
    k.label(LSIG)
    e(f"""s_cmp_lg_u32 s38, 0
s_cbranch_scc1 {LCONT}
v_mov_b32 v{T+1}, 1
s_mov_b64 exec, 1
buffer_atomic_add v{T+1}, v{POLL}, s[{DBG}:{DBG+3}], 0 offen
s_mov_b64 exec, -1
s_branch {LCONT}""")
    k.label("k1_prod0")
    e(f"""s_mov_b32 s64, s37
s_mov_b32 s73, 0""")
    k.label(LPROD)
    DX, SX, SQ, UU = 64, 40, 42, 96
    PX, PX3 = 32, 33
    e(f"""v_mul_u32_u24 v{PX}, 1152, v{HALF}
v_lshl_add_u32 v{PX}, v{M}, 4, v{PX}
v_cmp_gt_u32 s[60:61], 8, v{M}
v_mov_b32 v{T+4}, {HUGE}
s_nop 0
v_cndmask_b32 v{PX3}, v{T+4}, v{PX}, s[60:61]
""")
    k.label("k1_ploop")
    e(f"""s_lshl_b32 s46, s36, 7
s_lshl_b32 s68, s64, 3
s_add_u32 s46, s46, s68
s_lshl_b32 s68, s38, 1
s_add_u32 s68, s46, s68
s_mul_i32 s46, s68, 1152
buffer_load_dwordx4 {vr(DX,4)}, v{PX}, s[{XA}:{XA+3}], s46 offen
buffer_load_dwordx4 {vr(DX+4,4)}, v{PX}, s[{XA}:{XA+3}], s46 offen offset:512
buffer_load_dwordx4 {vr(DX+8,4)}, v{PX3}, s[{XA}:{XA+3}], s46 offen offset:1024
""")
    for r in range(40, 44):
        e(f"v_mov_b32 v{r}, 0")
    for i in range(12):
        u = UU + 2 * (i % 4)
        if i % 4 == 0:
            e(f"s_waitcnt vmcnt({2 - i//4})")
        e(f"""v_lshlrev_b32 v{u}, 16, v{DX+i}
v_and_b32 v{u+1}, 0xffff0000, v{DX+i}
v_add_f32 v{SX}, v{SX}, v{u}
v_add_f32 v{SX+1}, v{SX+1}, v{u+1}
v_fmac_f32 v{SQ}, v{u}, v{u}
v_fmac_f32 v{SQ+1}, v{u+1}, v{u+1}""")
    e(f"""v_add_f32 v{SX}, v{SX}, v{SX+1}
v_add_f32 v{SQ}, v{SQ}, v{SQ+1}
s_lshl_b32 s46, s68, 3
s_add_u32 s46, s46, {WS_XST}""")
    for sh, rm in [("row_shr:1", "0xf"), ("row_shr:2", "0xf"), ("row_shr:4", "0xf"), ("row_shr:8", "0xf"), ("row_bcast:15", "0xa")]:
        e(f"""v_add_f32_dpp v{SX}, v{SX}, v{SX} {sh} row_mask:{rm} bank_mask:0xf
v_add_f32_dpp v{SQ}, v{SQ}, v{SQ} {sh} row_mask:{rm} bank_mask:0xf
s_nop 0""")
    A_T, B_T = 22, 23
    e(f"""v_mul_f32 v{T+2}, {f32hex(1.0/576)}, v{SX}
v_mul_f32 v{T+3}, {f32hex(1.0/576)}, v{SQ}
v_fma_f32 v{T+3}, -v{T+2}, v{T+2}, v{T+3}
v_max_f32 v{T+3}, 0, v{T+3}
v_cvt_pk_bf16_f32 v{T+2}, v{T+2}, v{T+2}
v_cvt_pk_bf16_f32 v{T+3}, v{T+3}, v{T+3}
v_and_b32 v{T+2}, 0xffff0000, v{T+2}
v_and_b32 v{T+3}, 0xffff0000, v{T+3}
v_add_f32 v{T+3}, {f32hex(1e-5)}, v{T+3}
v_cvt_pk_bf16_f32 v{T+3}, v{T+3}, v{T+3}
v_and_b32 v{T+3}, 0xffff0000, v{T+3}
v_sqrt_f32 v{T+3}, v{T+3}
v_sub_f32 v{B_T}, 0, v{T+2}
v_cvt_pk_bf16_f32 v{T+3}, v{T+3}, v{T+3}
v_and_b32 v{T+3}, 0xffff0000, v{T+3}
v_rcp_f32 v{A_T}, v{T+3}
v_lshlrev_b32 v{T+2}, 3, v{HALF}
s_mov_b32 exec_lo, 0x80000000
s_mov_b32 exec_hi, 0x80000000
buffer_store_dwordx2 v[{A_T}:{B_T}], v{T+2}, s[{WSR}:{WSR+3}], s46 offen sc1
s_mov_b64 exec, -1
s_cmp_eq_u32 s73, 0
s_cbranch_scc1 k1_compute
s_add_u32 s64, s64, 1
s_waitcnt vmcnt(0)
s_cmp_lt_u32 s64, 16
s_cbranch_scc1 k1_ploop
s_branch k1_polled
""")
    k.label("k1_side")
    e(f"""s_lshl_b32 s46, s51, 10
s_add_u32 s46, s46, {WS_WOP}
s_cmp_ge_u32 s51, 648
s_cselect_b32 s46, {HUGE}, s46
v_lshlrev_b32 v{T}, 4, v{LANE}
v_lshl_or_b32 v{WOT}, v{WOH}, 16, v{WOT}
v_lshl_or_b32 v{WOT+1}, v{WOH+1}, 16, v{WOT+1}
v_lshl_or_b32 v{WOT+2}, v{WOH+2}, 16, v{WOT+2}
v_lshl_or_b32 v{WOT+3}, v{WOH+3}, 16, v{WOT+3}
buffer_store_dwordx4 {vr(WOT,4)}, v{T}, s[{WSR}:{WSR+3}], s46 offen
s_cmp_lt_u32 s2, 240
s_cbranch_scc1 {Lend}
s_add_u32 s{ZR}, s12, {WS_ST}
s_addc_u32 s{ZR+1}, s13, 0
s_and_b32 s{ZR+1}, s{ZR+1}, 0xffff
s_mov_b32 s{ZR+2}, {ZERO_BYTES}
s_mov_b32 s{ZR+3}, 0x20000
s_sub_u32 s46, s2, 240
s_lshl_b32 s46, s46, 12
v_lshlrev_b32 v{T+1}, 4, v0
v_mov_b32 v32, 0
v_mov_b32 v33, 0
v_mov_b32 v34, 0
v_mov_b32 v35, 0
buffer_store_dwordx4 v[32:35], v{T+1}, s[{ZR}:{ZR+3}], s46 offen
s_cmp_lg_u32 s51, 1023
s_cbranch_scc1 {Lend}
v_lshlrev_b32 v{T+1}, 2, v{LANE}
""")
    for i in range(5):
        e(f"buffer_load_dword v{36+i}, v{T+1}, s[{WRR}:{WRR+3}], 0 offen offset:{256*i}")
    e(f"v_mov_b32 v{T+2}, 0\ns_waitcnt vmcnt(0)")
    for i in range(5):
        e(f"v_dot2_f32_bf16 v{T+2}, v{36+i}, s47, v{T+2}")
    e("s_nop 3")
    for sh in ["row_shr:1", "row_shr:2", "row_shr:4", "row_shr:8"]:
        e(f"""v_mov_b32 v{T+3}, 0
s_nop 1
v_mov_b32_dpp v{T+3}, v{T+2} {sh} row_mask:0xf bank_mask:0xf
v_add_f32 v{T+2}, v{T+2}, v{T+3}""")
    for sh, rm in [("row_bcast:15", "0xa"), ("row_bcast:31", "0xc")]:
        e(f"""v_mov_b32 v{T+3}, 0
s_nop 1
v_mov_b32_dpp v{T+3}, v{T+2} {sh} row_mask:{rm} bank_mask:0xf
v_add_f32 v{T+2}, v{T+2}, v{T+3}""")
    e(f"""v_mov_b32 v{T+1}, {WS_WSUM}
s_mov_b32 exec_lo, 0
s_mov_b32 exec_hi, 0x80000000
buffer_store_dword v{T+2}, v{T+1}, s[{WSR}:{WSR+3}], 0 offen
s_endpgm
""")
    k.label("k1_compute")
    XRD0, XRD1, WRD0, WRD1 = 7, 8, 9, 10
    XA0, XA1, WA0, WA1 = 11, 12, 13, 14
    XSUM, XSQ, WCS = 16, 18, 20
    XAK = [[XA0, 4, 5, 6], [XA1, 15, 16, 17]]
    U = 220
    bufA = dict(X=[32, 36], W=[40, 44])
    bufB = dict(X=[48, 52], W=[56, 60])
    acc = lambda t, f: 64 + 32 * t + 16 * f
    e(f"""s_lshr_b32 s39, s38, 1
s_and_b32 s40, s38, 1
s_mov_b32 s49, 0xffff0000
v_bfe_u32 v{T}, v{M}, 1, 3
v_xor_b32 v{T}, v{T}, v{HALF}
v_lshlrev_b32 v{T+1}, 7, v{M}
v_lshl_add_u32 v{T+1}, v{T}, 4, v{T+1}
s_lshl_b32 s46, s38, 12
v_add_u32 v{XRD0}, s46, v{T+1}
v_xor_b32 v{XRD1}, 4096, v{XRD0}
""")
    R_, CQ, A_, KROW, QUAD, PERM = T, T+1, T+2, T+3, T+4, T+5
    e(f"""v_bfe_u32 v{R_}, v{LANE}, 2, 2
v_and_b32 v{CQ}, 3, v{LANE}
v_bfe_u32 v{A_}, v{LANE}, 4, 1
v_lshl_add_u32 v{KROW}, v{HALF}, 3, v{R_}
v_lshl_add_u32 v{QUAD}, v{A_}, 2, v{CQ}
v_and_b32 v{PERM}, 1, v{CQ}
v_lshlrev_b32 v{PERM}, 1, v{PERM}
v_lshrrev_b32 v{T+6}, 1, v{CQ}
v_or_b32 v{PERM}, v{PERM}, v{T+6}
v_mad_u32_u24 v{PERM}, v{A_}, 5, v{PERM}
s_lshl_b32 s61, s40, 1
s_add_u32 s62, s61, 1
s_add_u32 s61, s61, s39
s_sub_u32 s62, s62, s39
""")
    for f, (sft, dst) in enumerate([(61, WRD0), (62, WRD1)]):
        UB = T + 6
        e(f"""s_mul_i32 s46, s{sft}, 72
v_lshl_add_u32 v{UB}, v{PERM}, 3, s46
v_min_u32 v{T+7}, 2, v{QUAD}
v_mul_u32_u24 v{T+7}, 72, v{T+7}
v_add_u32 v{T+7}, 32, v{T+7}
s_cmp_eq_u32 s{sft}, 3
s_cselect_b64 vcc, -1, 0
s_lshl_b32 s46, s{sft}, 6
v_lshl_add_u32 v{T+8}, v{QUAD}, 3, s46
v_cndmask_b32 v{UB}, v{UB}, v{T+7}, vcc
s_cmp_eq_u32 s48, 1
s_cselect_b64 vcc, -1, 0
s_nop 1
v_cndmask_b32 v{UB}, v{UB}, v{T+8}, vcc
v_lshrrev_b32 v{T+7}, 4, v{UB}
v_lshlrev_b32 v{T+8}, 2, v{R_}
v_xor_b32 v{T+7}, v{T+7}, v{T+8}
v_and_b32 v{UB}, 15, v{UB}
v_lshl_add_u32 v{UB}, v{T+7}, 4, v{UB}
v_lshl_add_u32 v{UB}, v{KROW}, 8, v{UB}
v_add_u32 v{dst}, 16384, v{UB}
""")
    for r in list(range(64, 144)) + list(range(48, 64)):
        e(f"v_mov_b32 v{r}, 0")
    for r in range(28, 32):
        e(f"v_mov_b32 v{r}, s47")
    e("s_mov_b32 s44, 0\ns_mov_b32 s45, 0")

    def reads(ks, b):
        if os.environ.get("NOREAD"):
            return
        e(f"""ds_read_b128 {vr(b['X'][0],4)}, v{XAK[0][ks]}
ds_read_b128 {vr(b['X'][1],4)}, v{XAK[1][ks]}
ds_read_b64_tr_b16 {vr(b['W'][0],2)}, v{WA0} offset:{16*ks*256}
ds_read_b64_tr_b16 {vr(b['W'][0]+2,2)}, v{WA0} offset:{(16*ks+4)*256}
ds_read_b64_tr_b16 {vr(b['W'][1],2)}, v{WA1} offset:{16*ks*256}
ds_read_b64_tr_b16 {vr(b['W'][1]+2,2)}, v{WA1} offset:{(16*ks+4)*256}""")

    def mfmas(b, isV):
        i = 0
        for t in range(2):
            for f in range(2):
                a = acc(t, f)
                X, W = vr(b['X'][t], 4), vr(b['W'][f], 4)
                if os.environ.get("NOMFMA"):
                    pass
                elif isV:
                    e(f"v_mfma_f32_32x32x16_bf16 {vr(a,16)}, {X}, {W}, {vr(a,16)}")
                else:
                    e(f"v_mfma_f32_32x32x16_bf16 {vr(a,16)}, {W}, {X}, {vr(a,16)}")
        mfma_cs(b, isV)

    def mfma_cs(b, isV):
        W = vr(b['W'][0], 4)
        if isV:
            e(f"v_mfma_f32_32x32x16_bf16 v[128:143], v[28:31], {W}, v[128:143]")
        else:
            e(f"v_mfma_f32_32x32x16_bf16 v[128:143], {W}, v[28:31], v[128:143]")

    def mainloop(isV):
        L = k.newlabel("loop")
        k.lines.append(".p2align 3")
        k.label(L)
        e(f"""s_barrier
v_add_u32 v{XA0}, s45, v{XRD0}
v_add_u32 v{XA1}, s45, v{XRD1}
v_add_u32 v{WA0}, s45, v{WRD0}
v_add_u32 v{WA1}, s45, v{WRD1}""")
        if PROF:
            e("s_cmp_lg_u32 s44, 0\ns_cbranch_scc1 " + L + "x")
            stamp(1)
            k.label(L + "x")
        reads(0, bufA)
        for t in range(2):
            for ks in range(1, 4):
                e(f"v_xor_b32 v{XAK[t][ks]}, {ks<<5}, v{XAK[t][0]}")
        mfmas(bufB, isV)
        reads(1, bufB)
        e("s_waitcnt lgkmcnt(6)")
        mfmas(bufA, isV)
        reads(2, bufA)
        e("s_waitcnt lgkmcnt(6)")
        mfmas(bufB, isV)
        reads(3, bufB)
        e("s_waitcnt lgkmcnt(6)")
        mfmas(bufA, isV)
        e(f"""s_add_u32 s45, s45, 32768
s_and_b32 s45, s45, 0x1ffff
s_add_u32 s44, s44, 1
s_cmp_lt_u32 s44, 9
s_waitcnt vmcnt(0) lgkmcnt(0)
s_cbranch_scc1 {L}""")
        mfmas(bufB, isV)
        stamp(2)

    SCR = 32768
    def stats_final(isV):
        if isV:
            e(f"""s_lshl_b32 s46, s61, 7
v_lshl_add_u32 v{T+5}, v{M}, 2, s46
s_nop 7
s_nop 3
v_mov_b32 v21, v128
ds_write_b32 v{T+5}, v128 offset:{SCR+1024}""")
        else:
            e(f"""s_lshl_b32 s46, s61, 7
v_lshl_add_u32 v{T+5}, v{HALF}, 6, s46
s_nop 7
s_nop 3
s_mov_b32 exec_lo, 1
s_mov_b32 exec_hi, 1
ds_write_b128 v{T+5}, v[128:131] offset:{SCR+1024}
ds_write_b128 v{T+5}, v[132:135] offset:{SCR+1024+16}
ds_write_b128 v{T+5}, v[136:139] offset:{SCR+1024+32}
ds_write_b128 v{T+5}, v[140:143] offset:{SCR+1024+48}
s_mov_b64 exec, -1""")
        e("s_waitcnt lgkmcnt(0)\ns_barrier")

    LV = "k1_vpath"
    LDONE = "k1_done"
    e(f"s_cmp_eq_u32 s48, 1\ns_cbranch_scc1 {LV}")
    mainloop(False)
    stats_final(False)
    AB = [22, 24]
    CS = [128, 144]
    e(f"""s_lshl_b32 s46, s38, 8
v_lshl_add_u32 v{T+4}, v{M}, 3, s46
v_xor_b32 v{T+5}, 256, v{T+4}
ds_read_b64 v[22:23], v{T+4} offset:{SCR}
ds_read_b64 v[24:25], v{T+5} offset:{SCR}
""")
    e(f"""s_lshl_b32 s46, s62, 7
v_lshl_add_u32 v{T+4}, v{HALF}, 6, s46
ds_read_b128 v[144:147], v{T+4} offset:{SCR+1024}
ds_read_b128 v[148:151], v{T+4} offset:{SCR+1024+16}
ds_read_b128 v[152:155], v{T+4} offset:{SCR+1024+32}
ds_read_b128 v[156:159], v{T+4} offset:{SCR+1024+48}""")
    e(f"v_lshlrev_b32 v{T+7}, 4, v{LANE}")
    L16 = T + 7
    e(f"""s_lshl_b32 s63, s36, 2
s_xor_b32 s64, s38, 1
s_add_u32 s64, s64, s63
s_add_u32 s63, s63, s38
s_mul_i32 s65, s37, 3
s_waitcnt lgkmcnt(0)
""")
    SC = 32
    for f, sft in enumerate([61, 62]):
        Lrem, Lnext = k.newlabel("rem"), k.newlabel("next")
        e(f"""s_cmp_eq_u32 s{sft}, 3
s_cbranch_scc1 {Lrem}
s_add_u32 s66, s65, s{sft}
s_cmp_ge_u32 s66, 32
s_cbranch_scc1 {Lnext}
s_and_b32 s67, s66, 15
s_lshl_b32 s67, s67, 1
s_cmp_lt_u32 s66, 16
s_cselect_b32 s68, {f32hex(QSCALE)}, 1.0
s_cselect_b32 s69, 65536, {KVH}
s_cselect_b32 s72, {HUGE}, {WS_KNM}
""")
        for t, stt in enumerate([63, 64]):
            a = acc(t, f)
            e(f"""s_lshr_b32 s70, s{stt}, 1
s_mul_i32 s70, s70, {BLK}
s_and_b32 s71, s{stt}, 1
s_lshl_b32 s71, s71, 10
s_add_u32 s70, s70, s71
s_lshl_b32 s71, s{stt}, 10
s_add_u32 s71, s71, {WS_QM}
s_cmp_lt_u32 s66, 16
s_cselect_b32 s70, s71, s70
s_mul_i32 s71, s67, s69
s_add_u32 s70, s70, s71
s_add_u32 s71, s70, s69
v_mul_f32 v{SC}, s68, v{AB[t]}
""")
            for i in range(8):
                e(f"v_pk_fma_f32 {vr(a+2*i,2)}, {vr(CS[f]+2*i,2)}, v[{AB[t]}:{AB[t]+1}], {vr(a+2*i,2)} op_sel:[0,1,0] op_sel_hi:[1,1,1]")
            for i in range(8):
                e(f"v_pk_mul_f32 {vr(a+2*i,2)}, {vr(a+2*i,2)}, v[{SC}:{SC+1}] op_sel_hi:[1,0]")
            P = 40 + 8 * t
            for i in range(8):
                e(f"v_cvt_pk_bf16_f32 v{P+i}, v{a+2*i}, v{a+2*i+1}")
            e(f"""buffer_store_dwordx4 {vr(P,4)}, v{L16}, s[{WSR}:{WSR+3}], s70 offen
buffer_store_dwordx4 {vr(P+4,4)}, v{L16}, s[{WSR}:{WSR+3}], s71 offen""")
            N0, N1 = 34, 36
            for hb, N in enumerate([N0, N1]):
                b = a + 8 * hb
                e(f"v_pk_mul_f32 v[{N}:{N+1}], {vr(b,2)}, {vr(b,2)}")
                for i in range(1, 4):
                    e(f"v_pk_fma_f32 v[{N}:{N+1}], {vr(b+2*i,2)}, {vr(b+2*i,2)}, v[{N}:{N+1}]")
                e(f"v_add_f32 v{N}, v{N}, v{N+1}")
            e(f"""s_lshl_b32 s70, s67, 8
s_lshl_b32 s71, s{stt}, 2
v_permlane32_swap_b32 v{N0}, v{N1}
v_add_f32 v{N0}, v{N0}, v{N1}
s_add_u32 s70, s70, s71
s_add_u32 s70, s70, s72
v_max_f32_dpp v{N0}, v{N0}, v{N0} row_shr:1 row_mask:0xf bank_mask:0xf
v_lshlrev_b32 v{N1}, 8, v{HALF}
s_nop 0
v_max_f32_dpp v{N0}, v{N0}, v{N0} row_shr:2 row_mask:0xf bank_mask:0xf
s_nop 1
v_max_f32_dpp v{N0}, v{N0}, v{N0} row_shr:4 row_mask:0xf bank_mask:0xf
s_nop 1
v_max_f32_dpp v{N0}, v{N0}, v{N0} row_shr:8 row_mask:0xf bank_mask:0xf
s_nop 1
v_max_f32_dpp v{N0}, v{N0}, v{N0} row_bcast:15 row_mask:0xa bank_mask:0xf
s_mov_b32 exec_lo, 0x80000000
s_mov_b32 exec_hi, 0x80000000
buffer_store_dword v{N0}, v{N1}, s[{WSR}:{WSR+3}], s70 offen
s_mov_b64 exec, -1
""")
        e(f"s_branch {Lnext}")
        k.label(Lrem)
        for t, stt in enumerate([63, 64]):
            a = acc(t, f)
            e(f"""s_lshr_b32 s70, s{stt}, 1
s_mul_i32 s70, s70, {BLK}
s_and_b32 s71, s{stt}, 1
s_lshl_b32 s71, s71, 7
s_add_u32 s70, s70, s71
s_add_u32 s70, s70, 4480
s_lshl_b32 s71, s{stt}, 7
s_add_u32 s71, s71, {WS_QR}
s_lshl_b32 s73, s{stt}, 2
s_add_u32 s73, s73, {WS_KNR}
""")
            for j in range(3):
                b = 76 + 4 * j
                e(f"""s_add_u32 s66, s65, {j}
s_and_b32 s67, s66, 15
s_lshl_b32 s67, s67, 1
s_lshl_b32 s74, s67, 8
s_add_u32 s74, s74, s73
s_cmp_lt_u32 s66, 16
s_cselect_b32 s{b+1}, 8192, {KVH}
s_cselect_b32 s{b+2}, {f32hex(QSCALE)}, 1.0
s_cselect_b32 s{b}, s71, s70
s_cselect_b32 s{b+3}, {HUGE}, s74
s_mul_i32 s67, s67, s{b+1}
s_add_u32 s{b}, s{b}, s67
s_cmp_ge_u32 s66, 32
s_cselect_b32 s{b}, {HUGE}, s{b}
s_cselect_b32 s{b+3}, {HUGE}, s{b+3}
""")
            V = 32
            e(f"""v_cmp_eq_u32 vcc, 1, v{HALF}
v_mov_b32 v{V}, s76
v_mov_b32 v{V+1}, s77
v_mov_b32 v{V+2}, s78
v_mov_b32 v{V+3}, s79
v_mov_b32 v{V+4}, s80
v_mov_b32 v{V+5}, s81
v_mov_b32 v{V+6}, s82
v_mov_b32 v{V+7}, s83
v_cndmask_b32 v{V}, v{V}, v{V+4}, vcc
v_cndmask_b32 v{V+1}, v{V+1}, v{V+5}, vcc
v_cndmask_b32 v{V+2}, v{V+2}, v{V+6}, vcc
v_cndmask_b32 v{V+3}, v{V+3}, v{V+7}, vcc
v_mov_b32 v{V+4}, s84
v_mov_b32 v{V+7}, s87
v_mov_b32 v{V+5}, {HUGE}
v_cndmask_b32 v{V+4}, v{V+4}, v{V+5}, vcc
v_cndmask_b32 v{V+7}, v{V+7}, v{V+5}, vcc
v_lshl_add_u32 v{V}, v{M}, 2, v{V}
v_lshl_add_u32 v{V+4}, v{M}, 2, v{V+4}
v_add_u32 v{V+1}, v{V}, v{V+1}
v_add_u32 v{V+5}, s85, v{V+4}
v_mul_f32 v{V+2}, v{V+2}, v{AB[t]}
v_mul_f32 v{V+6}, s86, v{AB[t]}
""")
            for i in range(8):
                e(f"v_fma_f32 v{a+i}, v{CS[f]+i}, v{AB[t]+1}, v{a+i}")
            for i in range(8):
                e(f"v_mul_f32 v{a+i}, v{a+i}, v{V+2 if i < 4 else V+6}")
            P = 40
            for i in range(4):
                e(f"""v_cvt_pk_bf16_f32 v{P+i}, v{a+2*i}, v{a+2*i+1}
v_mul_f32 v{P+4+i}, v{a+2*i}, v{a+2*i}
v_fma_f32 v{P+4+i}, v{a+2*i+1}, v{a+2*i+1}, v{P+4+i}""")
            for i, ad in enumerate([V, V+1, V+4, V+5]):
                e(f"buffer_store_dword v{P+i}, v{ad}, s[{WSR}:{WSR+3}], 0 offen")
            for sh in ["row_shr:1", "row_shr:2", "row_shr:4", "row_shr:8"]:
                for i in range(4):
                    e(f"v_max_f32_dpp v{P+4+i}, v{P+4+i}, v{P+4+i} {sh} row_mask:0xf bank_mask:0xf")
            for i in range(4):
                e(f"v_max_f32_dpp v{P+4+i}, v{P+4+i}, v{P+4+i} row_bcast:15 row_mask:0xa bank_mask:0xf")
            e(f"""s_mov_b32 exec_lo, 0x80000000
s_mov_b32 exec_hi, 0x80000000
buffer_store_dword v{P+4}, v{V+3}, s[{WSR}:{WSR+3}], 0 offen
buffer_store_dword v{P+5}, v{V+3}, s[{WSR}:{WSR+3}], 0 offen offset:256
buffer_store_dword v{P+6}, v{V+7}, s[{WSR}:{WSR+3}], 0 offen
buffer_store_dword v{P+7}, v{V+7}, s[{WSR}:{WSR+3}], 0 offen offset:256
s_mov_b64 exec, -1
""")
        k.label(Lnext)
    e(f"s_branch {LDONE}")
    k.label(LV)
    mainloop(True)
    stats_final(True)
    RW = 128
    CSL = [21, 26]
    ADR = [(18, 19), (20, 27)]
    e(f"""s_lshl_b32 s46, s62, 7
v_lshl_add_u32 v{T+5}, v{M}, 2, s46
ds_read_b32 v{CSL[1]}, v{T+5} offset:{SCR+1024}
s_lshl_b32 s46, s38, 8
v_lshl_add_u32 v{T+8}, v{HALF}, 5, s46
v_xor_b32 v{T+9}, 256, v{T+8}
s_lshl_b32 s63, s36, 2
s_xor_b32 s64, s38, 1
s_add_u32 s64, s64, s63
s_add_u32 s63, s63, s38
s_sub_u32 s65, s37, 11
s_lshl_b32 s65, s65, 7
v_mov_b32 v32, s47
v_mov_b32 v33, s47
v_mov_b32 v34, s47
v_mov_b32 v35, s47
""")
    def rwread(t):
        for a in range(4):
            e(f"""ds_read_b128 {vr(RW+8*a,4)}, v{T+8+t} offset:{SCR+a*64}
ds_read_b128 {vr(RW+8*a+4,4)}, v{T+8+t} offset:{SCR+a*64+16}""")
    rwread(0)
    SLOTC = 0 | (13 << 5) | (9 << 10) | (4 << 15) | (17 << 20)
    for f, sft in enumerate([61, 62]):
        AD, AO = ADR[f]
        e(f"""s_lshl_b32 s66, s{sft}, 5
s_add_u32 s66, s66, s65
v_add_u32 v{T+2}, s66, v{M}
v_mul_u32_u24 v{T+3}, 3641, v{T+2}
v_lshrrev_b32 v{T+3}, 16, v{T+3}
v_mul_u32_u24 v{T+6}, 18, v{T+3}
v_sub_u32 v{T+2}, v{T+2}, v{T+6}
v_lshrrev_b32 v{T+6}, 2, v{T+2}
v_mul_u32_u24 v{T+6}, 5, v{T+6}
s_mov_b32 s46, {SLOTC}
v_bfe_u32 v{T+6}, s46, v{T+6}, 5
v_and_b32 v{T+7}, 3, v{T+2}
v_add_u32 v{T+6}, v{T+6}, v{T+7}
s_mov_b32 s46, {KVH}
v_mul_lo_u32 v{T+3}, v{T+3}, s46
v_mul_u32_u24 v{T+7}, 304, v{HALF}
v_add_u32 v{T+3}, v{T+3}, v{T+7}
s_cmp_ge_u32 s66, 576
s_cselect_b32 s46, {HUGE}, 0
v_add_u32 v{T+3}, s46, v{T+3}
v_lshl_add_u32 v{AD}, v{T+6}, 4, v{T+3}
v_add_u32 v{AO}, 128, v{T+3}
v_cmp_eq_u32 vcc, 0, v{T+2}
v_mov_b32 v{T+7}, {HUGE}
s_nop 0
v_cndmask_b32 v{AO}, v{T+7}, v{AO}, vcc
""")
    for t, stt in enumerate([63, 64]):
        e(f"""s_lshr_b32 s70, s{stt}, 1
s_mul_i32 s70, s70, {BLK}
s_and_b32 s71, s{stt}, 1
s_mul_i32 s71, s71, 1216
s_add_u32 s70, s70, s71
s_add_u32 s70, s70, 2048
s_waitcnt lgkmcnt(0)
""")
        for f in range(2):
            a = acc(t, f)
            for r in range(16):
                e(f"v_fma_f32 v{a+r}, v{CSL[f]}, v{RW+2*r+1}, v{a+r}")
            for r in range(16):
                e(f"v_mul_f32 v{a+r}, v{a+r}, v{RW+2*r}")
        if t == 0:
            rwread(1)
        for f in range(2):
            a = acc(t, f)
            AD, AO = ADR[f]
            P = 40 + 8 * f
            for i in range(8):
                e(f"v_cvt_pk_bf16_f32 v{P+i}, v{a+2*i}, v{a+2*i+1}")
            e(f"""buffer_store_dwordx4 {vr(P,4)}, v{AD}, s[{WSR}:{WSR+3}], s70 offen
buffer_store_dwordx4 {vr(P+4,4)}, v{AD}, s[{WSR}:{WSR+3}], s70 offen offset:608
buffer_store_dwordx4 v[32:35], v{AO}, s[{WSR}:{WSR+3}], s70 offen
buffer_store_dwordx4 v[32:35], v{AO}, s[{WSR}:{WSR+3}], s70 offen offset:608
""")
    k.label(LDONE)
    if PROF:
        e(f"""s_memtime s[94:95]
s_waitcnt vmcnt(0)
s_memtime s[96:97]
s_waitcnt lgkmcnt(0)
s_sub_u32 s90, s90, s88
s_sub_u32 s92, s92, s88
s_sub_u32 s94, s94, s88
s_sub_u32 s96, s96, s88
v_mov_b32 v140, s90
v_mov_b32 v141, s92
v_mov_b32 v142, s94
v_mov_b32 v143, s96
s_lshl_b32 s46, s2, 2
s_add_u32 s46, s46, s38
s_lshl_b32 s46, s46, 4
s_add_u32 s46, s46, 0xF10000
v_mov_b32 v144, 0
s_mov_b64 exec, 1
buffer_store_dwordx4 v[140:143], v144, s[{WSR}:{WSR+3}], s46 offen
s_mov_b64 exec, -1""")
    k.label(Lend)
    e("s_endpgm")
    return k, 160, 100
```

```python
from asmlib import *
from layout import *
import os
K2_LDS = 152 * 1024
PROF = int(os.environ.get("PROF", "0"))
PRIO = int(os.environ.get("K2PRIO", "1"))
ZROW = int(os.environ.get("K2ZROW", "1"))
BARALL = int(os.environ.get("K2BAR", "0"))

def gen_k2():
    k = K("k2_kernel")
    e = k.e
    def stamp(i):
        if PROF:
            e(f"s_memtime s[{40+2*i}:{41+2*i}]")
    WSR = 8
    LANE, M, HALF, L16 = 1, 2, 3, 4
    AKM, AVT, AKR = 5, 6, 7
    BKM, BVT, BKR = 8, 9, 10
    T = 11
    QM = 16
    QR = 20
    KR = 22
    KM = [24, 28]
    VF = [32, 36, 40, 44]
    P = 48
    O = 64
    SA, SB = 80, 112
    Lend = "k2_end"
    e(f"""s_cmp_ge_u32 s2, 256
s_cbranch_scc1 {Lend}
s_load_dwordx2 s[4:5], s[0:1], 80
{"s_memtime s[40:41]" if PROF else ""}
{"s_memrealtime s[48:49]" if PROF else ""}
v_and_b32 v{LANE}, 63, v0
v_lshrrev_b32 v{T}, 6, v0
v_and_b32 v{M}, 31, v0
v_readfirstlane_b32 s14, v{T}
v_bfe_u32 v{HALF}, v0, 5, 1
v_lshlrev_b32 v{L16}, 4, v{LANE}
s_and_b32 s12, s2, 7
s_lshl_b32 s12, s12, 2
s_bfe_u32 s16, s2, 0x20003
s_add_u32 s12, s12, s16
s_lshr_b32 s13, s2, 5
s_lshl_b32 s15, s13, 3
s_add_u32 s15, s15, s14
s_mul_i32 s16, s12, {KVH}
s_lshl_b32 s17, s12, 6
s_add_u32 s17, s17, s15
s_lshl_b32 s18, s17, 10
s_add_u32 s18, s18, {WS_QM}
s_lshl_b32 s19, s17, 7
s_add_u32 s19, s19, {WS_QR}
s_lshl_b32 s20, s12, 8
s_add_u32 s20, s20, {WS_KNM}
v_lshlrev_b32 v{T}, 2, v{M}
v_lshlrev_b32 v{T+1}, 2, v{LANE}
s_lshl_b32 s21, s14, 10
s_add_u32 s22, s16, s21
s_waitcnt lgkmcnt(0)
""")
    srd(k, WSR, 4, WS_SIZE)
    W = f"s[{WSR}:{WSR+3}]"
    def dma():
        return f"""s_mov_b32 m0, s21
s_add_u32 s21, s21, 8192
buffer_load_dwordx4 v{L16}, {W}, s22 offen lds
s_add_u32 s22, s22, 8192"""
    e(dma())
    e(f"""buffer_load_dwordx4 {vr(QM,4)}, v{L16}, {W}, s18 offen
buffer_load_dword v{QR}, v{T}, {W}, s19 offen
buffer_load_dword v{T+2}, v{T+1}, {W}, s20 offen
s_add_u32 s20, s20, {WS_KNR-WS_KNM}
buffer_load_dword v{T+3}, v{T+1}, {W}, s20 offen
""")
    e(dma()); e(dma())
    SLC = 0 | (9 << 5) | (13 << 10) | (4 << 15) | (17 << 20)
    e(f"""v_lshrrev_b32 v{T}, 2, v{M}
v_mul_u32_u24 v{T}, 5, v{T}
s_mov_b32 s23, {SLC}
v_bfe_u32 v{T}, s23, v{T}, 5
v_and_b32 v{T+4}, 3, v{M}
v_add_u32 v{T}, v{T}, v{T+4}
v_cmp_lt_u32 s[28:29], 17, v{M}
v_mov_b32 v{KR+1}, 0x3f803f80
v_mul_u32_u24 v{T+4}, 304, v{HALF}
v_cndmask_b32 v{T}, v{T}, 8, s[28:29]
v_lshl_add_u32 v{BVT}, v{T}, 4, v{T+4}
v_add_u32 v{BVT}, 2048, v{BVT}
""")
    if ZROW:
        e(f"""v_and_b32 v{T+4}, 27, v{M}
v_cmp_lt_u32 s[28:29], 18, v{T+4}
v_cmp_eq_u32 s[30:31], 16, v{T+4}
v_cmp_eq_u32 s[32:33], 17, v{T+4}
v_cmp_lt_u32 s[34:35], 19, v{M}
s_or_b64 s[30:31], s[30:31], s[32:33]
s_and_b64 s[30:31], s[30:31], s[34:35]
s_or_b64 s[28:29], s[28:29], s[30:31]
v_mov_b32 v{T+4}, 0x40000
v_cndmask_b32 v{BVT}, v{BVT}, v{T+4}, s[28:29]
""")
    e(f"""v_mov_b32 v{BKM}, v{L16}
v_add_u32 v{BKR}, 4480, v{T+1}
v_mov_b32 v{T+4}, 0
s_waitcnt vmcnt(2)
v_add_f32 v{T+2}, v{T+2}, v{T+3}
v_dot2_f32_bf16 v{T+4}, v{QM}, v{QM}, v{T+4}
v_dot2_f32_bf16 v{T+4}, v{QM+1}, v{QM+1}, v{T+4}
v_max_f32_dpp v{T+2}, v{T+2}, v{T+2} row_shr:1 row_mask:0xf bank_mask:0xf
v_dot2_f32_bf16 v{T+4}, v{QM+2}, v{QM+2}, v{T+4}
v_dot2_f32_bf16 v{T+4}, v{QM+3}, v{QM+3}, v{T+4}
v_max_f32_dpp v{T+2}, v{T+2}, v{T+2} row_shr:2 row_mask:0xf bank_mask:0xf
s_nop 1
v_max_f32_dpp v{T+2}, v{T+2}, v{T+2} row_shr:4 row_mask:0xf bank_mask:0xf
v_mov_b32 v{T+3}, v{T+4}
s_nop 0
v_max_f32_dpp v{T+2}, v{T+2}, v{T+2} row_shr:8 row_mask:0xf bank_mask:0xf
v_permlane32_swap_b32 v{T+3}, v{T+4}
s_nop 0
v_max_f32_dpp v{T+2}, v{T+2}, v{T+2} row_bcast:15 row_mask:0xa bank_mask:0xf
v_add_f32 v{T+4}, v{T+3}, v{T+4}
v_dot2_f32_bf16 v{T+4}, v{QR}, v{QR}, v{T+4}
v_max_f32_dpp v{T+2}, v{T+2}, v{T+2} row_bcast:31 row_mask:0xc bank_mask:0xf
s_nop 1
v_readlane_b32 s24, v{T+2}, 63
s_nop 1
v_mul_f32 v{T+4}, s24, v{T+4}
v_sqrt_f32 v{T+4}, v{T+4}
s_mov_b32 s26, 0
v_mul_f32 v{T+4}, {f32hex(-1.02)}, v{T+4}
v_cvt_pk_bf16_f32 v{QR+1}, v{T+4}, 0
s_waitcnt vmcnt(0)
s_barrier
s_mov_b32 s27, 0
s_lshr_b32 s36, s14, 2
""")
    if PRIO == 2:
        e("s_cmp_eq_u32 s36, 0\ns_cbranch_scc1 k2_p3\ns_setprio 1")
        k.label("k2_p3")
    LMAIN = "k2_main"
    stamp(1)
    k.label(LMAIN)
    RM = lambda Sn: f"v_mfma_f32_32x32x4_2b_bf16 {vr(Sn,32)}, {vr(KR,2)}, {vr(QR,2)}, 0"
    MM = lambda Sn, t: f"v_mfma_f32_32x32x16_bf16 {vr(Sn+16*t,16)}, {vr(KM[t],4)}, {vr(QM,4)}, {vr(Sn+16*t,16)}"
    PV = lambda i: f"v_mfma_f32_32x32x16_bf16 {vr(O,16)}, {vr(VF[i],4)}, {vr(P+4*i,4)}, {vr(O,16)}"
    rdV = lambda i, blk: f"ds_read_b128 {vr(VF[i],4)}, v{AVT} offset:{blk*BLK+608*i}"
    rdKM = lambda t, blk: f"ds_read_b128 {vr(KM[t],4)}, v{AKM} offset:{blk*BLK+1024*t}"
    rdKR = lambda blk: f"ds_read_b32 v{KR}, v{AKR} offset:{blk*BLK}"
    e(f"""v_mov_b32 v{AKM}, v{BKM}
v_mov_b32 v{AVT}, v{BVT}
v_mov_b32 v{AKR}, v{BKR}
{rdKR(0)}
{rdKM(0,0)}
{rdKM(1,0)}
""")
    for r in list(range(O, O + 16)) + list(range(P + 12, P + 16)) + list(range(VF[3], VF[3] + 4)):
        e(f"v_mov_b32 v{r}, 0")
    e(f"""s_waitcnt lgkmcnt(2)
{RM(SA)}
{rdKR(1)}
{rdV(0,0)}
s_nop 15
s_nop 1
s_waitcnt lgkmcnt(2)
{MM(SA,0)}
{rdKM(0,1)}
{rdV(1,0)}
{MM(SA,1)}
{rdKM(1,1)}
{rdV(2,0)}
s_mov_b32 s25, s26
s_nop 4
""")
    def block(b, Sc, Sn, extra=None):
        E = lambda i: f"v_exp_f32 v{Sc+i}, v{Sc+i}"
        C = lambda i: f"v_cvt_pk_bf16_f32 v{P+i}, v{Sc+2*i}, v{Sc+2*i+1}"
        Wt = "s_waitcnt lgkmcnt(6)"
        seq = [Wt, "NOP", PV(3), rdV(3, b),
               E(0), E(1), E(2), E(3), C(0),
               Wt, RM(Sn), rdKR(b + 2),
               E(4), E(5), C(1), E(6), E(7), C(2), C(3), E(8), E(9),
               Wt, PV(0), rdV(0, b + 1),
               E(10), E(11), C(4), E(12), E(13), C(5), E(14), E(15),
               Wt, MM(Sn, 0), rdKM(0, b + 2),
               C(6), C(7), E(16), E(17), E(18),
               Wt, PV(1), rdV(1, b + 1),
               E(19), C(8), E(20), E(21), C(9),
               Wt, MM(Sn, 1), rdKM(1, b + 2),
               E(22), E(23), C(10), C(11), E(24), E(25),
               Wt, PV(2), rdV(2, b + 1),
               E(26), E(27), C(12), E(28), E(29), C(13), E(30), E(31), C(14), C(15)]
        NO = os.environ.get("K2NO", "")
        for x in seq:
            if ("mfma" in NO and x.startswith("v_mfma")) or ("exp" in NO and x.startswith("v_exp")) or ("lds" in NO and x.startswith("ds_read")) \
               or ("pv" in NO and x.startswith("v_mfma") and f"{vr(O,16)}," in x) or ("rm" in NO and "2b" in x) or ("cvt" in NO and x.startswith("v_cvt")):
                continue
            if x == "NOP":
                e(extra if extra else "s_nop 0")
            else:
                e(x)
    L = "k2_loop"; LB = "k2_body"; LND = "k2_nodma"
    k.lines.append(".p2align 3")
    k.label(L)
    e(f"""s_cmp_eq_u32 s25, 10
s_cbranch_scc1 k2_pf
s_cmp_gt_u32 s25, 9
s_cbranch_scc1 {LB}
s_bitcmp0_b32 s25, 0
s_cbranch_scc1 {LND}
s_waitcnt vmcnt(0)
s_barrier""")
    k.label(LND)
    e(f"""s_cmp_gt_u32 s25, 7
s_cbranch_scc1 {LB}
{dma()}
{dma()}""")
    k.label(LB)
    if PRIO == 1:
        e("s_xor_b32 s36, s36, 1\ns_cmp_eq_u32 s36, 1\ns_cbranch_scc1 k2_p1\ns_setprio 0\ns_branch k2_p2")
        k.label("k2_p1"); e("s_setprio 1"); k.label("k2_p2")
    block(0, SA, SB)
    block(1, SB, SA)
    e(f"""v_add_u32 v{AKM}, {2*BLK}, v{AKM}
v_add_u32 v{AVT}, {2*BLK}, v{AVT}
v_add_u32 v{AKR}, {2*BLK}, v{AKR}
s_add_u32 s25, s25, 1
s_add_u32 s27, s27, 1
s_cmp_lt_u32 s27, 16
s_cbranch_scc1 {L}
s_waitcnt lgkmcnt(0)
{PV(3)}
s_nop 15
""")
    stamp(2)
    LOK = "k2_ok"; LFB = "k2_fbloop"
    MX = T
    e(f"""v_cmp_nle_f32 vcc, {f32hex(2.0**-90)}, v{O+10}
s_cmp_lg_u32 s26, {1 if os.environ.get("K2NO") else 0}
s_cbranch_scc1 {LOK}
s_cbranch_vccz {LOK}
v_mov_b32 v{QR+1}, 0
v_mov_b32 v{MX}, 0xff800000
v_mov_b32 v{AKM}, v{BKM}
v_mov_b32 v{AKR}, v{BKR}
s_mov_b32 s27, 0
""")
    k.label(LFB)
    e(f"""{rdKR(0)}
{rdKM(0,0)}
{rdKM(1,0)}
s_waitcnt lgkmcnt(0)
{RM(SA)}
s_nop 15
s_nop 3
{MM(SA,0)}
{MM(SA,1)}
v_add_u32 v{AKM}, {BLK}, v{AKM}
v_add_u32 v{AKR}, {BLK}, v{AKR}
s_nop 15
""")
    for i in range(16):
        e(f"v_max3_f32 v{MX}, v{SA+2*i}, v{SA+2*i+1}, v{MX}")
    e(f"""s_add_u32 s27, s27, 1
s_cmp_lt_u32 s27, 32
s_cbranch_scc1 {LFB}
v_mov_b32 v{MX+1}, v{MX}
s_nop 1
v_permlane32_swap_b32 v{MX}, v{MX+1}
v_max_f32 v{MX}, v{MX}, v{MX+1}
v_sub_f32 v{MX}, 0, v{MX}
v_cvt_pk_bf16_f32 v{MX+1}, v{MX}, v{MX}
v_and_b32 v{MX+1}, 0xffff0000, v{MX+1}
v_sub_f32 v{MX+2}, v{MX}, v{MX+1}
v_cvt_pk_bf16_f32 v{QR+1}, v{MX+1}, v{MX+2}
s_mov_b32 s26, 11
s_mov_b32 s27, 0
s_branch {LMAIN}
""")
    k.label("k2_pf")
    PF = int(os.environ.get("K2PF", "1"))
    if PF:
        e(f"""s_load_dwordx4 s[28:31], s[0:1], 40
s_load_dwordx2 s[32:33], s[0:1], 56
v_mul_u32_u24 v{T}, 405, v0
v_lshrrev_b32 v{T}, 16, v{T}
v_mul_u32_u24 v{T+1}, 162, v{T}
v_sub_u32 v{T+1}, v0, v{T+1}
v_mul_u32_u24 v{T+2}, 7282, v{T+1}
v_lshrrev_b32 v{T+2}, 16, v{T+2}
v_mul_u32_u24 v{T+3}, 9, v{T+2}
v_sub_u32 v{T+1}, v{T+1}, v{T+3}
s_lshr_b32 s34, s2, 3
s_mul_i32 s34, s34, 18
v_add_u32 v{T+2}, s34, v{T+2}
s_and_b32 s35, s2, 7
s_mul_i32 s34, s35, 1152
s_mul_i32 s35, s35, {576*1152}
v_mul_u32_u24 v{T+3}, 9216, v{T+2}
v_add_u32 v{T+3}, s34, v{T+3}
v_mul_u32_u24 v{T+4}, 1152, v{T+2}
v_add_u32 v{T+4}, s35, v{T+4}
v_lshl_add_u32 v{T+3}, v{T+1}, 7, v{T+3}
v_lshl_add_u32 v{T+4}, v{T+1}, 7, v{T+4}
v_cmp_eq_u32 s[34:35], 0, v{T}
v_cmp_eq_u32 s[36:37], 1, v{T}
v_cmp_eq_u32 s[38:39], 2, v{T}
s_waitcnt lgkmcnt(0)
s_mov_b64 exec, s[34:35]
s_cbranch_execz k2_pf1
global_load_dword v{T+1}, v{T+3}, s[28:29]""")
        k.label("k2_pf1")
        e(f"""s_mov_b64 exec, s[36:37]
s_cbranch_execz k2_pf2
global_load_dword v{T+1}, v{T+3}, s[30:31]""")
        k.label("k2_pf2")
        e(f"""s_mov_b64 exec, s[38:39]
s_cbranch_execz k2_pf3
global_load_dword v{T+1}, v{T+4}, s[32:33]""")
        k.label("k2_pf3")
        e(f"""s_mov_b64 exec, -1
s_cmp_lg_u32 s14, 7
s_cbranch_scc1 k2_pf4
s_getpc_b64 s[28:29]
s_add_u32 s28, s28, k3_kernel-.
s_addc_u32 s29, s29, 0
v_lshlrev_b32 v{T}, 7, v{LANE}
global_load_dword v{T+1}, v{T}, s[28:29]
v_add_u32 v{T}, 8192, v{T}
s_bfm_b64 exec, (k34_end-k3_kernel-8192+127)>>7, 0
global_load_dword v{T+2}, v{T}, s[28:29]
s_mov_b64 exec, -1""")
        k.label("k2_pf4")
        e(f"""s_lshr_b32 s36, s14, 2
s_and_b32 s37, s25, 1
s_xor_b32 s36, s36, s37""")
    e(f"s_branch {LB}")
    k.label(LOK)
    e(f"""v_rcp_f32 v{T}, v{O+10}
s_mul_i32 s18, s15, 36
s_add_u32 s19, s18, s12
s_lshl_b32 s19, s19, 10
s_add_u32 s19, s19, {WS_OP}
s_lshr_b32 s20, s12, 3
s_add_u32 s18, s18, s20
s_add_u32 s18, s18, 32
s_lshl_b32 s18, s18, 10
s_bfe_u32 s20, s12, 0x10002
s_lshl_b32 s20, s20, 9
s_add_u32 s18, s18, s20
s_and_b32 s20, s12, 3
s_lshl_b32 s20, s20, 2
s_add_u32 s18, s18, s20
s_add_u32 s18, s18, {WS_OP}
""")
    for i in range(10):
        e(f"v_mul_f32 v{O+i}, v{O+i}, v{T}")
    for i in range(5):
        e(f"v_cvt_pk_bf16_f32 v{P+i}, v{O+2*i}, v{O+2*i+1}")
    e(f"""buffer_store_dwordx4 {vr(P,4)}, v{L16}, {W}, s19 offen
s_mov_b32 exec_hi, 0
buffer_store_dword v{P+4}, v{L16}, {W}, s18 offen
""")
    if PROF:
        e(f"""s_waitcnt vmcnt(0)
s_memtime s[46:47]
s_memrealtime s[50:51]
s_waitcnt lgkmcnt(0)
s_sub_u32 s42, s42, s40
s_sub_u32 s44, s44, s40
s_sub_u32 s46, s46, s40
s_sub_u32 s50, s50, s48
v_mov_b32 v20, s42
v_mov_b32 v21, s44
v_mov_b32 v22, s46
v_mov_b32 v23, s50
s_lshl_b32 s18, s2, 3
s_add_u32 s18, s18, s14
s_lshl_b32 s18, s18, 4
s_add_u32 s18, s18, 0xF00000
v_mov_b32 v24, 0
s_mov_b32 exec_lo, 1
buffer_store_dwordx4 v[20:23], v24, {W}, s18 offen""")
    k.label(Lend)
    e("s_endpgm")
    return k, 144, 56
```

```python
from asmlib import *
from layout import *
import os
PROF = int(os.environ.get("PROF", "0"))
NG = 256
NP2 = 256
NFFN = 144
L_X2 = 0
L_RED = 1152
L_PART = 1280
L_ACT = 1536
L_FLAG = 1792
L_YP = 4096
L_WG, L_WU = 4096, 40960
K34_LDS = 77824
K34_GRID = NG + NP2

def stamp(k, i):
    if PROF:
        k.e(f"s_memrealtime s[{80+2*i}:{81+2*i}]")
def dump(k, n):
    if PROF:
        k.e("s_waitcnt lgkmcnt(0)")
        k.e("s_mov_b64 exec, 1")
        k.e(f"s_lshl_b32 s78, s2, 7\ns_lshl_b32 s79, s22, 5\ns_add_u32 s78, s78, s79\ns_add_u32 s78, s78, 0xF20000\nv_mov_b32 v254, 0")
        for i in range(n):
            k.e(f"v_mov_b32 v255, s{80+2*i}\nbuffer_store_dword v255, v254, s[8:11], s78 offen offset:{4*i}")

def gen_gemm(k):
    e = k.e
    WSR, XR, WRR = 8, 12, 16
    LANE, M, HALF, L16 = 1, 2, 3, 4
    T = 5
    FR = 32
    ACC = 172
    e(f"""s_setprio 2
s_load_dwordx2 s[6:7], s[0:1], 0
s_load_dwordx2 s[20:21], s[0:1], 32
v_and_b32 v{M}, 31, v0
v_bfe_u32 v{HALF}, v0, 5, 1
v_lshlrev_b32 v{L16}, 4, v{LANE}
s_and_b32 s23, s2, 31
s_lshr_b32 s24, s2, 5
s_mul_i32 s25, s23, {2*36*1024}
s_mul_i32 s26, s22, {9*1024}
s_add_u32 s25, s25, s26
s_add_u32 s25, s25, {WS_OP}
s_mul_i32 s27, s24, {2*36*1024}
s_add_u32 s27, s27, s26
s_add_u32 s27, s27, {WS_WOP}
s_add_u32 s28, s25, {36*1024}
s_add_u32 s29, s27, {36*1024}
s_bfe_u32 s40, s24, 0x10001
s_add_u32 s40, s40, 16
s_mul_i32 s41, s40, {36*1024}
s_add_u32 s41, s41, s26
s_add_u32 s41, s41, {WS_WOP}
s_and_b32 s42, s24, 1
s_lshr_b32 s43, s24, 2
""")
    if os.environ.get("GOFF"):
        e("s_branch k3_noextra")
    e("""s_cmp_eq_u32 s42, 1
s_cselect_b32 s44, s28, s25
s_cselect_b32 s28, s25, s28
s_mov_b32 s25, s44""")
    W = f"s[{WSR}:{WSR+3}]"
    def loads(ks):
        b = FR + 20 * (ks % 7)
        off = (ks % 4) * 1024
        if ks and ks % 4 == 0:
            e("s_add_u32 s25, s25, 4096\ns_add_u32 s27, s27, 4096\ns_add_u32 s28, s28, 4096\ns_add_u32 s29, s29, 4096\ns_add_u32 s41, s41, 4096")
        e(f"""buffer_load_dwordx4 {vr(b,4)}, v{L16}, {W}, s25 offen offset:{off}
buffer_load_dwordx4 {vr(b+8,4)}, v{L16}, {W}, s27 offen offset:{off}
buffer_load_dwordx4 {vr(b+4,4)}, v{L16}, {W}, s28 offen offset:{off}
buffer_load_dwordx4 {vr(b+12,4)}, v{L16}, {W}, s29 offen offset:{off}
buffer_load_dwordx4 {vr(b+16,4)}, v{L16}, {W}, s41 offen offset:{off}""")
    for ks in range(7): loads(ks)
    e("s_waitcnt lgkmcnt(0)")
    srd(k, XR, 6, S * D * 2)
    srd(k, WRR, 20, D * 2)
    TK, FQ = 2, 3
    WADR, RADR, GOFF_, WOFF_ = 5, 6, 7, 31
    e(f"""v_and_b32 v{T+2}, 15, v{M}
v_lshlrev_b32 v{WADR}, 1, v{HALF}
v_xor_b32 v{WADR}, v{WADR}, v{T+2}
v_lshlrev_b32 v{WADR}, 4, v{WADR}
v_lshl_add_u32 v{WADR}, v{M}, 8, v{WADR}
s_lshl_b32 s36, s22, 14
v_add_u32 v{WADR}, s36, v{WADR}
v_lshlrev_b32 v30, 6, v{M}
v_lshl_add_u32 v30, v{HALF}, 5, v30
s_lshl_b32 s36, s22, 11
v_add_u32 v30, s36, v30
v_lshrrev_b32 v{TK}, 2, v{LANE}
v_and_b32 v{FQ}, 3, v{LANE}
v_lshlrev_b32 v{RADR}, 2, v{FQ}
v_xor_b32 v{RADR}, v{RADR}, v{TK}
v_lshlrev_b32 v{RADR}, 4, v{RADR}
v_lshl_add_u32 v{RADR}, v{TK}, 8, v{RADR}
s_lshl_b32 s36, s22, 12
v_add_u32 v{RADR}, s36, v{RADR}
v_mul_u32_u24 v{GOFF_}, 1152, v{TK}
v_lshl_add_u32 v29, v{FQ}, 3, v{GOFF_}
v_lshl_add_u32 v{GOFF_}, v{FQ}, 5, v{GOFF_}
v_lshlrev_b32 v{WOFF_}, 5, v{FQ}
v_lshlrev_b32 v28, 3, v{FQ}
s_lshr_b32 s30, s22, 1
s_xor_b32 s31, s30, s42
s_lshl_b32 s32, s23, 1
s_add_u32 s32, s32, s31
s_lshl_b32 s32, s32, 5
s_and_b32 s31, s22, 1
s_lshl_b32 s31, s31, 4
s_add_u32 s32, s32, s31
s_mul_i32 s34, s32, 1152
s_lshl_b32 s35, s24, 7
s_lshl_b32 s47, s40, 6
s_lshl_b32 s46, s43, 5
s_add_u32 s47, s47, s46
s_cmp_eq_u32 s30, 0
s_cselect_b32 s47, s47, {HUGE}
s_add_u32 s46, s34, s47
s_add_u32 s34, s34, s35
""")
    XV, WV, XE, WE = 8, 16, 24, 26
    acc = lambda a, b: ACC + 32 * a + 16 * b
    AE = ACC + 64
    nload = 35
    for ks in range(9):
        b = FR + 20 * (ks % 7)
        e(f"s_waitcnt vmcnt({nload - 5*(ks+1)})")
        for a in range(2):
            for n in range(2):
                c = vr(acc(a, n), 16) if ks else "0"
                e(f"v_mfma_f32_32x32x16_bf16 {vr(acc(a,n),16)}, {vr(b+8+4*n,4)}, {vr(b+4*a,4)}, {c}")
        c = vr(AE, 16) if ks else "0"
        e(f"v_mfma_f32_32x32x16_bf16 {vr(AE,16)}, {vr(b+16,4)}, {vr(b,4)}, {c}")
        if ks < 2:
            loads(ks + 7); nload += 5
        if ks == 1:
            e(f"""buffer_load_dwordx4 {vr(XV,4)}, v{GOFF_}, s[{XR}:{XR+3}], s34 offen
buffer_load_dwordx4 {vr(XV+4,4)}, v{GOFF_}, s[{XR}:{XR+3}], s34 offen offset:16
buffer_load_dwordx4 {vr(WV,4)}, v{WOFF_}, s[{WRR}:{WRR+3}], s35 offen
buffer_load_dwordx4 {vr(WV+4,4)}, v{WOFF_}, s[{WRR}:{WRR+3}], s35 offen offset:16
buffer_load_dwordx2 {vr(XE,2)}, v29, s[{XR}:{XR+3}], s46 offen
buffer_load_dwordx2 {vr(WE,2)}, v28, s[{WRR}:{WRR+3}], s47 offen""")
            nload += 6
    stamp(k, 1)
    WX = 32
    for i, cx in enumerate([1, 4, 5, 8, 9, 12, 13]):
        e(f"v_xor_b32 v{WX+i}, {cx*16}, v{WADR}")
    adr = {0: WADR, 1: WX, 4: WX+1, 5: WX+2, 8: WX+3, 9: WX+4, 12: WX+5, 13: WX+6}
    e("s_nop 4")
    for a in range(2):
        for n in range(2):
            for q in range(4):
                cx = n * 8 + (q >> 1) * 4 + (q & 1)
                e(f"ds_write_b128 v{adr[cx]}, {vr(acc(a,n)+4*q,4)} offset:{a*8192}")
    e(f"""v_add_u32 v30, 0x10000, v30
s_cmp_eq_u32 s43, 0
s_cbranch_scc1 k3_e0
ds_write_b128 v30, {vr(AE+8,4)}
ds_write_b128 v30, {vr(AE+12,4)} offset:16
s_branch k3_e1""")
    k.label("k3_e0")
    e(f"""ds_write_b128 v30, {vr(AE,4)}
ds_write_b128 v30, {vr(AE+4,4)} offset:16""")
    k.label("k3_e1")
    PT = 64
    XF, WF = 160, 180
    e(f"""v_xor_b32 v{WX}, 16, v{RADR}
v_xor_b32 v{WX+1}, 32, v{RADR}
v_xor_b32 v{WX+2}, 48, v{RADR}
s_and_b32 s36, s22, 1
s_lshl_b32 s36, s36, 10
s_add_u32 s36, s36, 0x10000
v_lshlrev_b32 v{WX+3}, 4, v{LANE}
v_add_u32 v{WX+3}, s36, v{WX+3}
s_waitcnt vmcnt(0)""")
    xs = [XV + i for i in range(8)] + [XE, XE + 1]
    ws_ = [WV + i for i in range(8)] + [WE, WE + 1]
    for i in range(10):
        e(f"""v_lshlrev_b32 v{XF+2*i}, 16, v{xs[i]}
v_and_b32 v{XF+2*i+1}, 0xffff0000, v{xs[i]}
v_lshlrev_b32 v{WF+2*i}, 16, v{ws_[i]}
v_and_b32 v{WF+2*i+1}, 0xffff0000, v{ws_[i]}""")
    e("s_waitcnt lgkmcnt(0)\ns_barrier")
    radr = [RADR, WX, WX + 1, WX + 2]
    for src in range(4):
        for i in range(4):
            e(f"ds_read_b128 {vr(PT+20*src+4*i,4)}, v{radr[i]} offset:{src*16384}")
        e(f"ds_read_b128 {vr(PT+20*src+16,4)}, v{WX+3} offset:{src*2048}")
    OWN = PT
    e("s_waitcnt lgkmcnt(10)")
    for r in range(20):
        e(f"v_add_f32 v{PT+r}, v{PT+r}, v{PT+20+r}")
    e("s_waitcnt lgkmcnt(0)")
    for r in range(20):
        e(f"v_add_f32 v{PT+40+r}, v{PT+40+r}, v{PT+60+r}")
    for r in range(20):
        e(f"v_add_f32 v{PT+r}, v{PT+r}, v{PT+40+r}")
    HP = 144
    for i in range(10):
        e(f"v_cvt_pk_bf16_f32 v{HP+i}, v{OWN+2*i}, v{OWN+2*i+1}")
    for i in range(10):
        e(f"""v_lshlrev_b32 v{OWN+2*i}, 16, v{HP+i}
v_and_b32 v{OWN+2*i+1}, 0xffff0000, v{HP+i}""")
    for r in range(20):
        e(f"v_add_f32 v{OWN+r}, v{OWN+r}, v{XF+r}")
    for i in range(10):
        e(f"v_cvt_pk_bf16_f32 v{HP+i}, v{OWN+2*i}, v{OWN+2*i+1}")
    e(f"""s_add_u32 s34, s34, {WS_H}
s_add_u32 s46, s46, {WS_H}
buffer_store_dwordx4 {vr(HP,4)}, v{GOFF_}, {W}, s34 offen sc1
buffer_store_dwordx4 {vr(HP+4,4)}, v{GOFF_}, {W}, s34 offen offset:16 sc1
buffer_store_dwordx2 {vr(HP+8,2)}, v29, {W}, s46 offen sc1
s_cmp_eq_u32 s30, 0
s_cselect_b32 s36, -1, 0""")
    for i in range(10):
        e(f"""v_lshlrev_b32 v{OWN+2*i}, 16, v{HP+i}
v_and_b32 v{OWN+2*i+1}, 0xffff0000, v{HP+i}""")
    for r in range(16, 20):
        e(f"v_and_b32 v{OWN+r}, s36, v{OWN+r}")
    S0, S1, S2 = 100, 102, 104
    e(f"""v_add_f32 v{S0}, v{OWN}, v{OWN+1}
v_mul_f32 v{S1}, v{OWN}, v{OWN}
v_mul_f32 v{S2}, v{OWN}, v{WF}
v_mul_f32 v{S1+1}, v{OWN+1}, v{OWN+1}
v_mul_f32 v{S2+1}, v{OWN+1}, v{WF+1}
v_add_f32 v{S0+1}, v{OWN+2}, v{OWN+3}""")
    for r in range(2, 20):
        if r >= 4:
            e(f"v_add_f32 v{S0+(r%2)}, v{S0+(r%2)}, v{OWN+r}")
        e(f"""v_fmac_f32 v{S1+(r%2)}, v{OWN+r}, v{OWN+r}
v_fmac_f32 v{S2+(r%2)}, v{OWN+r}, v{WF+r}""")
    e(f"""v_add_f32 v{S0}, v{S0}, v{S0+1}
v_add_f32 v{S1}, v{S1}, v{S1+1}
v_add_f32 v{S2}, v{S2}, v{S2+1}
s_lshl_b32 s36, s32, 2
s_add_u32 s36, s36, {WS_ST}
v_add_f32_dpp v{S0}, v{S0}, v{S0} quad_perm:[1,0,3,2] row_mask:0xf bank_mask:0xf
v_add_f32_dpp v{S1}, v{S1}, v{S1} quad_perm:[1,0,3,2] row_mask:0xf bank_mask:0xf
v_add_f32_dpp v{S2}, v{S2}, v{S2} quad_perm:[1,0,3,2] row_mask:0xf bank_mask:0xf
v_cmp_eq_u32 s[48:49], 1, v{FQ}
v_add_f32_dpp v{S0}, v{S0}, v{S0} quad_perm:[2,3,0,1] row_mask:0xf bank_mask:0xf
v_add_f32_dpp v{S1}, v{S1}, v{S1} quad_perm:[2,3,0,1] row_mask:0xf bank_mask:0xf
v_add_f32_dpp v{S2}, v{S2}, v{S2} quad_perm:[2,3,0,1] row_mask:0xf bank_mask:0xf
v_cmp_eq_u32 s[50:51], 2, v{FQ}
v_cmp_gt_u32 s[52:53], 3, v{FQ}
v_lshlrev_b32 v{WX}, 2, v{TK}
v_lshl_add_u32 v{WX}, v{FQ}, 13, v{WX}
v_cndmask_b32 v{S0}, v{S0}, v{S1}, s[48:49]
v_cndmask_b32 v{S0}, v{S0}, v{S2}, s[50:51]
s_mov_b64 exec, s[52:53]
buffer_atomic_add_f32 v{S0}, v{WX}, {W}, s36 offen
s_mov_b64 exec, -1""")
    k.label("k3_noextra")
    e(f"""s_bfe_u32 s36, s2, 0x30003
s_lshl_b32 s36, s36, 7
s_add_u32 s36, s36, {WS_CNTG}
v_lshlrev_b32 v{T+2}, 10, v{LANE}
v_mov_b32 v{T+1}, 1""")
    stamp(k, 2)
    e(f"""s_waitcnt vmcnt(0)
s_barrier""")
    stamp(k, 3)
    e(f"""s_cmp_lg_u32 s22, 0
s_cbranch_scc1 k34_end
s_mov_b64 exec, 0xff
buffer_atomic_add v{T+1}, v{T+2}, {W}, s36 offen""")
    dump(k, 4)
    e("s_endpgm")

def gen_p2(k):
    e = k.e
    WSR, GR, UR, DR, OUTR = 8, 12, 16, 24, 28
    W = f"s[{WSR}:{WSR+3}]"
    LANE, T = 1, 2
    ST = 16
    HR = 40
    RS_ = 56
    HS = 60
    SS = 64
    WD = 72
    WDF = 152
    Lend = "k34_end"
    INV = f32hex(1.0 / 576); EPS = f32hex(1e-5)
    e(f"""s_load_dwordx4 s[32:35], s[0:1], 40
s_load_dwordx4 s[36:39], s[0:1], 56
s_sub_u32 s23, s2, {NG}
v_lshlrev_b32 v{T+1}, 4, v0
v_lshlrev_b32 v{T+2}, 4, v{LANE}
v_cmp_gt_u32 s[40:41], 8, v{LANE}
v_add_u32 v{T+3}, 1024, v{T+2}
v_mov_b32 v{T+4}, {HUGE}
s_add_u32 s46, s4, {WS_WSUM}
s_addc_u32 s47, s5, 0
s_load_dword s48, s[46:47], 0
v_cndmask_b32 v{T+3}, v{T+4}, v{T+3}, s[40:41]
s_mov_b32 s42, 72
v_cmp_gt_u32 s[40:41], s42, v0
s_waitcnt lgkmcnt(0)
v_cndmask_b32 v{T+13}, v{T+4}, v{T+1}, s[40:41]
""")
    srd(k, GR, 32, D * F * 2)
    srd(k, UR, 34, D * F * 2)
    srd(k, DR, 36, D * F * 2)
    srd(k, OUTR, 38, S * D * 2)
    LNOD = "p2_nodma"
    e(f"""s_cmp_ge_u32 s23, {NFFN}
s_cbranch_scc1 {LNOD}
v_mul_u32_u24 v{T+5}, 911, v0
v_lshrrev_b32 v{T+5}, 16, v{T+5}
v_mul_u32_u24 v{T+6}, 72, v{T+5}
v_sub_u32 v{T+6}, v0, v{T+6}
v_mul_u32_u24 v{T+7}, 1152, v{T+5}
v_lshl_add_u32 v{T+7}, v{T+6}, 4, v{T+7}
s_mov_b32 s42, 216
v_cmp_gt_u32 s[40:41], s42, v0
s_and_b32 s59, s23, 7
s_mul_i32 s59, s59, 18
s_lshr_b32 s52, s23, 3
s_add_u32 s59, s59, s52
s_mul_i32 s52, s59, 36864
s_nop 0
v_cndmask_b32 v{T+7}, v{T+4}, v{T+7}, s[40:41]
""")
    for i in range(11):
        e(f"buffer_load_dwordx4 {vr(WD+4*i,4)}, v{T+7}, s[{DR}:{DR+3}], s52 offen")
        if i < 10: e(f"s_add_u32 s52, s52, {3*1152}")
    e(f"""v_lshrrev_b32 v{T+4}, 2, v{LANE}
v_mul_u32_u24 v{T+4}, 9216, v{T+4}
v_and_b32 v{T+8}, 3, v{LANE}
v_lshl_add_u32 v{T+4}, v{T+8}, 4, v{T+4}
s_sub_u32 s53, s22, 2
s_mul_i32 s50, s53, {16*9216}
s_lshl_b32 s51, s59, 6
s_add_u32 s50, s50, s51
s_lshl_b32 s51, s53, 10
s_mov_b32 s53, 0
""")
    e("s_waitcnt vmcnt(0)")
    for i in range(44):
        e(f"""v_lshlrev_b32 v{WDF+2*i}, 16, v{WD+i}
v_and_b32 v{WDF+2*i+1}, 0xffff0000, v{WD+i}""")
    k.label(LNOD)
    stamp(k, 1)
    TRIG = int(os.environ.get("P2TRIG", "8"))
    def poll(tag, thr):
        e(f"""s_cmp_lg_u32 s22, 0
s_cbranch_scc1 p2_polled{tag}
v_lshlrev_b32 v{T+8}, 7, v{LANE}
s_and_b32 s49, s23, 7
s_lshl_b32 s49, s49, 10
s_add_u32 s49, s49, {WS_CNTG}
s_mov_b32 s54, 0
s_mov_b64 exec, 0xff""")
        k.label(f"p2_poll{tag}")
        e(f"""buffer_load_dword v{T+9}, v{T+8}, {W}, s49 offen sc1
s_waitcnt vmcnt(0)
v_cmp_gt_u32 vcc, {thr}, v{T+9}
s_add_u32 s54, s54, 1
s_cmp_gt_u32 s54, 0x100000
s_cbranch_vccz p2_pdone{tag}
s_cbranch_scc1 p2_pdone{tag}
s_sleep {int(os.environ.get("P2SLEEP","2"))}
s_cmp_lt_u32 s23, {NFFN}
s_cbranch_scc1 p2_poll{tag}
s_sleep 40
s_branch p2_poll{tag}""")
        k.label(f"p2_pdone{tag}")
        e("s_mov_b64 exec, -1")
        k.label(f"p2_polled{tag}")
    poll("b", NG // 8)
    e(f"""v_mov_b32 v{T+9}, 0
v_mov_b32 v116, 0
v_mov_b32 v117, 0
v_mov_b32 v118, 0
v_mov_b32 v119, 0
ds_write_b128 v{T+9}, v[116:119] offset:{L_RED}
s_waitcnt lgkmcnt(0)
s_barrier""")
    stamp(k, 2)
    ST2 = 72
    e(f"""s_cmp_ge_u32 s22, 2
s_cbranch_scc1 p2_nost
v_lshlrev_b32 v{T+8}, 6, v0
s_mov_b32 s41, {WS_ST}""")
    for st in range(3):
        for q in range(4):
            e(f"buffer_load_dwordx4 {vr(ST2+16*st+4*q,4)}, v{T+8}, {W}, s41 offen offset:{16*q} sc1")
        if st < 2: e("s_add_u32 s41, s41, 8192")
    e("s_branch p2_skipdma")
    k.label("p2_nost")
    e(f"""s_cmp_ge_u32 s23, {NFFN}
s_cbranch_scc1 p2_skipdma""")
    k.label("p2_dma")
    e(f"""s_add_u32 m0, s51, {L_WG}
s_add_u32 s53, s53, 1
buffer_load_dwordx4 v{T+4}, s[{GR}:{GR+3}], s50 offen lds
s_add_u32 m0, s51, {L_WU}
s_add_u32 s51, s51, 2048
buffer_load_dwordx4 v{T+4}, s[{UR}:{UR+3}], s50 offen lds
s_add_u32 s50, s50, {2*16*9216}
s_cmp_lt_u32 s53, 18
s_cbranch_scc1 p2_dma""")
    k.label("p2_skipdma")
    e(f"""s_lshl_b32 s42, s23, 3
s_lshl_b32 s43, s22, 1
s_add_u32 s42, s42, s43
s_mul_i32 s43, s42, 1152
s_add_u32 s44, s43, {WS_H}
s_lshl_b32 s45, s42, 2
s_add_u32 s45, s45, {WS_ST}
buffer_load_dwordx4 {vr(HR,4)}, v{T+2}, {W}, s44 offen sc1
buffer_load_dwordx4 {vr(HR+4,4)}, v{T+3}, {W}, s44 offen sc1
buffer_load_dwordx4 {vr(HR+8,4)}, v{T+2}, {W}, s44 offen offset:1152 sc1
buffer_load_dwordx4 {vr(HR+12,4)}, v{T+3}, {W}, s44 offen offset:1152 sc1
buffer_load_dwordx2 {vr(RS_,2)}, v{T+9}, {W}, s45 offen sc1
s_add_u32 s45, s45, 8192
buffer_load_dwordx2 {vr(RS_+2,2)}, v{T+9}, {W}, s45 offen sc1
s_cmp_ge_u32 s22, 2
s_cbranch_scc1 p2_noam
v_lshlrev_b32 v{T+10}, 4, v0
v_sub_u32 v{T+10}, 2047, v{T+10}
s_waitcnt vmcnt(6)
""")
    KEY = 16
    for i in range(16):
        a_, b_, c_ = 120 + 3 * (i % 4), 121 + 3 * (i % 4), 122 + 3 * (i % 4)
        e(f"""v_mul_f32 v{a_}, {INV}, v{ST2+i}
v_mul_f32 v{b_}, {INV}, v{ST2+16+i}
v_fma_f32 v{b_}, -v{a_}, v{a_}, v{b_}
v_max_f32 v{b_}, 0, v{b_}
v_add_f32 v{b_}, {EPS}, v{b_}
v_rsq_f32 v{b_}, v{b_}
v_fma_f32 v{a_}, -v{a_}, s48, v{ST2+32+i}
v_mul_f32 v{a_}, v{a_}, v{b_}
v_ashrrev_i32 v{c_}, 31, v{a_}
v_or_b32 v{c_}, 0x80000000, v{c_}
v_xor_b32 v{a_}, v{a_}, v{c_}
v_and_b32 v{a_}, 0xfffff800, v{a_}
v_subrev_u32 v{c_}, {i}, v{T+10}
v_or_b32 v{KEY+i}, v{a_}, v{c_}""")
    for i in range(5):
        e(f"v_max3_u32 v{KEY+3*i}, v{KEY+3*i}, v{KEY+3*i+1}, v{KEY+3*i+2}")
    e(f"""v_max3_u32 v{KEY}, v{KEY}, v{KEY+3}, v{KEY+6}
v_max3_u32 v{KEY+9}, v{KEY+9}, v{KEY+12}, v{KEY+15}
v_max_u32 v{KEY}, v{KEY}, v{KEY+9}
s_lshl_b32 s49, s22, 3
v_mov_b32 v{T+11}, s49
v_max_u32_dpp v{KEY}, v{KEY}, v{KEY} row_shr:1 row_mask:0xf bank_mask:0xf
v_xor_b32 v{T+12}, 8, v{T+11}
v_mov_b32 v{KEY+1}, 1
v_max_u32_dpp v{KEY}, v{KEY}, v{KEY} row_shr:2 row_mask:0xf bank_mask:0xf
s_nop 1
v_max_u32_dpp v{KEY}, v{KEY}, v{KEY} row_shr:4 row_mask:0xf bank_mask:0xf
s_nop 1
v_max_u32_dpp v{KEY}, v{KEY}, v{KEY} row_shr:8 row_mask:0xf bank_mask:0xf
s_nop 1
v_max_u32_dpp v{KEY}, v{KEY}, v{KEY} row_bcast:15 row_mask:0xa bank_mask:0xf
s_nop 1
v_max_u32_dpp v{KEY}, v{KEY}, v{KEY} row_bcast:31 row_mask:0xc bank_mask:0xf
s_mov_b32 exec_lo, 0
s_mov_b32 exec_hi, 0x80000000
ds_write_b64 v{T+11}, v[{KEY}:{KEY+1}] offset:{L_RED}
s_mov_b64 exec, -1
v_readlane_b32 s53, v{KEY}, 63""")
    k.label("p2_spin")
    e(f"""ds_read_b64 v[116:117], v{T+12} offset:{L_RED}
s_waitcnt lgkmcnt(0)
v_readfirstlane_b32 s54, v117
v_readfirstlane_b32 s55, v116
s_nop 1
s_cmp_eq_u32 s54, 0
s_cbranch_scc1 p2_spin
s_max_u32 s53, s53, s55
s_and_b32 s53, s53, 0x7ff
s_sub_u32 s53, 2047, s53
s_cmp_ge_u32 s23, {NFFN}
s_cbranch_scc1 p2_noam
s_mul_i32 s54, s53, 1152
s_add_u32 s55, s54, {WS_H}
s_lshl_b32 s56, s53, 2
s_add_u32 s56, s56, {WS_ST}
buffer_load_dwordx4 {vr(HS,4)}, v{T+13}, {W}, s55 offen sc1
buffer_load_dword v{SS}, v{T+9}, {W}, s56 offen sc1
s_add_u32 s56, s56, 8192
buffer_load_dword v{SS+1}, v{T+9}, {W}, s56 offen sc1
s_add_u32 s56, s56, 8192
buffer_load_dword v{SS+2}, v{T+9}, {W}, s56 offen sc1
""")
    stamp(k, 3)
    def lnparams(vsum, vsq, mb, rs):
        e(f"""v_mul_f32 v{mb}, {INV}, v{vsum}
v_mul_f32 v{rs}, {INV}, v{vsq}
v_fma_f32 v{rs}, -v{mb}, v{mb}, v{rs}
v_max_f32 v{rs}, 0, v{rs}
v_cvt_pk_bf16_f32 v{mb}, v{mb}, v{mb}
v_cvt_pk_bf16_f32 v{rs}, v{rs}, v{rs}
v_and_b32 v{mb}, 0xffff0000, v{mb}
v_and_b32 v{rs}, 0xffff0000, v{rs}
v_add_f32 v{rs}, {EPS}, v{rs}
v_cvt_pk_bf16_f32 v{rs}, v{rs}, v{rs}
v_and_b32 v{rs}, 0xffff0000, v{rs}
v_sqrt_f32 v{rs}, v{rs}
s_nop 0
v_cvt_pk_bf16_f32 v{rs}, v{rs}, v{rs}
v_and_b32 v{rs}, 0xffff0000, v{rs}
v_rcp_f32 v{rs}, v{rs}
s_nop 0""")
    D0 = 132
    def ln_chunk(src, n, mb, rs, hf, x2p):
        for i in range(n):
            e(f"""v_lshlrev_b32 v{hf+2*i}, 16, v{src+i}
v_and_b32 v{hf+2*i+1}, 0xffff0000, v{src+i}""")
        for i in range(2 * n):
            e(f"v_sub_f32 v{D0+i}, v{hf+i}, v{mb}")
        for i in range(n):
            e(f"v_cvt_pk_bf16_f32 v{x2p+i}, v{D0+2*i}, v{D0+2*i+1}")
        for i in range(n):
            e(f"""v_lshlrev_b32 v{D0+2*i}, 16, v{x2p+i}
v_and_b32 v{D0+2*i+1}, 0xffff0000, v{x2p+i}""")
        for i in range(2 * n):
            e(f"v_mul_f32 v{D0+i}, v{D0+i}, v{rs}")
        for i in range(n):
            e(f"v_cvt_pk_bf16_f32 v{x2p+i}, v{D0+2*i}, v{D0+2*i+1}")
    MB, RS = 67, 68
    HF, X2P = 16, 32
    def erow(r):
        lnparams(RS_ + r, RS_ + 2 + r, MB, RS)
        ln_chunk(HR + 8 * r, 8, MB, RS, HF, X2P)
        for i in range(8):
            e(f"""v_lshlrev_b32 v{D0+2*i}, 16, v{X2P+i}
v_and_b32 v{D0+2*i+1}, 0xffff0000, v{X2P+i}""")
        for i in range(16):
            e(f"v_add_f32 v{D0+i}, v{D0+i}, v{HF+i}")
        for i in range(8):
            e(f"v_cvt_pk_bf16_f32 v{HR+8*r+i}, v{D0+2*i}, v{D0+2*i+1}")
        e(f"""s_add_u32 s57, s42, {r}
s_add_u32 s58, s43, {1152*r}
s_cmp_eq_u32 s57, s53
s_cselect_b32 s58, {HUGE}, s58
buffer_store_dwordx4 {vr(HR+8*r,4)}, v{T+2}, s[{OUTR}:{OUTR+3}], s58 offen
buffer_store_dwordx4 {vr(HR+8*r+4,4)}, v{T+3}, s[{OUTR}:{OUTR+3}], s58 offen""")
    SMB, SRS = 69, 70
    SHF, SX2 = 116, 124
    e("s_waitcnt vmcnt(0)")
    lnparams(SS, SS + 1, SMB, SRS)
    ln_chunk(HS, 4, SMB, SRS, SHF, SX2)
    e(f"""v_cmp_gt_u32 vcc, 72, v0
s_and_saveexec_b64 s[62:63], vcc
ds_write_b128 v{T+1}, {vr(SX2,4)} offset:{L_X2}
s_mov_b64 exec, s[62:63]""")
    k.label("p2_noam")
    e(f"""s_waitcnt vmcnt(0) lgkmcnt(0)
s_barrier
s_cmp_lt_u32 s22, 2
s_cbranch_scc1 p2_haveidx
ds_read_b128 v[132:135], v{T+9} offset:{L_RED}
s_waitcnt lgkmcnt(0)
v_max_u32 v132, v132, v134
s_nop 0
v_readfirstlane_b32 s53, v132
s_nop 1
s_and_b32 s53, s53, 0x7ff
s_sub_u32 s53, 2047, s53""")
    k.label("p2_haveidx")
    e(f"""s_cmp_lt_u32 s23, {NFFN}
s_cbranch_scc1 p2_ffn""")
    erow(0)
    erow(1)
    e("s_endpgm")
    k.label("p2_ffn")
    G_, A9, A10 = T + 8, T + 11, T + 12
    e(f"""v_lshrrev_b32 v{G_}, 4, v{LANE}
v_bfe_u32 v{A9}, v{LANE}, 2, 2
v_lshl_add_u32 v{A9}, v{G_}, 3, v{A9}
v_and_b32 v{A10}, 3, v{LANE}
v_lshlrev_b32 v{A10}, 3, v{A10}
v_lshl_add_u32 v{A9}, v{A9}, 6, v{A10}
s_and_b32 s61, s22, 1
s_lshl_b32 s61, s61, 5
s_lshr_b32 s64, s22, 1
s_mul_i32 s64, s64, {L_WU-L_WG}
s_add_u32 s61, s61, s64
s_add_u32 s61, s61, {L_WG}
v_add_u32 v{A9}, s61, v{A9}
v_lshlrev_b32 v{A10}, 4, v{G_}
""")
    stamp(k, 4)
    AF, BF, ACC = 16, 72, 128
    def rd(ks):
        sl = ks % 6
        e(f"""ds_read_b128 {vr(AF+4*sl,4)}, v{A10} offset:{L_X2+ks*64}
ds_read_b64_tr_b16 {vr(BF+4*sl,2)}, v{A9} offset:{ks*32*64}
ds_read_b64_tr_b16 {vr(BF+4*sl+2,2)}, v{A9} offset:{ks*32*64+4*64}""")
    for ks in range(5): rd(ks)
    for ks in range(18):
        sl = ks % 6
        nleft = min(4, 17 - ks)
        e(f"s_waitcnt lgkmcnt({3*nleft})")
        c = vr(ACC, 4) if ks else "0"
        e(f"v_mfma_f32_16x16x32_bf16 {vr(ACC,4)}, {vr(AF+4*sl,4)}, {vr(BF+4*sl,4)}, {c}")
        if ks + 5 < 18: rd(ks + 5)
    e(f"""s_lshl_b32 s65, s22, 6
v_and_b32 v{A9}, 15, v{LANE}
v_lshl_add_u32 v{A9}, v{A9}, 2, s65
v_and_b32 v{A10}, 31, v{LANE}
v_lshlrev_b32 v{A10}, 2, v{A10}
v_lshlrev_b32 v{T+7}, 2, v{T+5}
s_nop 3
ds_write_b32 v{A9}, v{ACC} offset:{L_PART}
s_waitcnt lgkmcnt(0)
s_barrier
ds_read_b32 v132, v{A10} offset:{L_PART}
ds_read_b32 v134, v{A10} offset:{L_PART+128}
s_waitcnt lgkmcnt(0)
v_cvt_pk_bf16_f32 v132, v132, v134
v_lshlrev_b32 v133, 16, v132
v_and_b32 v134, 0xffff0000, v132
v_mul_f32 v135, {f32hex(-1.4426950408889634)}, v133
v_exp_f32 v135, v135
s_nop 0
v_add_f32 v135, 1.0, v135
v_rcp_f32 v135, v135
s_nop 0
v_mul_f32 v133, v133, v135
v_cvt_pk_bf16_f32 v133, v133, v133
v_and_b32 v133, 0xffff0000, v133
v_mul_f32 v133, v133, v134
v_cvt_pk_bf16_f32 v133, v133, v133
v_and_b32 v133, 0xffff0000, v133
v_cmp_gt_u32 s[62:63], 32, v{LANE}
v_lshlrev_b32 v{A9}, 2, v{LANE}
s_lshl_b32 s65, s22, 8
v_cndmask_b32 v133, 0, v133, s[62:63]
v_add_u32 v{A9}, s65, v{A9}
v_add_u32 v{T+7}, s65, v{T+7}
ds_write_b32 v{A9}, v133 offset:{L_FLAG+64}
s_waitcnt lgkmcnt(0)
""")
    AV = 16
    for i in range(11):
        e(f"ds_read_b32 v{AV+i}, v{T+7} offset:{L_FLAG+64+12*i}")
    YA = 136
    for i in range(11):
        e(f"s_waitcnt lgkmcnt({10-i})")
        for j in range(8):
            if i == 0:
                e(f"v_mul_f32 v{YA+j}, v{AV}, v{WDF+j}")
            else:
                e(f"v_fmac_f32 v{YA+j}, v{AV+i}, v{WDF+8*i+j}")
    e(f"""v_mul_u32_u24 v{A9}, 2304, v{T+5}
v_lshl_add_u32 v{A9}, v{T+6}, 5, v{A9}
v_cmp_gt_u32 vcc, 216, v0
s_and_saveexec_b64 s[62:63], vcc
ds_write_b128 v{A9}, {vr(YA,4)} offset:{L_YP}
ds_write_b128 v{A9}, {vr(YA+4,4)} offset:{L_YP+16}
s_mov_b64 exec, s[62:63]
v_lshlrev_b32 v{A10}, 2, v0
s_and_b32 s68, s23, {YREP-1}
s_mul_i32 s68, s68, 2304
s_add_u32 s68, s68, {WS_Y}
s_waitcnt lgkmcnt(0)
s_barrier
""")
    for c in range(3):
        for g in range(3):
            e(f"ds_read_b32 v{16+3*c+g}, v{A10} offset:{L_YP+g*2304+c*1024}")
    e("s_waitcnt lgkmcnt(0)")
    for c in range(3):
        e(f"v_add_f32 v{16+3*c}, v{16+3*c}, v{17+3*c}\nv_add_f32 v{16+3*c}, v{16+3*c}, v{18+3*c}")
    e(f"""buffer_atomic_add_f32 v16, v{A10}, {W}, s68 offen
buffer_atomic_add_f32 v19, v{A10}, {W}, s68 offen offset:1024
s_cmp_lg_u32 s22, 0
s_cbranch_scc1 p2_at3
buffer_atomic_add_f32 v22, v{A10}, {W}, s68 offen offset:2048""")
    k.label("p2_at3")
    stamp(k, 5)
    erow(0)
    erow(1)
    e(f"""s_waitcnt vmcnt(4)
s_barrier
s_cmp_ge_u32 s22, 2
s_cbranch_scc1 {Lend}
s_cmp_eq_u32 s22, 1
s_cbranch_scc1 p2_cnt
v_mov_b32 v{A9}, {WS_CNT}
v_mov_b32 v{A10}, 1
s_mov_b64 exec, 1
buffer_atomic_add v{A10}, v{A9}, {W}, 0 offen sc0
s_waitcnt vmcnt(0)
ds_write_b32 v{T+9}, v{A10} offset:{L_FLAG}
s_mov_b64 exec, -1
s_waitcnt lgkmcnt(0)
""")
    k.label("p2_cnt")
    stamp(k, 6)
    dump(k, 7)
    if PROF: e("s_mov_b64 exec, -1")
    e(f"""s_barrier
ds_read_b32 v{A10}, v{T+9} offset:{L_FLAG}
s_waitcnt lgkmcnt(0)
v_readfirstlane_b32 s70, v{A10}
s_nop 3
s_cmp_lg_u32 s70, {NFFN-1}
s_cbranch_scc1 {Lend}
v_lshlrev_b32 v{A9}, 1, v{T+13}
s_mov_b32 s71, {WS_Y}
""")
    YL = 152
    for r in range(YREP):
        e(f"""buffer_load_dwordx4 {vr(YL+8*r,4)}, v{A9}, {W}, s71 offen sc0 sc1
buffer_load_dwordx4 {vr(YL+8*r+4,4)}, v{A9}, {W}, s71 offen offset:16 sc0 sc1
s_add_u32 s71, s71, 2304""")
    SG = T + 8
    e(f"""v_fma_f32 v{SG}, -v{SMB}, s48, v{SS+2}
v_mul_f32 v{SG}, v{SG}, v{SRS}
v_cvt_pk_bf16_f32 v{SG}, v{SG}, v{SG}
v_and_b32 v{SG}, 0xffff0000, v{SG}
v_mul_f32 v{SG}, {f32hex(-1.4426950408889634)}, v{SG}
v_exp_f32 v{SG}, v{SG}
s_nop 0
v_add_f32 v{SG}, 1.0, v{SG}
v_rcp_f32 v{SG}, v{SG}
s_nop 0
v_cvt_pk_bf16_f32 v{SG}, v{SG}, v{SG}
v_and_b32 v{SG}, 0xffff0000, v{SG}
s_waitcnt vmcnt(0)""")
    for r in range(1, YREP):
        for i in range(8):
            e(f"v_add_f32 v{YL+i}, v{YL+i}, v{YL+8*r+i}")
    PK = 40
    def rnd(base):
        for i in range(4):
            e(f"v_cvt_pk_bf16_f32 v{PK+i}, v{base+2*i}, v{base+2*i+1}")
        for i in range(4):
            e(f"""v_lshlrev_b32 v{base+2*i}, 16, v{PK+i}
v_and_b32 v{base+2*i+1}, 0xffff0000, v{PK+i}""")
    rnd(YL)
    for i in range(8):
        e(f"v_mul_f32 v{YL+i}, v{YL+i}, v{SG}")
    rnd(YL)
    for i in range(4):
        e(f"""v_lshlrev_b32 v{YL+8+2*i}, 16, v{SX2+i}
v_and_b32 v{YL+8+2*i+1}, 0xffff0000, v{SX2+i}""")
    for i in range(8):
        e(f"v_add_f32 v{YL+i}, v{YL+i}, v{YL+8+i}")
    rnd(YL)
    for i in range(8):
        e(f"v_add_f32 v{YL+i}, v{YL+i}, v{SHF+i}")
    for i in range(4):
        e(f"v_cvt_pk_bf16_f32 v{PK+i}, v{YL+2*i}, v{YL+2*i+1}")
    e(f"buffer_store_dwordx4 {vr(PK,4)}, v{T+13}, s[{OUTR}:{OUTR+3}], s54 offen")
    if PROF:
        e("s_waitcnt vmcnt(0)")
        stamp(k, 7)
        dump(k, 8)

def gen_k34():
    k = K("k3_kernel")
    e = k.e
    e(f"""s_cmp_ge_u32 s2, {K34_GRID}
s_cbranch_scc1 k34_end
s_load_dwordx2 s[4:5], s[0:1], 80
v_lshrrev_b32 v5, 6, v0
v_and_b32 v1, 63, v0
v_readfirstlane_b32 s22, v5""")
    stamp(k, 0)
    e("s_waitcnt lgkmcnt(0)")
    srd(k, 8, 4, WS_SIZE)
    e(f"""s_cmp_ge_u32 s2, {NG}
s_cbranch_scc1 k34_p2""")
    gen_gemm(k)
    k.label("k34_p2")
    gen_p2(k)
    k.label("k34_end")
    e("s_endpgm")
    return k, 256, 100
```

```python
KVH   = 151552
BLK   = 4736
WS_KV = 0
WS_QM = 0x500000
WS_QR = 0x700000
WS_KNM = 0x740000
WS_KNR = 0x742000
WS_OP = 0x800000
WS_WOP = 0xA80000
WS_H  = 0xC00000
WS_ST = 0xE80000
WS_Y  = 0xE86000
WS_CNT = 0xE8A800
WS_CNTG = 0xE8A880
WS_FLG = 0xE8C880
ZERO_BYTES = 0xCAC0
WS_WSUM = 0xE8D000
WS_XST = 0xE90000
WS_CST = 0xEA0000
WS_SIZE = 0x1000000
YREP = 8
S = 2048; D = 576; H = 32; DH = 18; F = 4608
import math, struct
QSCALE = math.log2(math.e) / math.sqrt(18.0)
def f32hex(x):
    return "0x%08x" % struct.unpack("<I", struct.pack("<f", x))[0]
HUGE = 0x40000000
```

```python
import sys
from asmlib import *
from layout import *
import importlib
def build(kernels, path):
    head = "; LN1+QKV | attention | out-proj | LN2+router+FFN   (generated by gen/gen.py)\n"
    body = '.amdgcn_target "amdgcn-amd-amdhsa--gfx950"\n.text\n'
    desc = '.section .rodata,"a"\n'
    for gf, grid, block, lds in kernels:
        k, nv, ns = gf()
        head += f"; @launch kernel={k.name} grid=({grid},1,1) block=({block},1,1) lds={lds}\n"
        body += kernel_text(k)
        desc += kernel_desc(k.name, nv, ns)
    open(path, "w").write(head + body + desc)
if __name__ == "__main__":
    from k1 import gen_k1
    ks = [(gen_k1, 256, 512, 131072)]
    try:
        from k2 import gen_k2, K2_LDS
        ks.append((gen_k2, 256, 512, K2_LDS))
        import os
        if os.environ.get("SPLIT34"):
            from k3 import gen_k3, K3_LDS
            ks.append((gen_k3, 288, 256, K3_LDS))
            from k4 import gen_k4, K4_LDS
            ks.append((gen_k4, 256, 512, K4_LDS))
        else:
            from k34 import gen_k34, K34_LDS, K34_GRID
            ks.append((gen_k34, K34_GRID, 256, K34_LDS))
    except ImportError as ex:
        print("partial build:", ex)
    out = sys.argv[1] if len(sys.argv) > 1 else "sequential_preLN__mha_block__moe_arch_mod__prompt.s"
    build(ks, out)
```

```python
from asmlib import *
from layout import *
import os
PROF = int(os.environ.get("PROF", "0"))
STATPK = int(os.environ.get("STATPK", "1"))

def gen_k1():
    k = K("k1_kernel")
    e = k.e
    def stamp(i):
        if PROF:
            e(f"s_memtime s[{88+2*i}:{89+2*i}]")
    XA, WA = 16, 20
    WSR, WOR, WRR, ZR = 24, 28, 32, 52
    LANE, M, HALF = 1, 2, 3
    T = 22
    Lend = "k1_end"
    e(f"""s_cmp_ge_u32 s2, 256
s_cbranch_scc1 {Lend}
s_load_dwordx4 s[4:7], s[0:1], 0
s_load_dwordx4 s[12:15], s[0:1], 72
{"s_memtime s[88:89]" if PROF else ""}
{"s_memrealtime s[98:99]" if PROF else ""}
v_lshrrev_b32 v{T}, 6, v0
v_and_b32 v{LANE}, 63, v0
v_readfirstlane_b32 s38, v{T}
v_and_b32 v{M}, 31, v0
v_bfe_u32 v{HALF}, v0, 5, 1
s_and_b32 s36, s2, 7
s_lshl_b32 s36, s36, 1
s_bfe_u32 s46, s2, 0x10003
s_add_u32 s36, s36, s46
s_lshr_b32 s37, s2, 4
s_mov_b32 s47, 0x3f803f80
s_mul_i32 s50, s37, 216
s_sub_u32 s46, s37, 11
s_lshl_b32 s46, s46, 8
s_add_u32 s46, s46, 2304
s_cmp_ge_u32 s37, 11
s_cselect_b32 s50, s46, s50
s_cselect_b32 s48, 1, 0
s_lshr_b32 s67, s38, 2
s_and_b32 s38, s38, 3
s_waitcnt lgkmcnt(0)
""")
    srd(k, XA, 4, S * D * 2)
    srd(k, WA, 6, D * 3 * D * 2)
    srd(k, WSR, 14, WS_SIZE)
    e(f"""s_cmp_eq_u32 s67, 1
s_cbranch_scc1 k1_prod0""")
    XOE, XOO, WOFF = 4, 5, 6
    WOT, WOH = 16, 8
    DBG = 56
    SCR = 32768
    e(f"""s_load_dwordx2 s[8:9], s[0:1], 16
s_load_dwordx2 s[10:11], s[0:1], 32
v_lshrrev_b32 v{T}, 3, v{LANE}
v_lshrrev_b32 v{T+1}, 4, v{LANE}
v_and_b32 v{T+2}, 7, v{LANE}
v_xor_b32 v{T+2}, v{T+2}, v{T+1}
v_mul_u32_u24 v{T}, 1152, v{T}
v_lshl_add_u32 v{XOE}, v{T+2}, 4, v{T}
v_xor_b32 v{XOO}, 64, v{XOE}
v_and_b32 v{T+3}, 15, v{LANE}
v_lshlrev_b32 v{T+4}, 2, v{T+1}
v_xor_b32 v{T+3}, v{T+3}, v{T+4}
v_mul_u32_u24 v{T+4}, 3456, v{T+1}
v_lshl_add_u32 v{WOFF}, v{T+3}, 4, v{T+4}
s_lshl_b32 s46, s48, 1
s_add_u32 s46, s46, 14
v_cmp_gt_u32 s[60:61], s46, v{T+3}
v_mov_b32 v{T+4}, {HUGE}
s_lshl_b32 s41, s36, 7
s_lshl_b32 s46, s38, 5
v_cndmask_b32 v{WOFF}, v{T+4}, v{WOFF}, s[60:61]
s_add_u32 s41, s41, s46
s_mul_i32 s41, s41, 1152
s_mul_i32 s42, s38, {16*3456}
s_add_u32 s42, s42, s50
s_lshl_b32 s43, s38, 12
""")

    def dma_stage():
        for j in range(4):
            e(f"""s_add_u32 m0, s43, {j*1024}
s_add_u32 s46, s41, {j*9216}
buffer_load_dwordx4 v{XOE if j % 2 == 0 else XOO}, s[{XA}:{XA+3}], s46 offen lds
s_add_u32 m0, s43, {16384+j*1024}
s_add_u32 s46, s42, {j*13824}
buffer_load_dwordx4 v{WOFF}, s[{WA}:{WA+3}], s46 offen lds""")
        e(f"""s_add_u32 s41, s41, 128
s_add_u32 s42, s42, {64*3456}
s_add_u32 s43, s43, 32768
s_and_b32 s43, s43, 0x1ffff""")

    e("s_mov_b32 s44, 0")
    POLL = 12
    LL, LL2, LPROD, LCONT, LSIG = "k1_lloop", "k1_lskip", "k1_prod", "k1_cont", "k1_sig"
    k.label(LL)
    e(f"""s_cmp_lt_u32 s44, 3
s_cbranch_scc1 {LL2}
s_waitcnt vmcnt(16)
s_barrier""")
    k.label(LL2)
    dma_stage()
    e(f"""s_add_u32 s44, s44, 1
s_cmp_eq_u32 s44, 1
s_cbranch_scc1 k1_wo
""")
    k.label(LCONT)
    e(f"""s_cmp_lt_u32 s44, 9
s_cbranch_scc1 {LL}
buffer_load_dword v{POLL+2}, v{POLL}, s[{DBG}:{DBG+3}], 0 offen sc1
s_waitcnt vmcnt(17)
s_barrier
s_waitcnt vmcnt(9)
s_barrier
s_mov_b32 s62, 0
s_mov_b32 s74, 0
s_waitcnt vmcnt(0)
s_branch k1_pchk
""")
    k.label("k1_poll")
    e(f"""s_sleep 8
buffer_load_dword v{POLL+2}, v{POLL}, s[{DBG}:{DBG+3}], 0 offen sc1
s_waitcnt vmcnt(0)""")
    k.label("k1_pchk")
    e(f"""v_readfirstlane_b32 s63, v{POLL+2}
s_add_u32 s62, s62, 1
s_cmp_ge_u32 s63, {17 if os.environ.get("K1FB") else 16}
s_cbranch_scc1 k1_polled
s_cmp_lt_u32 s62, {int(os.environ.get("K1POLL", "64"))}
s_cbranch_scc1 k1_poll
s_mov_b32 s64, 0
s_mov_b32 s73, 1
s_mov_b32 s74, 1
s_branch {LPROD}""")
    k.label("k1_polled")
    e(f"""s_lshl_b32 s46, s36, 10
s_lshl_b32 s62, s38, 8
s_add_u32 s46, s46, s62
s_add_u32 s46, s46, {WS_XST}
v_lshlrev_b32 v{T}, 3, v{M}
buffer_load_dwordx2 v[32:33], v{T}, s[{WSR}:{WSR+3}], s46 offen sc1
s_barrier
s_cmp_eq_u32 s74, 0
s_cbranch_scc1 k1_fetched
buffer_load_dwordx2 v[32:33], v{T}, s[{WSR}:{WSR+3}], s46 offen sc1""")
    k.label("k1_fetched")
    e(f"""v_add_u32 v{T}, s62, v{T}
s_waitcnt vmcnt(0)
ds_write_b64 v{T}, v[32:33] offset:{SCR}
s_waitcnt lgkmcnt(0)
s_barrier
s_branch k1_side
""")
    k.label("k1_wo")
    e(f"""s_lshl_b32 s46, s36, 2
v_mov_b32 v{POLL}, s46
s_waitcnt lgkmcnt(0)""")
    srd(k, WOR, 8, D * D * 2)
    srd(k, WRR, 10, D * 2)
    srd(k, DBG, 12, 256)
    e(f"""s_lshl_b32 s51, s38, 8
s_add_u32 s51, s51, s2
s_mul_i32 s68, s51, 1821
s_lshr_b32 s68, s68, 16
s_mul_i32 s69, s68, 36
s_sub_u32 s69, s51, s69
s_mul_i32 s70, s69, {18*1152}
s_sub_u32 s46, s69, 32
s_mul_i32 s46, s46, {144*1152}
s_add_u32 s46, s46, {16*1152}
s_cmp_ge_u32 s69, 32
s_cselect_b32 s70, s46, s70
s_cselect_b32 s71, {72*1152}, {8*1152}
s_cselect_b32 s72, {18*1152}, {2*1152}
s_cmp_ge_u32 s51, 648
s_cselect_b32 s70, {HUGE}, s70
v_and_b32 v{T}, 0x13, v{M}
v_and_b32 v{T+1}, 4, v{M}
v_lshl_or_b32 v{T}, v{T+1}, 1, v{T}
v_and_b32 v{T+1}, 8, v{M}
v_lshrrev_b32 v{T+1}, 1, v{T+1}
v_or_b32 v{T}, v{T}, v{T+1}
s_lshl_b32 s68, s68, 5
v_add_u32 v{T}, s68, v{T}
v_lshlrev_b32 v{T}, 1, v{T}
v_mul_lo_u32 v{T+1}, v{HALF}, s71
v_add_u32 v{T}, v{T}, v{T+1}
""")
    for jj in range(4):
        e(f"""buffer_load_ushort v{WOT+jj}, v{T}, s[{WOR}:{WOR+3}], s70 offen
buffer_load_ushort v{WOH+jj}, v{T}, s[{WOR}:{WOR+3}], s70 offen offset:1152""")
        if jj < 3:
            e("s_add_u32 s70, s70, s72")
    e(f"s_branch {LCONT}")
    k.label("k1_prod0")
    e(f"""s_mov_b32 s64, s37
s_mov_b32 s73, 0""")
    k.label(LPROD)
    DX, SX, SQ, UU = 176, 40, 42, 44
    PX, PX3 = 32, 33
    e(f"""v_mul_u32_u24 v{PX}, 1152, v{HALF}
v_lshl_add_u32 v{PX}, v{M}, 4, v{PX}
v_cmp_gt_u32 s[60:61], 8, v{M}
v_mov_b32 v{T+4}, {HUGE}
s_nop 0
v_cndmask_b32 v{PX3}, v{T+4}, v{PX}, s[60:61]
""")
    k.label("k1_ploop")
    e(f"""s_lshl_b32 s46, s36, 7
s_lshl_b32 s68, s64, 3
s_add_u32 s46, s46, s68
s_lshl_b32 s68, s38, 1
s_add_u32 s68, s46, s68
s_mul_i32 s46, s68, 1152
buffer_load_dwordx4 {vr(DX,4)}, v{PX}, s[{XA}:{XA+3}], s46 offen
buffer_load_dwordx4 {vr(DX+4,4)}, v{PX}, s[{XA}:{XA+3}], s46 offen offset:512
buffer_load_dwordx4 {vr(DX+8,4)}, v{PX3}, s[{XA}:{XA+3}], s46 offen offset:1024
s_cmp_eq_u32 s73, 0
s_cbranch_scc1 k1_compute
""")
    k.label("k1_pfin")
    for r in range(40, 44):
        e(f"v_mov_b32 v{r}, 0")
    for i in range(12):
        u = UU + 2 * (i % 4)
        if i % 4 == 0:
            e(f"s_waitcnt vmcnt({2 - i//4})")
        e(f"""v_lshlrev_b32 v{u}, 16, v{DX+i}
v_and_b32 v{u+1}, 0xffff0000, v{DX+i}
v_add_f32 v{SX}, v{SX}, v{u}
v_add_f32 v{SX+1}, v{SX+1}, v{u+1}
v_fmac_f32 v{SQ}, v{u}, v{u}
v_fmac_f32 v{SQ+1}, v{u+1}, v{u+1}""")
    e(f"""v_add_f32 v{SX}, v{SX}, v{SX+1}
v_add_f32 v{SQ}, v{SQ}, v{SQ+1}
s_lshl_b32 s46, s68, 3
s_add_u32 s46, s46, {WS_XST}""")
    for sh, rm in [("row_shr:1", "0xf"), ("row_shr:2", "0xf"), ("row_shr:4", "0xf"), ("row_shr:8", "0xf"), ("row_bcast:15", "0xa")]:
        e(f"""v_add_f32_dpp v{SX}, v{SX}, v{SX} {sh} row_mask:{rm} bank_mask:0xf
v_add_f32_dpp v{SQ}, v{SQ}, v{SQ} {sh} row_mask:{rm} bank_mask:0xf
s_nop 0""")
    A_T, B_T = 22, 23
    e(f"""v_mul_f32 v{T+2}, {f32hex(1.0/576)}, v{SX}
v_mul_f32 v{T+3}, {f32hex(1.0/576)}, v{SQ}
v_fma_f32 v{T+3}, -v{T+2}, v{T+2}, v{T+3}
v_max_f32 v{T+3}, 0, v{T+3}
v_cvt_pk_bf16_f32 v{T+2}, v{T+2}, v{T+2}
v_cvt_pk_bf16_f32 v{T+3}, v{T+3}, v{T+3}
v_and_b32 v{T+2}, 0xffff0000, v{T+2}
v_and_b32 v{T+3}, 0xffff0000, v{T+3}
v_add_f32 v{T+3}, {f32hex(1e-5)}, v{T+3}
v_cvt_pk_bf16_f32 v{T+3}, v{T+3}, v{T+3}
v_and_b32 v{T+3}, 0xffff0000, v{T+3}
v_sqrt_f32 v{T+3}, v{T+3}
v_sub_f32 v{B_T}, 0, v{T+2}
v_cvt_pk_bf16_f32 v{T+3}, v{T+3}, v{T+3}
v_and_b32 v{T+3}, 0xffff0000, v{T+3}
v_rcp_f32 v{A_T}, v{T+3}
v_lshlrev_b32 v{T+2}, 3, v{HALF}
s_mov_b32 exec_lo, 0x80000000
s_mov_b32 exec_hi, 0x80000000
buffer_store_dwordx2 v[{A_T}:{B_T}], v{T+2}, s[{WSR}:{WSR+3}], s46 offen sc1
s_mov_b64 exec, -1
s_cmp_eq_u32 s73, 0
s_cbranch_scc1 k1_go
s_add_u32 s64, s64, 1
s_waitcnt vmcnt(0)
s_cmp_lt_u32 s64, 16
s_cbranch_scc1 k1_ploop
s_branch k1_polled
""")
    k.label("k1_side")
    e(f"""s_lshl_b32 s46, s51, 10
s_add_u32 s46, s46, {WS_WOP}
s_cmp_ge_u32 s51, 648
s_cselect_b32 s46, {HUGE}, s46
v_lshlrev_b32 v{T}, 4, v{LANE}
v_lshl_or_b32 v{WOT}, v{WOH}, 16, v{WOT}
v_lshl_or_b32 v{WOT+1}, v{WOH+1}, 16, v{WOT+1}
v_lshl_or_b32 v{WOT+2}, v{WOH+2}, 16, v{WOT+2}
v_lshl_or_b32 v{WOT+3}, v{WOH+3}, 16, v{WOT+3}
buffer_store_dwordx4 {vr(WOT,4)}, v{T}, s[{WSR}:{WSR+3}], s46 offen
s_cmp_lt_u32 s2, 240
s_cbranch_scc1 {Lend}
s_add_u32 s{ZR}, s14, {WS_ST}
s_addc_u32 s{ZR+1}, s15, 0
s_and_b32 s{ZR+1}, s{ZR+1}, 0xffff
s_mov_b32 s{ZR+2}, {ZERO_BYTES}
s_mov_b32 s{ZR+3}, 0x20000
s_sub_u32 s46, s2, 240
s_lshl_b32 s46, s46, 12
v_lshlrev_b32 v{T+1}, 4, v0
v_mov_b32 v32, 0
v_mov_b32 v33, 0
v_mov_b32 v34, 0
v_mov_b32 v35, 0
buffer_store_dwordx4 v[32:35], v{T+1}, s[{ZR}:{ZR+3}], s46 offen
s_cmp_lg_u32 s51, 1023
s_cbranch_scc1 {Lend}
v_lshlrev_b32 v{T+1}, 2, v{LANE}
""")
    for i in range(5):
        e(f"buffer_load_dword v{36+i}, v{T+1}, s[{WRR}:{WRR+3}], 0 offen offset:{256*i}")
    e(f"v_mov_b32 v{T+2}, 0\ns_waitcnt vmcnt(0)")
    for i in range(5):
        e(f"v_dot2_f32_bf16 v{T+2}, v{36+i}, s47, v{T+2}")
    e("s_nop 3")
    for sh in ["row_shr:1", "row_shr:2", "row_shr:4", "row_shr:8"]:
        e(f"""v_mov_b32 v{T+3}, 0
s_nop 1
v_mov_b32_dpp v{T+3}, v{T+2} {sh} row_mask:0xf bank_mask:0xf
v_add_f32 v{T+2}, v{T+2}, v{T+3}""")
    for sh, rm in [("row_bcast:15", "0xa"), ("row_bcast:31", "0xc")]:
        e(f"""v_mov_b32 v{T+3}, 0
s_nop 1
v_mov_b32_dpp v{T+3}, v{T+2} {sh} row_mask:{rm} bank_mask:0xf
v_add_f32 v{T+2}, v{T+2}, v{T+3}""")
    e(f"""v_mov_b32 v{T+1}, {WS_WSUM}
s_mov_b32 exec_lo, 0
s_mov_b32 exec_hi, 0x80000000
buffer_store_dword v{T+2}, v{T+1}, s[{WSR}:{WSR+3}], 0 offen
s_endpgm
""")
    k.label("k1_compute")
    XRD0, XRD1, WRD0, WRD1 = 7, 8, 9, 10
    XA0, XA1, WA0, WA1 = 11, 12, 13, 14
    XSUM, XSQ, WCS = 16, 18, 20
    XAK = [[XA0, 4, 5, 6], [XA1, 15, 16, 17]]
    U = 220
    buf = [dict(X=[32+16*i, 36+16*i], W=[40+16*i, 44+16*i]) for i in range(4)]
    acc = lambda t, f: 96 + 32 * t + 16 * f
    e(f"""s_lshr_b32 s39, s38, 1
s_and_b32 s40, s38, 1
s_mov_b32 s49, 0xffff0000
v_bfe_u32 v{T}, v{M}, 1, 3
v_xor_b32 v{T}, v{T}, v{HALF}
v_lshlrev_b32 v{T+1}, 7, v{M}
v_lshl_add_u32 v{T+1}, v{T}, 4, v{T+1}
s_lshl_b32 s46, s38, 12
v_add_u32 v{XRD0}, s46, v{T+1}
v_xor_b32 v{XRD1}, 4096, v{XRD0}
""")
    R_, CQ, A_, KROW, QUAD, PERM = T, T+1, T+2, T+3, T+4, T+5
    e(f"""v_bfe_u32 v{R_}, v{LANE}, 2, 2
v_and_b32 v{CQ}, 3, v{LANE}
v_bfe_u32 v{A_}, v{LANE}, 4, 1
v_lshl_add_u32 v{KROW}, v{HALF}, 3, v{R_}
v_lshl_add_u32 v{QUAD}, v{A_}, 2, v{CQ}
v_and_b32 v{PERM}, 1, v{CQ}
v_lshlrev_b32 v{PERM}, 1, v{PERM}
v_lshrrev_b32 v{T+6}, 1, v{CQ}
v_or_b32 v{PERM}, v{PERM}, v{T+6}
v_mad_u32_u24 v{PERM}, v{A_}, 5, v{PERM}
s_lshl_b32 s61, s40, 1
s_add_u32 s62, s61, 1
s_add_u32 s61, s61, s39
s_sub_u32 s62, s62, s39
""")
    for f, (sft, dst) in enumerate([(61, WRD0), (62, WRD1)]):
        UB = T + 6
        e(f"""s_mul_i32 s46, s{sft}, 72
v_lshl_add_u32 v{UB}, v{PERM}, 3, s46
v_min_u32 v{T+7}, 2, v{QUAD}
v_mul_u32_u24 v{T+7}, 72, v{T+7}
v_add_u32 v{T+7}, 32, v{T+7}
s_cmp_eq_u32 s{sft}, 3
s_cselect_b64 vcc, -1, 0
s_lshl_b32 s46, s{sft}, 6
v_lshl_add_u32 v{T+8}, v{QUAD}, 3, s46
v_cndmask_b32 v{UB}, v{UB}, v{T+7}, vcc
s_cmp_eq_u32 s48, 1
s_cselect_b64 vcc, -1, 0
s_nop 1
v_cndmask_b32 v{UB}, v{UB}, v{T+8}, vcc
v_lshrrev_b32 v{T+7}, 4, v{UB}
v_lshlrev_b32 v{T+8}, 2, v{R_}
v_xor_b32 v{T+7}, v{T+7}, v{T+8}
v_and_b32 v{UB}, 15, v{UB}
v_lshl_add_u32 v{UB}, v{T+7}, 4, v{UB}
v_lshl_add_u32 v{UB}, v{KROW}, 8, v{UB}
v_add_u32 v{dst}, 16384, v{UB}
""")
    for r in list(range(64, 176)):
        e(f"v_mov_b32 v{r}, 0")
    for r in range(28, 32):
        e(f"v_mov_b32 v{r}, s47")
    e(f"""s_mov_b32 s44, 0
s_mov_b32 s45, 0
s_lshl_b32 s46, s36, 2
v_mov_b32 v18, s46
v_mov_b32 v19, 1""")
    srd(k, DBG, 12, 256)

    def reads(ks, b):
        if os.environ.get("NOREAD"):
            return
        e(f"""ds_read_b128 {vr(b['X'][0],4)}, v{XAK[0][ks]}
ds_read_b128 {vr(b['X'][1],4)}, v{XAK[1][ks]}
ds_read_b64_tr_b16 {vr(b['W'][0],2)}, v{WA0} offset:{16*ks*256}
ds_read_b64_tr_b16 {vr(b['W'][0]+2,2)}, v{WA0} offset:{(16*ks+4)*256}
ds_read_b64_tr_b16 {vr(b['W'][1],2)}, v{WA1} offset:{16*ks*256}
ds_read_b64_tr_b16 {vr(b['W'][1]+2,2)}, v{WA1} offset:{(16*ks+4)*256}""")

    def mfmas(b, isV):
        i = 0
        for t in range(2):
            for f in range(2):
                a = acc(t, f)
                X, W = vr(b['X'][t], 4), vr(b['W'][f], 4)
                if os.environ.get("NOMFMA"):
                    pass
                elif isV:
                    e(f"v_mfma_f32_32x32x16_bf16 {vr(a,16)}, {X}, {W}, {vr(a,16)}")
                else:
                    e(f"v_mfma_f32_32x32x16_bf16 {vr(a,16)}, {W}, {X}, {vr(a,16)}")
        mfma_cs(b, isV)

    def mfma_cs(b, isV):
        if os.environ.get("NOCS"): return
        W = vr(b['W'][0], 4)
        if isV:
            e(f"v_mfma_f32_32x32x16_bf16 v[160:175], v[28:31], {W}, v[160:175]")
        else:
            e(f"v_mfma_f32_32x32x16_bf16 v[160:175], {W}, v[28:31], v[160:175]")

    def mainloop(isV):
        L = k.newlabel("loop")
        k.lines.append(".p2align 3")
        k.label(L)
        e(f"""s_barrier
v_add_u32 v{XA0}, s45, v{XRD0}
v_add_u32 v{XA1}, s45, v{XRD1}
v_add_u32 v{WA0}, s45, v{WRD0}
v_add_u32 v{WA1}, s45, v{WRD1}""")
        if PROF:
            e("s_cmp_lg_u32 s44, 0\ns_cbranch_scc1 " + L + "x")
            stamp(1)
            k.label(L + "x")
            e("s_memtime s[76:77]\ns_waitcnt lgkmcnt(0)\ns_sub_u32 s76, s76, s88\ns_mov_b32 m0, s44\ns_nop 0\nv_writelane_b32 v200, s76, m0")
        reads(0, buf[0])
        for t in range(2):
            for ks in range(1, 4):
                e(f"v_xor_b32 v{XAK[t][ks]}, {ks<<5}, v{XAK[t][0]}")
        mfmas(buf[2], isV)
        reads(1, buf[1])
        mfmas(buf[3], isV)
        reads(2, buf[2])
        e(f"""s_cmp_lg_u32 s44, 2
s_cbranch_scc1 {L}z
s_cmp_lg_u32 s38, 0
s_cbranch_scc1 {L}z
s_mov_b64 exec, 1
buffer_atomic_add v19, v18, s[{DBG}:{DBG+3}], 0 offen
s_mov_b64 exec, -1""")
        k.label(L + "z")
        e("s_waitcnt lgkmcnt(12)")
        mfmas(buf[0], isV)
        reads(3, buf[3])
        e("s_waitcnt lgkmcnt(12)")
        mfmas(buf[1], isV)
        e(f"""s_add_u32 s45, s45, 32768
s_and_b32 s45, s45, 0x1ffff
s_add_u32 s44, s44, 1
s_cmp_lg_u32 s44, 2
s_cbranch_scc1 {L}y
s_waitcnt vmcnt(0)""")
        k.label(L + "y")
        e(f"""s_cmp_lt_u32 s44, 9
s_waitcnt lgkmcnt(0)
s_cbranch_scc1 {L}""")
        mfmas(buf[2], isV)
        mfmas(buf[3], isV)
        stamp(2)

    SCR = 32768
    def stats_final(isV):
        if isV:
            e(f"""s_lshl_b32 s46, s61, 7
v_lshl_add_u32 v{T+5}, v{M}, 2, s46
s_nop 7
s_nop 3
v_mov_b32 v21, v160
ds_write_b32 v{T+5}, v160 offset:{SCR+1024}""")
        else:
            e(f"""s_lshl_b32 s46, s61, 7
v_lshl_add_u32 v{T+5}, v{HALF}, 6, s46
s_nop 7
s_nop 3
s_mov_b32 exec_lo, 1
s_mov_b32 exec_hi, 1
ds_write_b128 v{T+5}, v[160:163] offset:{SCR+1024}
ds_write_b128 v{T+5}, v[164:167] offset:{SCR+1024+16}
ds_write_b128 v{T+5}, v[168:171] offset:{SCR+1024+32}
ds_write_b128 v{T+5}, v[172:175] offset:{SCR+1024+48}
s_mov_b64 exec, -1""")
        e("s_waitcnt lgkmcnt(0)\ns_barrier")

    LV = "k1_vpath"
    LDONE = "k1_done"
    e("s_branch k1_pfin")
    k.label("k1_go")
    e(f"s_cmp_eq_u32 s48, 1\ns_cbranch_scc1 {LV}")
    mainloop(False)
    stats_final(False)
    AB = [22, 24]
    CS = [160, 176]
    e(f"""s_lshl_b32 s46, s38, 8
v_lshl_add_u32 v{T+4}, v{M}, 3, s46
v_xor_b32 v{T+5}, 256, v{T+4}
ds_read_b64 v[22:23], v{T+4} offset:{SCR}
ds_read_b64 v[24:25], v{T+5} offset:{SCR}
""")
    e(f"""s_lshl_b32 s46, s62, 7
v_lshl_add_u32 v{T+4}, v{HALF}, 6, s46
ds_read_b128 v[176:179], v{T+4} offset:{SCR+1024}
ds_read_b128 v[180:183], v{T+4} offset:{SCR+1024+16}
ds_read_b128 v[184:187], v{T+4} offset:{SCR+1024+32}
ds_read_b128 v[188:191], v{T+4} offset:{SCR+1024+48}""")
    e(f"v_lshlrev_b32 v{T+7}, 4, v{LANE}")
    L16 = T + 7
    e(f"""s_lshl_b32 s63, s36, 2
s_xor_b32 s64, s38, 1
s_add_u32 s64, s64, s63
s_add_u32 s63, s63, s38
s_mul_i32 s65, s37, 3
s_waitcnt lgkmcnt(0)
""")
    SC = 32
    for f, sft in enumerate([61, 62]):
        Lrem, Lnext = k.newlabel("rem"), k.newlabel("next")
        e(f"""s_cmp_eq_u32 s{sft}, 3
s_cbranch_scc1 {Lrem}
s_add_u32 s66, s65, s{sft}
s_cmp_ge_u32 s66, 32
s_cbranch_scc1 {Lnext}
s_and_b32 s67, s66, 15
s_lshl_b32 s67, s67, 1
s_cmp_lt_u32 s66, 16
s_cselect_b32 s68, {f32hex(QSCALE)}, 1.0
s_cselect_b32 s69, 65536, {KVH}
""")
        for t, stt in enumerate([63, 64]):
            a = acc(t, f)
            e(f"""s_lshr_b32 s70, s{stt}, 1
s_mul_i32 s70, s70, {BLK}
s_and_b32 s71, s{stt}, 1
s_lshl_b32 s71, s71, 10
s_add_u32 s70, s70, s71
s_lshl_b32 s71, s{stt}, 10
s_add_u32 s71, s71, {WS_QM}
s_cmp_lt_u32 s66, 16
s_cselect_b32 s70, s71, s70
s_mul_i32 s71, s67, s69
s_add_u32 s70, s70, s71
s_add_u32 s71, s70, s69
v_mul_f32 v{SC}, s68, v{AB[t]}
""")
            for i in range(8):
                e(f"v_pk_fma_f32 {vr(a+2*i,2)}, {vr(CS[f]+2*i,2)}, v[{AB[t]}:{AB[t]+1}], {vr(a+2*i,2)} op_sel:[0,1,0] op_sel_hi:[1,1,1]")
            for i in range(8):
                e(f"v_pk_mul_f32 {vr(a+2*i,2)}, {vr(a+2*i,2)}, v[{SC}:{SC+1}] op_sel_hi:[1,0]")
            P = 40 + 8 * t
            for i in range(8):
                e(f"v_cvt_pk_bf16_f32 v{P+i}, v{a+2*i}, v{a+2*i+1}")
            e(f"""buffer_store_dwordx4 {vr(P,4)}, v{L16}, s[{WSR}:{WSR+3}], s70 offen
buffer_store_dwordx4 {vr(P+4,4)}, v{L16}, s[{WSR}:{WSR+3}], s71 offen""")
        e(f"""s_cmp_lt_u32 s66, 16
s_cbranch_scc1 {Lnext}""")
        NN = [[56, 58], [60, 62]]
        for t in range(2):
            a = acc(t, f)
            for hb in range(2):
                N = NN[t][hb]
                b = a + 8 * hb
                e(f"v_pk_mul_f32 v[{N}:{N+1}], {vr(b,2)}, {vr(b,2)}")
            for i in range(1, 4):
                for hb in range(2):
                    N = NN[t][hb]
                    b = a + 8 * hb
                    e(f"v_pk_fma_f32 v[{N}:{N+1}], {vr(b+2*i,2)}, {vr(b+2*i,2)}, v[{N}:{N+1}]")
        for t in range(2):
            for hb in range(2):
                N = NN[t][hb]
                e(f"v_add_f32 v{N}, v{N}, v{N+1}")
        e(f"""s_lshl_b32 s70, s67, 8
s_and_b32 s71, s63, 62
s_lshl_b32 s71, s71, 2
v_permlane32_swap_b32 v56, v58
v_permlane32_swap_b32 v60, v62
s_add_u32 s70, s70, s71
s_add_u32 s70, s70, {WS_KNM}
v_add_f32 v56, v56, v58
v_add_f32 v60, v60, v62
v_max_f32 v56, v56, v60
v_lshlrev_b32 v58, 8, v{HALF}
s_nop 0
v_max_f32_dpp v56, v56, v56 row_shr:1 row_mask:0xf bank_mask:0xf
s_nop 1
v_max_f32_dpp v56, v56, v56 row_shr:2 row_mask:0xf bank_mask:0xf
s_nop 1
v_max_f32_dpp v56, v56, v56 row_shr:4 row_mask:0xf bank_mask:0xf
s_nop 1
v_max_f32_dpp v56, v56, v56 row_shr:8 row_mask:0xf bank_mask:0xf
s_nop 1
v_max_f32_dpp v56, v56, v56 row_bcast:15 row_mask:0xa bank_mask:0xf
s_mov_b32 exec_lo, 0x80000000
s_mov_b32 exec_hi, 0x80000000
v_mov_b32 v57, v56
buffer_store_dwordx2 v[56:57], v58, s[{WSR}:{WSR+3}], s70 offen
s_mov_b64 exec, -1
""")
        e(f"s_branch {Lnext}")
        k.label(Lrem)
        for t, stt in enumerate([63, 64]):
            a = acc(t, f)
            e(f"""s_lshr_b32 s70, s{stt}, 1
s_mul_i32 s70, s70, {BLK}
s_and_b32 s71, s{stt}, 1
s_lshl_b32 s71, s71, 7
s_add_u32 s70, s70, s71
s_add_u32 s70, s70, 4480
s_lshl_b32 s71, s{stt}, 7
s_add_u32 s71, s71, {WS_QR}
s_lshl_b32 s73, s{stt}, 2
s_add_u32 s73, s73, {WS_KNR}
""")
            for j in range(3):
                b = 76 + 4 * j
                e(f"""s_add_u32 s66, s65, {j}
s_and_b32 s67, s66, 15
s_lshl_b32 s67, s67, 1
s_lshl_b32 s74, s67, 8
s_add_u32 s74, s74, s73
s_cmp_lt_u32 s66, 16
s_cselect_b32 s{b+1}, 8192, {KVH}
s_cselect_b32 s{b+2}, {f32hex(QSCALE)}, 1.0
s_cselect_b32 s{b}, s71, s70
s_cselect_b32 s{b+3}, {HUGE}, s74
s_mul_i32 s67, s67, s{b+1}
s_add_u32 s{b}, s{b}, s67
s_cmp_ge_u32 s66, 32
s_cselect_b32 s{b}, {HUGE}, s{b}
s_cselect_b32 s{b+3}, {HUGE}, s{b+3}
""")
            V = 32
            e(f"""v_cmp_eq_u32 s[74:75], 1, v{HALF}
v_mov_b32 v{V}, s76
v_mov_b32 v{V+1}, s77
v_mov_b32 v{V+2}, s78
v_mov_b32 v{V+3}, s79
v_mov_b32 v{V+4}, s80
v_mov_b32 v{V+5}, s81
v_mov_b32 v{V+6}, s82
v_mov_b32 v{V+7}, s83
v_cndmask_b32 v{V}, v{V}, v{V+4}, s[74:75]
v_cndmask_b32 v{V+1}, v{V+1}, v{V+5}, s[74:75]
v_cndmask_b32 v{V+2}, v{V+2}, v{V+6}, s[74:75]
v_cndmask_b32 v{V+3}, v{V+3}, v{V+7}, s[74:75]
v_mov_b32 v{V+4}, s84
v_mov_b32 v{V+7}, s87
v_mov_b32 v{V+5}, {HUGE}
v_cndmask_b32 v{V+4}, v{V+4}, v{V+5}, s[74:75]
v_cndmask_b32 v{V+7}, v{V+7}, v{V+5}, s[74:75]
v_lshl_add_u32 v{V}, v{M}, 2, v{V}
v_lshl_add_u32 v{V+4}, v{M}, 2, v{V+4}
v_add_u32 v{V+1}, v{V}, v{V+1}
v_add_u32 v{V+5}, s85, v{V+4}
v_mul_f32 v{V+2}, v{V+2}, v{AB[t]}
v_mul_f32 v{V+6}, s86, v{AB[t]}
""")
            for i in range(8):
                e(f"v_fma_f32 v{a+i}, v{CS[f]+i}, v{AB[t]+1}, v{a+i}")
            for i in range(8):
                e(f"v_mul_f32 v{a+i}, v{a+i}, v{V+2 if i < 4 else V+6}")
            P = 40
            for i in range(4):
                e(f"""v_cvt_pk_bf16_f32 v{P+i}, v{a+2*i}, v{a+2*i+1}
v_mul_f32 v{P+4+i}, v{a+2*i}, v{a+2*i}
v_fma_f32 v{P+4+i}, v{a+2*i+1}, v{a+2*i+1}, v{P+4+i}""")
            for i, ad in enumerate([V, V+1, V+4, V+5]):
                e(f"buffer_store_dword v{P+i}, v{ad}, s[{WSR}:{WSR+3}], 0 offen")
            for sh in ["row_shr:1", "row_shr:2", "row_shr:4", "row_shr:8"]:
                for i in range(4):
                    e(f"v_max_f32_dpp v{P+4+i}, v{P+4+i}, v{P+4+i} {sh} row_mask:0xf bank_mask:0xf")
            for i in range(4):
                e(f"v_max_f32_dpp v{P+4+i}, v{P+4+i}, v{P+4+i} row_bcast:15 row_mask:0xa bank_mask:0xf")
            e(f"""s_mov_b32 exec_lo, 0x80000000
s_mov_b32 exec_hi, 0x80000000
buffer_store_dword v{P+4}, v{V+3}, s[{WSR}:{WSR+3}], 0 offen
buffer_store_dword v{P+5}, v{V+3}, s[{WSR}:{WSR+3}], 0 offen offset:256
buffer_store_dword v{P+6}, v{V+7}, s[{WSR}:{WSR+3}], 0 offen
buffer_store_dword v{P+7}, v{V+7}, s[{WSR}:{WSR+3}], 0 offen offset:256
s_mov_b64 exec, -1
""")
        k.label(Lnext)
    e(f"s_branch {LDONE}")
    k.label(LV)
    mainloop(True)
    stats_final(True)
    RW = 160
    CSL = [21, 26]
    ADR = [(18, 19), (20, 27)]
    e(f"""s_lshl_b32 s46, s62, 7
v_lshl_add_u32 v{T+5}, v{M}, 2, s46
ds_read_b32 v{CSL[1]}, v{T+5} offset:{SCR+1024}
s_lshl_b32 s46, s38, 8
v_lshl_add_u32 v{T+8}, v{HALF}, 5, s46
v_xor_b32 v{T+9}, 256, v{T+8}
s_lshl_b32 s63, s36, 2
s_xor_b32 s64, s38, 1
s_add_u32 s64, s64, s63
s_add_u32 s63, s63, s38
s_sub_u32 s65, s37, 11
s_lshl_b32 s65, s65, 7
v_mov_b32 v32, s47
v_mov_b32 v33, s47
v_mov_b32 v34, s47
v_mov_b32 v35, s47
""")
    def rwread(t):
        for a in range(4):
            e(f"""ds_read_b128 {vr(RW+8*a,4)}, v{T+8+t} offset:{SCR+a*64}
ds_read_b128 {vr(RW+8*a+4,4)}, v{T+8+t} offset:{SCR+a*64+16}""")
    rwread(0)
    SLOTC = 0 | (13 << 5) | (9 << 10) | (4 << 15) | (17 << 20)
    for f, sft in enumerate([61, 62]):
        AD, AO = ADR[f]
        e(f"""s_lshl_b32 s66, s{sft}, 5
s_add_u32 s66, s66, s65
v_add_u32 v{T+2}, s66, v{M}
v_mul_u32_u24 v{T+3}, 3641, v{T+2}
v_lshrrev_b32 v{T+3}, 16, v{T+3}
v_mul_u32_u24 v{T+6}, 18, v{T+3}
v_sub_u32 v{T+2}, v{T+2}, v{T+6}
v_lshrrev_b32 v{T+6}, 2, v{T+2}
v_mul_u32_u24 v{T+6}, 5, v{T+6}
s_mov_b32 s46, {SLOTC}
v_bfe_u32 v{T+6}, s46, v{T+6}, 5
v_and_b32 v{T+7}, 3, v{T+2}
v_add_u32 v{T+6}, v{T+6}, v{T+7}
s_mov_b32 s46, {KVH}
v_mul_lo_u32 v{T+3}, v{T+3}, s46
v_mul_u32_u24 v{T+7}, 304, v{HALF}
v_add_u32 v{T+3}, v{T+3}, v{T+7}
s_cmp_ge_u32 s66, 576
s_cselect_b32 s46, {HUGE}, 0
v_add_u32 v{T+3}, s46, v{T+3}
v_lshl_add_u32 v{AD}, v{T+6}, 4, v{T+3}
v_add_u32 v{AO}, 128, v{T+3}
v_cmp_eq_u32 vcc, 0, v{T+2}
v_mov_b32 v{T+7}, {HUGE}
s_nop 0
v_cndmask_b32 v{AO}, v{T+7}, v{AO}, vcc
""")
    for t, stt in enumerate([63, 64]):
        e(f"""s_lshr_b32 s70, s{stt}, 1
s_mul_i32 s70, s70, {BLK}
s_and_b32 s71, s{stt}, 1
s_mul_i32 s71, s71, 1216
s_add_u32 s70, s70, s71
s_add_u32 s70, s70, 2048
s_waitcnt lgkmcnt(0)
""")
        for f in range(2):
            a = acc(t, f)
            for r in range(16):
                e(f"v_fma_f32 v{a+r}, v{CSL[f]}, v{RW+2*r+1}, v{a+r}")
            for r in range(16):
                e(f"v_mul_f32 v{a+r}, v{a+r}, v{RW+2*r}")
        if t == 0:
            rwread(1)
        for f in range(2):
            a = acc(t, f)
            AD, AO = ADR[f]
            P = 40 + 8 * f
            for i in range(8):
                e(f"v_cvt_pk_bf16_f32 v{P+i}, v{a+2*i}, v{a+2*i+1}")
            e(f"""buffer_store_dwordx4 {vr(P,4)}, v{AD}, s[{WSR}:{WSR+3}], s70 offen
buffer_store_dwordx4 {vr(P+4,4)}, v{AD}, s[{WSR}:{WSR+3}], s70 offen offset:608
buffer_store_dwordx4 v[32:35], v{AO}, s[{WSR}:{WSR+3}], s70 offen
buffer_store_dwordx4 v[32:35], v{AO}, s[{WSR}:{WSR+3}], s70 offen offset:608
""")
    k.label(LDONE)
    if PROF:
        e(f"""s_memtime s[94:95]
s_waitcnt vmcnt(0)
s_memtime s[96:97]
s_memrealtime s[78:79]
s_waitcnt lgkmcnt(0)
s_mov_b32 m0, 10
s_nop 0
v_writelane_b32 v200, s98, m0
s_mov_b32 m0, 11
s_nop 0
v_writelane_b32 v200, s78, m0
s_sub_u32 s90, s90, s88
s_sub_u32 s92, s92, s88
s_sub_u32 s94, s94, s88
s_sub_u32 s96, s96, s88
v_mov_b32 v192, s90
v_mov_b32 v193, s92
v_mov_b32 v194, s94
v_mov_b32 v195, s96
s_lshl_b32 s46, s2, 2
s_add_u32 s46, s46, s38
s_lshl_b32 s46, s46, 4
s_add_u32 s46, s46, 0xF10000
v_mov_b32 v196, 0
s_mov_b64 exec, 1
buffer_store_dwordx4 v[192:195], v196, s[{WSR}:{WSR+3}], s46 offen
s_mov_b64 exec, 0xffff
s_lshl_b32 s46, s2, 2
s_add_u32 s46, s46, s38
s_lshl_b32 s46, s46, 6
s_add_u32 s46, s46, 0xF40000
v_lshlrev_b32 v196, 2, v1
buffer_store_dword v200, v196, s[{WSR}:{WSR+3}], s46 offen
s_mov_b64 exec, -1""")
    k.label(Lend)
    e("s_endpgm")
    return k, (208 if PROF else 192), 102
```

```python
from asmlib import *
from layout import *
import os
PROF = int(os.environ.get("PROF", "0"))
NG = 256
NP2 = 256
NFFN = 144
L_X2 = 0
L_RED = 1152
L_PART = 1280
L_ACT = 1536
L_FLAG = 1792
L_YP = 4096
L_WG, L_WU = 4096, 40960
K34_LDS = 77824
K34_GRID = NG + NP2

def stamp(k, i):
    if PROF:
        k.e(f"s_memrealtime s[{80+2*i}:{81+2*i}]")
def dump(k, n):
    if PROF:
        k.e("s_waitcnt lgkmcnt(0)")
        k.e("s_mov_b64 exec, 1")
        k.e(f"s_lshl_b32 s78, s2, 7\ns_lshl_b32 s79, s22, 5\ns_add_u32 s78, s78, s79\ns_add_u32 s78, s78, 0xF20000\nv_mov_b32 v254, 0")
        for i in range(n):
            k.e(f"v_mov_b32 v255, s{80+2*i}\nbuffer_store_dword v255, v254, s[8:11], s78 offen offset:{4*i}")

def gen_gemm(k):
    e = k.e
    WSR, XR, WRR = 8, 12, 16
    LANE, M, HALF, L16 = 1, 2, 3, 4
    T = 5
    FR = 32
    ACC = 172
    e(f"""s_setprio 2
s_load_dwordx2 s[6:7], s[0:1], 0
s_load_dwordx2 s[20:21], s[0:1], 32
v_and_b32 v{M}, 31, v0
v_bfe_u32 v{HALF}, v0, 5, 1
v_lshlrev_b32 v{L16}, 4, v{LANE}
s_and_b32 s23, s2, 31
s_lshr_b32 s24, s2, 5
s_mul_i32 s25, s23, {2*36*1024}
s_mul_i32 s26, s22, {9*1024}
s_add_u32 s25, s25, s26
s_add_u32 s25, s25, {WS_OP}
s_mul_i32 s27, s24, {2*36*1024}
s_add_u32 s27, s27, s26
s_add_u32 s27, s27, {WS_WOP}
s_add_u32 s28, s25, {36*1024}
s_add_u32 s29, s27, {36*1024}
s_bfe_u32 s40, s24, 0x10001
s_add_u32 s40, s40, 16
s_mul_i32 s41, s40, {36*1024}
s_add_u32 s41, s41, s26
s_add_u32 s41, s41, {WS_WOP}
s_and_b32 s42, s24, 1
s_lshr_b32 s43, s24, 2
""")
    if os.environ.get("GOFF"):
        e("s_branch k3_noextra")
    e("""s_cmp_eq_u32 s42, 1
s_cselect_b32 s44, s28, s25
s_cselect_b32 s28, s25, s28
s_mov_b32 s25, s44""")
    W = f"s[{WSR}:{WSR+3}]"
    def loads(ks):
        b = FR + 20 * (ks % 7)
        off = (ks % 4) * 1024
        if ks and ks % 4 == 0:
            e("s_add_u32 s25, s25, 4096\ns_add_u32 s27, s27, 4096\ns_add_u32 s28, s28, 4096\ns_add_u32 s29, s29, 4096\ns_add_u32 s41, s41, 4096")
        e(f"""buffer_load_dwordx4 {vr(b,4)}, v{L16}, {W}, s25 offen offset:{off}
buffer_load_dwordx4 {vr(b+8,4)}, v{L16}, {W}, s27 offen offset:{off}
buffer_load_dwordx4 {vr(b+4,4)}, v{L16}, {W}, s28 offen offset:{off}
buffer_load_dwordx4 {vr(b+12,4)}, v{L16}, {W}, s29 offen offset:{off}
buffer_load_dwordx4 {vr(b+16,4)}, v{L16}, {W}, s41 offen offset:{off}""")
    for ks in range(7): loads(ks)
    e("s_waitcnt lgkmcnt(0)")
    srd(k, XR, 6, S * D * 2)
    srd(k, WRR, 20, D * 2)
    TK, FQ = 2, 3
    WADR, RADR, GOFF_, WOFF_ = 5, 6, 7, 31
    e(f"""v_and_b32 v{T+2}, 15, v{M}
v_lshlrev_b32 v{WADR}, 1, v{HALF}
v_xor_b32 v{WADR}, v{WADR}, v{T+2}
v_lshlrev_b32 v{WADR}, 4, v{WADR}
v_lshl_add_u32 v{WADR}, v{M}, 8, v{WADR}
s_lshl_b32 s36, s22, 14
v_add_u32 v{WADR}, s36, v{WADR}
v_lshlrev_b32 v30, 6, v{M}
v_lshl_add_u32 v30, v{HALF}, 5, v30
s_lshl_b32 s36, s22, 11
v_add_u32 v30, s36, v30
v_lshrrev_b32 v{TK}, 2, v{LANE}
v_and_b32 v{FQ}, 3, v{LANE}
v_lshlrev_b32 v{RADR}, 2, v{FQ}
v_xor_b32 v{RADR}, v{RADR}, v{TK}
v_lshlrev_b32 v{RADR}, 4, v{RADR}
v_lshl_add_u32 v{RADR}, v{TK}, 8, v{RADR}
s_lshl_b32 s36, s22, 12
v_add_u32 v{RADR}, s36, v{RADR}
v_mul_u32_u24 v{GOFF_}, 1152, v{TK}
v_lshl_add_u32 v29, v{FQ}, 3, v{GOFF_}
v_lshl_add_u32 v{GOFF_}, v{FQ}, 5, v{GOFF_}
v_lshlrev_b32 v{WOFF_}, 5, v{FQ}
v_lshlrev_b32 v28, 3, v{FQ}
s_lshr_b32 s30, s22, 1
s_xor_b32 s31, s30, s42
s_lshl_b32 s32, s23, 1
s_add_u32 s32, s32, s31
s_lshl_b32 s32, s32, 5
s_and_b32 s31, s22, 1
s_lshl_b32 s31, s31, 4
s_add_u32 s32, s32, s31
s_mul_i32 s34, s32, 1152
s_lshl_b32 s35, s24, 7
s_lshl_b32 s47, s40, 6
s_lshl_b32 s46, s43, 5
s_add_u32 s47, s47, s46
s_cmp_eq_u32 s30, 0
s_cselect_b32 s47, s47, {HUGE}
s_add_u32 s46, s34, s47
s_add_u32 s34, s34, s35
""")
    XV, WV, XE, WE = 8, 16, 24, 26
    acc = lambda a, b: ACC + 32 * a + 16 * b
    AE = ACC + 64
    nload = 35
    for ks in range(9):
        b = FR + 20 * (ks % 7)
        e(f"s_waitcnt vmcnt({nload - 5*(ks+1)})")
        for a in range(2):
            for n in range(2):
                c = vr(acc(a, n), 16) if ks else "0"
                e(f"v_mfma_f32_32x32x16_bf16 {vr(acc(a,n),16)}, {vr(b+8+4*n,4)}, {vr(b+4*a,4)}, {c}")
        c = vr(AE, 16) if ks else "0"
        e(f"v_mfma_f32_32x32x16_bf16 {vr(AE,16)}, {vr(b+16,4)}, {vr(b,4)}, {c}")
        if ks < 2:
            loads(ks + 7); nload += 5
        if ks == 1:
            e(f"""buffer_load_dwordx4 {vr(XV,4)}, v{GOFF_}, s[{XR}:{XR+3}], s34 offen
buffer_load_dwordx4 {vr(XV+4,4)}, v{GOFF_}, s[{XR}:{XR+3}], s34 offen offset:16
buffer_load_dwordx4 {vr(WV,4)}, v{WOFF_}, s[{WRR}:{WRR+3}], s35 offen
buffer_load_dwordx4 {vr(WV+4,4)}, v{WOFF_}, s[{WRR}:{WRR+3}], s35 offen offset:16
buffer_load_dwordx2 {vr(XE,2)}, v29, s[{XR}:{XR+3}], s46 offen
buffer_load_dwordx2 {vr(WE,2)}, v28, s[{WRR}:{WRR+3}], s47 offen""")
            nload += 6
    stamp(k, 1)
    WX = 32
    for i, cx in enumerate([1, 4, 5, 8, 9, 12, 13]):
        e(f"v_xor_b32 v{WX+i}, {cx*16}, v{WADR}")
    adr = {0: WADR, 1: WX, 4: WX+1, 5: WX+2, 8: WX+3, 9: WX+4, 12: WX+5, 13: WX+6}
    e("s_nop 4")
    for a in range(2):
        for n in range(2):
            for q in range(4):
                cx = n * 8 + (q >> 1) * 4 + (q & 1)
                e(f"ds_write_b128 v{adr[cx]}, {vr(acc(a,n)+4*q,4)} offset:{a*8192}")
    e(f"""v_add_u32 v30, 0x10000, v30
s_cmp_eq_u32 s43, 0
s_cbranch_scc1 k3_e0
ds_write_b128 v30, {vr(AE+8,4)}
ds_write_b128 v30, {vr(AE+12,4)} offset:16
s_branch k3_e1""")
    k.label("k3_e0")
    e(f"""ds_write_b128 v30, {vr(AE,4)}
ds_write_b128 v30, {vr(AE+4,4)} offset:16""")
    k.label("k3_e1")
    PT = 64
    XF, WF = 160, 180
    e(f"""v_xor_b32 v{WX}, 16, v{RADR}
v_xor_b32 v{WX+1}, 32, v{RADR}
v_xor_b32 v{WX+2}, 48, v{RADR}
s_and_b32 s36, s22, 1
s_lshl_b32 s36, s36, 10
s_add_u32 s36, s36, 0x10000
v_lshlrev_b32 v{WX+3}, 4, v{LANE}
v_add_u32 v{WX+3}, s36, v{WX+3}
s_waitcnt vmcnt(0)""")
    xs = [XV + i for i in range(8)] + [XE, XE + 1]
    ws_ = [WV + i for i in range(8)] + [WE, WE + 1]
    for i in range(10):
        e(f"""v_lshlrev_b32 v{XF+2*i}, 16, v{xs[i]}
v_and_b32 v{XF+2*i+1}, 0xffff0000, v{xs[i]}
v_lshlrev_b32 v{WF+2*i}, 16, v{ws_[i]}
v_and_b32 v{WF+2*i+1}, 0xffff0000, v{ws_[i]}""")
    e("s_waitcnt lgkmcnt(0)\ns_barrier")
    radr = [RADR, WX, WX + 1, WX + 2]
    for src in range(4):
        for i in range(4):
            e(f"ds_read_b128 {vr(PT+20*src+4*i,4)}, v{radr[i]} offset:{src*16384}")
        e(f"ds_read_b128 {vr(PT+20*src+16,4)}, v{WX+3} offset:{src*2048}")
    OWN = PT
    pk = lambda d, a, b: f"v_pk_add_f32 {vr(d,2)}, {vr(a,2)}, {vr(b,2)}"
    e("s_waitcnt lgkmcnt(10)")
    for r in range(0, 20, 2):
        e(pk(PT+r, PT+r, PT+20+r))
    e("s_waitcnt lgkmcnt(0)")
    for r in range(0, 20, 2):
        e(pk(PT+40+r, PT+40+r, PT+60+r))
    for r in range(0, 20, 2):
        e(pk(PT+r, PT+r, PT+40+r))
    HP = 144
    for i in range(10):
        e(f"v_cvt_pk_bf16_f32 v{HP+i}, v{OWN+2*i}, v{OWN+2*i+1}")
    for i in range(10):
        e(f"""v_lshlrev_b32 v{OWN+2*i}, 16, v{HP+i}
v_and_b32 v{OWN+2*i+1}, 0xffff0000, v{HP+i}""")
    for r in range(0, 20, 2):
        e(pk(OWN+r, OWN+r, XF+r))
    for i in range(10):
        e(f"v_cvt_pk_bf16_f32 v{HP+i}, v{OWN+2*i}, v{OWN+2*i+1}")
    e(f"""s_add_u32 s34, s34, {WS_H}
s_add_u32 s46, s46, {WS_H}
buffer_store_dwordx4 {vr(HP,4)}, v{GOFF_}, {W}, s34 offen sc1
buffer_store_dwordx4 {vr(HP+4,4)}, v{GOFF_}, {W}, s34 offen offset:16 sc1
buffer_store_dwordx2 {vr(HP+8,2)}, v29, {W}, s46 offen sc1
s_cmp_eq_u32 s30, 0
s_cselect_b32 s36, -1, 0""")
    for i in range(10):
        e(f"""v_lshlrev_b32 v{OWN+2*i}, 16, v{HP+i}
v_and_b32 v{OWN+2*i+1}, 0xffff0000, v{HP+i}""")
    for r in range(16, 20):
        e(f"v_and_b32 v{OWN+r}, s36, v{OWN+r}")
    S0, S1, S2 = 100, 102, 104
    e(f"""{pk(S0, OWN, OWN+2)}
v_pk_mul_f32 {vr(S1,2)}, {vr(OWN,2)}, {vr(OWN,2)}
v_pk_mul_f32 {vr(S2,2)}, {vr(OWN,2)}, {vr(WF,2)}""")
    for r in range(2, 20, 2):
        if r >= 4:
            e(pk(S0, S0, OWN+r))
        e(f"""v_pk_fma_f32 {vr(S1,2)}, {vr(OWN+r,2)}, {vr(OWN+r,2)}, {vr(S1,2)}
v_pk_fma_f32 {vr(S2,2)}, {vr(OWN+r,2)}, {vr(WF+r,2)}, {vr(S2,2)}""")
    e(f"""v_add_f32 v{S0}, v{S0}, v{S0+1}
v_add_f32 v{S1}, v{S1}, v{S1+1}
v_add_f32 v{S2}, v{S2}, v{S2+1}
s_lshl_b32 s36, s32, 2
s_add_u32 s36, s36, {WS_ST}
v_add_f32_dpp v{S0}, v{S0}, v{S0} quad_perm:[1,0,3,2] row_mask:0xf bank_mask:0xf
v_add_f32_dpp v{S1}, v{S1}, v{S1} quad_perm:[1,0,3,2] row_mask:0xf bank_mask:0xf
v_add_f32_dpp v{S2}, v{S2}, v{S2} quad_perm:[1,0,3,2] row_mask:0xf bank_mask:0xf
v_cmp_eq_u32 s[48:49], 1, v{FQ}
v_add_f32_dpp v{S0}, v{S0}, v{S0} quad_perm:[2,3,0,1] row_mask:0xf bank_mask:0xf
v_add_f32_dpp v{S1}, v{S1}, v{S1} quad_perm:[2,3,0,1] row_mask:0xf bank_mask:0xf
v_add_f32_dpp v{S2}, v{S2}, v{S2} quad_perm:[2,3,0,1] row_mask:0xf bank_mask:0xf
v_cmp_eq_u32 s[50:51], 2, v{FQ}
v_cmp_gt_u32 s[52:53], 3, v{FQ}
v_lshlrev_b32 v{WX}, 2, v{TK}
v_lshl_add_u32 v{WX}, v{FQ}, 13, v{WX}
v_cndmask_b32 v{S0}, v{S0}, v{S1}, s[48:49]
v_cndmask_b32 v{S0}, v{S0}, v{S2}, s[50:51]
s_mov_b64 exec, s[52:53]
buffer_atomic_add_f32 v{S0}, v{WX}, {W}, s36 offen
s_mov_b64 exec, -1""")
    k.label("k3_noextra")
    e(f"""s_bfe_u32 s36, s2, 0x30003
s_lshl_b32 s36, s36, 7
s_add_u32 s36, s36, {WS_CNTG}
v_lshlrev_b32 v{T+2}, 10, v{LANE}
v_mov_b32 v{T+1}, 1""")
    stamp(k, 2)
    e(f"""s_waitcnt vmcnt(0)
s_barrier""")
    stamp(k, 3)
    e(f"""s_cmp_lg_u32 s22, 0
s_cbranch_scc1 k34_end
s_mov_b64 exec, 0xff
buffer_atomic_add v{T+1}, v{T+2}, {W}, s36 offen""")
    dump(k, 4)
    e("s_endpgm")

def gen_p2(k):
    e = k.e
    WSR, GR, UR, DR, OUTR = 8, 12, 16, 24, 28
    W = f"s[{WSR}:{WSR+3}]"
    LANE, T = 1, 2
    ST = 16
    HR = 40
    RS_ = 56
    HS = 60
    SS = 64
    WD = 72
    WDF = 152
    Lend = "k34_end"
    INV = f32hex(1.0 / 576); EPS = f32hex(1e-5)
    e(f"""s_load_dwordx4 s[32:35], s[0:1], 40
s_load_dwordx4 s[36:39], s[0:1], 56
s_sub_u32 s23, s2, {NG}
v_lshlrev_b32 v{T+1}, 4, v0
v_lshlrev_b32 v{T+2}, 4, v{LANE}
v_cmp_gt_u32 s[40:41], 8, v{LANE}
v_add_u32 v{T+3}, 1024, v{T+2}
v_mov_b32 v{T+4}, {HUGE}
s_add_u32 s46, s4, {WS_WSUM}
s_addc_u32 s47, s5, 0
s_load_dword s48, s[46:47], 0
v_cndmask_b32 v{T+3}, v{T+4}, v{T+3}, s[40:41]
s_mov_b32 s42, 72
v_cmp_gt_u32 s[40:41], s42, v0
s_waitcnt lgkmcnt(0)
v_cndmask_b32 v{T+13}, v{T+4}, v{T+1}, s[40:41]
""")
    srd(k, GR, 32, D * F * 2)
    srd(k, UR, 34, D * F * 2)
    srd(k, DR, 36, D * F * 2)
    srd(k, OUTR, 38, S * D * 2)
    LNOD = "p2_nodma"
    e(f"""s_cmp_ge_u32 s23, {NFFN}
s_cbranch_scc1 {LNOD}
v_mul_u32_u24 v{T+5}, 911, v0
v_lshrrev_b32 v{T+5}, 16, v{T+5}
v_mul_u32_u24 v{T+6}, 72, v{T+5}
v_sub_u32 v{T+6}, v0, v{T+6}
v_mul_u32_u24 v{T+7}, 1152, v{T+5}
v_lshl_add_u32 v{T+7}, v{T+6}, 4, v{T+7}
s_mov_b32 s42, 216
v_cmp_gt_u32 s[40:41], s42, v0
s_and_b32 s59, s23, 7
s_mul_i32 s59, s59, 18
s_lshr_b32 s52, s23, 3
s_add_u32 s59, s59, s52
s_mul_i32 s52, s59, 36864
s_nop 0
v_cndmask_b32 v{T+7}, v{T+4}, v{T+7}, s[40:41]
""")
    for i in range(11):
        e(f"buffer_load_dwordx4 {vr(WD+4*i,4)}, v{T+7}, s[{DR}:{DR+3}], s52 offen")
        if i < 10: e(f"s_add_u32 s52, s52, {3*1152}")
    e(f"""v_lshrrev_b32 v{T+4}, 2, v{LANE}
v_mul_u32_u24 v{T+4}, 9216, v{T+4}
v_and_b32 v{T+8}, 3, v{LANE}
v_lshl_add_u32 v{T+4}, v{T+8}, 4, v{T+4}
s_sub_u32 s53, s22, 2
s_mul_i32 s50, s53, {16*9216}
s_lshl_b32 s51, s59, 6
s_add_u32 s50, s50, s51
s_lshl_b32 s51, s53, 10
s_mov_b32 s53, 0
""")
    e("s_waitcnt vmcnt(0)")
    for i in range(44):
        e(f"""v_lshlrev_b32 v{WDF+2*i}, 16, v{WD+i}
v_and_b32 v{WDF+2*i+1}, 0xffff0000, v{WD+i}""")
    k.label(LNOD)
    stamp(k, 1)
    TRIG = int(os.environ.get("P2TRIG", "8"))
    def poll(tag, thr):
        e(f"""s_cmp_lg_u32 s22, 0
s_cbranch_scc1 p2_polled{tag}
v_lshlrev_b32 v{T+8}, 7, v{LANE}
s_and_b32 s49, s23, 7
s_lshl_b32 s49, s49, 10
s_add_u32 s49, s49, {WS_CNTG}
s_mov_b32 s54, 0
s_mov_b64 exec, 0xff""")
        k.label(f"p2_poll{tag}")
        e(f"""buffer_load_dword v{T+9}, v{T+8}, {W}, s49 offen sc1
s_waitcnt vmcnt(0)
v_cmp_gt_u32 vcc, {thr}, v{T+9}
s_add_u32 s54, s54, 1
s_cmp_gt_u32 s54, 0x100000
s_cbranch_vccz p2_pdone{tag}
s_cbranch_scc1 p2_pdone{tag}
s_sleep {int(os.environ.get("P2SLEEP","2"))}
s_cmp_lt_u32 s23, {NFFN}
s_cbranch_scc1 p2_poll{tag}
s_sleep 40
s_branch p2_poll{tag}""")
        k.label(f"p2_pdone{tag}")
        e("s_mov_b64 exec, -1")
        k.label(f"p2_polled{tag}")
    poll("b", NG // 8)
    e(f"""v_mov_b32 v{T+9}, 0
v_mov_b32 v116, 0
v_mov_b32 v117, 0
v_mov_b32 v118, 0
v_mov_b32 v119, 0
ds_write_b128 v{T+9}, v[116:119] offset:{L_RED}
s_waitcnt lgkmcnt(0)
s_barrier""")
    stamp(k, 2)
    ST2 = 72
    e(f"""s_cmp_ge_u32 s22, 2
s_cbranch_scc1 p2_nost
v_lshlrev_b32 v{T+8}, 6, v0
s_mov_b32 s41, {WS_ST}""")
    for st in range(3):
        for q in range(4):
            e(f"buffer_load_dwordx4 {vr(ST2+16*st+4*q,4)}, v{T+8}, {W}, s41 offen offset:{16*q} sc1")
        if st < 2: e("s_add_u32 s41, s41, 8192")
    e("s_branch p2_skipdma")
    k.label("p2_nost")
    e(f"""s_cmp_ge_u32 s23, {NFFN}
s_cbranch_scc1 p2_skipdma""")
    k.label("p2_dma")
    e(f"""s_add_u32 m0, s51, {L_WG}
s_add_u32 s53, s53, 1
buffer_load_dwordx4 v{T+4}, s[{GR}:{GR+3}], s50 offen lds
s_add_u32 m0, s51, {L_WU}
s_add_u32 s51, s51, 2048
buffer_load_dwordx4 v{T+4}, s[{UR}:{UR+3}], s50 offen lds
s_add_u32 s50, s50, {2*16*9216}
s_cmp_lt_u32 s53, 18
s_cbranch_scc1 p2_dma""")
    k.label("p2_skipdma")
    e(f"""s_lshl_b32 s42, s23, 3
s_lshl_b32 s43, s22, 1
s_add_u32 s42, s42, s43
s_mul_i32 s43, s42, 1152
s_add_u32 s44, s43, {WS_H}
s_lshl_b32 s45, s42, 2
s_add_u32 s45, s45, {WS_ST}
buffer_load_dwordx4 {vr(HR,4)}, v{T+2}, {W}, s44 offen sc1
buffer_load_dwordx4 {vr(HR+4,4)}, v{T+3}, {W}, s44 offen sc1
buffer_load_dwordx4 {vr(HR+8,4)}, v{T+2}, {W}, s44 offen offset:1152 sc1
buffer_load_dwordx4 {vr(HR+12,4)}, v{T+3}, {W}, s44 offen offset:1152 sc1
buffer_load_dwordx2 {vr(RS_,2)}, v{T+9}, {W}, s45 offen sc1
s_add_u32 s45, s45, 8192
buffer_load_dwordx2 {vr(RS_+2,2)}, v{T+9}, {W}, s45 offen sc1
s_cmp_ge_u32 s22, 2
s_cbranch_scc1 p2_noam
v_lshlrev_b32 v{T+10}, 4, v0
v_sub_u32 v{T+10}, 2047, v{T+10}
s_waitcnt vmcnt(6)
""")
    KEY = 16
    for i in range(16):
        a_, b_, c_ = 120 + 3 * (i % 4), 121 + 3 * (i % 4), 122 + 3 * (i % 4)
        e(f"""v_mul_f32 v{a_}, {INV}, v{ST2+i}
v_mul_f32 v{b_}, {INV}, v{ST2+16+i}
v_fma_f32 v{b_}, -v{a_}, v{a_}, v{b_}
v_max_f32 v{b_}, 0, v{b_}
v_add_f32 v{b_}, {EPS}, v{b_}
v_rsq_f32 v{b_}, v{b_}
v_fma_f32 v{a_}, -v{a_}, s48, v{ST2+32+i}
v_mul_f32 v{a_}, v{a_}, v{b_}
v_ashrrev_i32 v{c_}, 31, v{a_}
v_or_b32 v{c_}, 0x80000000, v{c_}
v_xor_b32 v{a_}, v{a_}, v{c_}
v_and_b32 v{a_}, 0xfffff800, v{a_}
v_subrev_u32 v{c_}, {i}, v{T+10}
v_or_b32 v{KEY+i}, v{a_}, v{c_}""")
    for i in range(5):
        e(f"v_max3_u32 v{KEY+3*i}, v{KEY+3*i}, v{KEY+3*i+1}, v{KEY+3*i+2}")
    e(f"""v_max3_u32 v{KEY}, v{KEY}, v{KEY+3}, v{KEY+6}
v_max3_u32 v{KEY+9}, v{KEY+9}, v{KEY+12}, v{KEY+15}
v_max_u32 v{KEY}, v{KEY}, v{KEY+9}
s_lshl_b32 s49, s22, 3
v_mov_b32 v{T+11}, s49
v_max_u32_dpp v{KEY}, v{KEY}, v{KEY} row_shr:1 row_mask:0xf bank_mask:0xf
v_xor_b32 v{T+12}, 8, v{T+11}
v_mov_b32 v{KEY+1}, 1
v_max_u32_dpp v{KEY}, v{KEY}, v{KEY} row_shr:2 row_mask:0xf bank_mask:0xf
s_nop 1
v_max_u32_dpp v{KEY}, v{KEY}, v{KEY} row_shr:4 row_mask:0xf bank_mask:0xf
s_nop 1
v_max_u32_dpp v{KEY}, v{KEY}, v{KEY} row_shr:8 row_mask:0xf bank_mask:0xf
s_nop 1
v_max_u32_dpp v{KEY}, v{KEY}, v{KEY} row_bcast:15 row_mask:0xa bank_mask:0xf
s_nop 1
v_max_u32_dpp v{KEY}, v{KEY}, v{KEY} row_bcast:31 row_mask:0xc bank_mask:0xf
s_mov_b32 exec_lo, 0
s_mov_b32 exec_hi, 0x80000000
ds_write_b64 v{T+11}, v[{KEY}:{KEY+1}] offset:{L_RED}
s_mov_b64 exec, -1
v_readlane_b32 s53, v{KEY}, 63""")
    k.label("p2_spin")
    e(f"""ds_read_b64 v[116:117], v{T+12} offset:{L_RED}
s_waitcnt lgkmcnt(0)
v_readfirstlane_b32 s54, v117
v_readfirstlane_b32 s55, v116
s_nop 1
s_cmp_eq_u32 s54, 0
s_cbranch_scc1 p2_spin
s_max_u32 s53, s53, s55
s_and_b32 s53, s53, 0x7ff
s_sub_u32 s53, 2047, s53
s_cmp_ge_u32 s23, {NFFN}
s_cbranch_scc1 p2_noam
s_mul_i32 s54, s53, 1152
s_add_u32 s55, s54, {WS_H}
s_lshl_b32 s56, s53, 2
s_add_u32 s56, s56, {WS_ST}
buffer_load_dwordx4 {vr(HS,4)}, v{T+13}, {W}, s55 offen sc1
buffer_load_dword v{SS}, v{T+9}, {W}, s56 offen sc1
s_add_u32 s56, s56, 8192
buffer_load_dword v{SS+1}, v{T+9}, {W}, s56 offen sc1
s_add_u32 s56, s56, 8192
buffer_load_dword v{SS+2}, v{T+9}, {W}, s56 offen sc1
""")
    stamp(k, 3)
    def lnparams(vsum, vsq, mb, rs):
        e(f"""v_mul_f32 v{mb}, {INV}, v{vsum}
v_mul_f32 v{rs}, {INV}, v{vsq}
v_fma_f32 v{rs}, -v{mb}, v{mb}, v{rs}
v_max_f32 v{rs}, 0, v{rs}
v_cvt_pk_bf16_f32 v{mb}, v{mb}, v{mb}
v_cvt_pk_bf16_f32 v{rs}, v{rs}, v{rs}
v_and_b32 v{mb}, 0xffff0000, v{mb}
v_and_b32 v{rs}, 0xffff0000, v{rs}
v_add_f32 v{rs}, {EPS}, v{rs}
v_cvt_pk_bf16_f32 v{rs}, v{rs}, v{rs}
v_and_b32 v{rs}, 0xffff0000, v{rs}
v_sqrt_f32 v{rs}, v{rs}
s_nop 0
v_cvt_pk_bf16_f32 v{rs}, v{rs}, v{rs}
v_and_b32 v{rs}, 0xffff0000, v{rs}
v_rcp_f32 v{rs}, v{rs}
s_nop 0""")
    D0 = 132
    def ln_chunk(src, n, mb, rs, hf, x2p):
        for i in range(n):
            e(f"""v_lshlrev_b32 v{hf+2*i}, 16, v{src+i}
v_and_b32 v{hf+2*i+1}, 0xffff0000, v{src+i}""")
        for i in range(2 * n):
            e(f"v_sub_f32 v{D0+i}, v{hf+i}, v{mb}")
        for i in range(n):
            e(f"v_cvt_pk_bf16_f32 v{x2p+i}, v{D0+2*i}, v{D0+2*i+1}")
        for i in range(n):
            e(f"""v_lshlrev_b32 v{D0+2*i}, 16, v{x2p+i}
v_and_b32 v{D0+2*i+1}, 0xffff0000, v{x2p+i}""")
        for i in range(2 * n):
            e(f"v_mul_f32 v{D0+i}, v{D0+i}, v{rs}")
        for i in range(n):
            e(f"v_cvt_pk_bf16_f32 v{x2p+i}, v{D0+2*i}, v{D0+2*i+1}")
    MB, RS = 67, 68
    HF, X2P = 16, 32
    def erow(r):
        lnparams(RS_ + r, RS_ + 2 + r, MB, RS)
        ln_chunk(HR + 8 * r, 8, MB, RS, HF, X2P)
        for i in range(8):
            e(f"""v_lshlrev_b32 v{D0+2*i}, 16, v{X2P+i}
v_and_b32 v{D0+2*i+1}, 0xffff0000, v{X2P+i}""")
        for i in range(16):
            e(f"v_add_f32 v{D0+i}, v{D0+i}, v{HF+i}")
        for i in range(8):
            e(f"v_cvt_pk_bf16_f32 v{HR+8*r+i}, v{D0+2*i}, v{D0+2*i+1}")
        e(f"""s_add_u32 s57, s42, {r}
s_add_u32 s58, s43, {1152*r}
s_cmp_eq_u32 s57, s53
s_cselect_b32 s58, {HUGE}, s58
buffer_store_dwordx4 {vr(HR+8*r,4)}, v{T+2}, s[{OUTR}:{OUTR+3}], s58 offen
buffer_store_dwordx4 {vr(HR+8*r+4,4)}, v{T+3}, s[{OUTR}:{OUTR+3}], s58 offen""")
    SMB, SRS = 69, 70
    SHF, SX2 = 116, 124
    e("s_waitcnt vmcnt(0)")
    lnparams(SS, SS + 1, SMB, SRS)
    ln_chunk(HS, 4, SMB, SRS, SHF, SX2)
    e(f"""v_cmp_gt_u32 vcc, 72, v0
s_and_saveexec_b64 s[62:63], vcc
ds_write_b128 v{T+1}, {vr(SX2,4)} offset:{L_X2}
s_mov_b64 exec, s[62:63]""")
    k.label("p2_noam")
    e(f"""s_waitcnt vmcnt(0) lgkmcnt(0)
s_barrier
s_cmp_lt_u32 s22, 2
s_cbranch_scc1 p2_haveidx
ds_read_b128 v[132:135], v{T+9} offset:{L_RED}
s_waitcnt lgkmcnt(0)
v_max_u32 v132, v132, v134
s_nop 0
v_readfirstlane_b32 s53, v132
s_nop 1
s_and_b32 s53, s53, 0x7ff
s_sub_u32 s53, 2047, s53""")
    k.label("p2_haveidx")
    e(f"""s_cmp_lt_u32 s23, {NFFN}
s_cbranch_scc1 p2_ffn""")
    erow(0)
    erow(1)
    e("s_endpgm")
    k.label("p2_ffn")
    G_, A9, A10 = T + 8, T + 11, T + 12
    e(f"""v_lshrrev_b32 v{G_}, 4, v{LANE}
v_bfe_u32 v{A9}, v{LANE}, 2, 2
v_lshl_add_u32 v{A9}, v{G_}, 3, v{A9}
v_and_b32 v{A10}, 3, v{LANE}
v_lshlrev_b32 v{A10}, 3, v{A10}
v_lshl_add_u32 v{A9}, v{A9}, 6, v{A10}
s_and_b32 s61, s22, 1
s_lshl_b32 s61, s61, 5
s_lshr_b32 s64, s22, 1
s_mul_i32 s64, s64, {L_WU-L_WG}
s_add_u32 s61, s61, s64
s_add_u32 s61, s61, {L_WG}
v_add_u32 v{A9}, s61, v{A9}
v_lshlrev_b32 v{A10}, 4, v{G_}
""")
    stamp(k, 4)
    AF, BF, ACC = 16, 72, 128
    def rd(ks):
        sl = ks % 6
        e(f"""ds_read_b128 {vr(AF+4*sl,4)}, v{A10} offset:{L_X2+ks*64}
ds_read_b64_tr_b16 {vr(BF+4*sl,2)}, v{A9} offset:{ks*32*64}
ds_read_b64_tr_b16 {vr(BF+4*sl+2,2)}, v{A9} offset:{ks*32*64+4*64}""")
    for ks in range(5): rd(ks)
    for ks in range(18):
        sl = ks % 6
        nleft = min(4, 17 - ks)
        e(f"s_waitcnt lgkmcnt({3*nleft})")
        c = vr(ACC, 4) if ks else "0"
        e(f"v_mfma_f32_16x16x32_bf16 {vr(ACC,4)}, {vr(AF+4*sl,4)}, {vr(BF+4*sl,4)}, {c}")
        if ks + 5 < 18: rd(ks + 5)
    e(f"""s_lshl_b32 s65, s22, 6
v_and_b32 v{A9}, 15, v{LANE}
v_lshl_add_u32 v{A9}, v{A9}, 2, s65
v_and_b32 v{A10}, 31, v{LANE}
v_lshlrev_b32 v{A10}, 2, v{A10}
v_lshlrev_b32 v{T+7}, 2, v{T+5}
s_nop 3
ds_write_b32 v{A9}, v{ACC} offset:{L_PART}
s_waitcnt lgkmcnt(0)
s_barrier
ds_read_b32 v132, v{A10} offset:{L_PART}
ds_read_b32 v134, v{A10} offset:{L_PART+128}
s_waitcnt lgkmcnt(0)
v_cvt_pk_bf16_f32 v132, v132, v134
v_lshlrev_b32 v133, 16, v132
v_and_b32 v134, 0xffff0000, v132
v_mul_f32 v135, {f32hex(-1.4426950408889634)}, v133
v_exp_f32 v135, v135
s_nop 0
v_add_f32 v135, 1.0, v135
v_rcp_f32 v135, v135
s_nop 0
v_mul_f32 v133, v133, v135
v_cvt_pk_bf16_f32 v133, v133, v133
v_and_b32 v133, 0xffff0000, v133
v_mul_f32 v133, v133, v134
v_cvt_pk_bf16_f32 v133, v133, v133
v_and_b32 v133, 0xffff0000, v133
v_cmp_gt_u32 s[62:63], 32, v{LANE}
v_lshlrev_b32 v{A9}, 2, v{LANE}
s_lshl_b32 s65, s22, 8
v_cndmask_b32 v133, 0, v133, s[62:63]
v_add_u32 v{A9}, s65, v{A9}
v_add_u32 v{T+7}, s65, v{T+7}
ds_write_b32 v{A9}, v133 offset:{L_FLAG+64}
s_waitcnt lgkmcnt(0)
""")
    AV = 16
    for i in range(11):
        e(f"ds_read_b32 v{AV+2*i}, v{T+7} offset:{L_FLAG+64+12*i}")
    YA = 136
    for i in range(11):
        e(f"s_waitcnt lgkmcnt({10-i})")
        av = AV + 2 * i
        for j in range(0, 8, 2):
            if i == 0:
                e(f"v_pk_mul_f32 {vr(YA+j,2)}, {vr(WDF+j,2)}, {vr(av,2)} op_sel_hi:[1,0]")
            else:
                e(f"v_pk_fma_f32 {vr(YA+j,2)}, {vr(WDF+8*i+j,2)}, {vr(av,2)}, {vr(YA+j,2)} op_sel_hi:[1,0,1]")
    e(f"""v_mul_u32_u24 v{A9}, 2304, v{T+5}
v_lshl_add_u32 v{A9}, v{T+6}, 5, v{A9}
v_cmp_gt_u32 vcc, 216, v0
s_and_saveexec_b64 s[62:63], vcc
ds_write_b128 v{A9}, {vr(YA,4)} offset:{L_YP}
ds_write_b128 v{A9}, {vr(YA+4,4)} offset:{L_YP+16}
s_mov_b64 exec, s[62:63]
v_lshlrev_b32 v{A10}, 2, v0
s_and_b32 s68, s23, {YREP-1}
s_mul_i32 s68, s68, 2304
s_add_u32 s68, s68, {WS_Y}
s_waitcnt lgkmcnt(0)
s_barrier
""")
    for c in range(3):
        for g in range(3):
            e(f"ds_read_b32 v{16+3*c+g}, v{A10} offset:{L_YP+g*2304+c*1024}")
    e("s_waitcnt lgkmcnt(0)")
    for c in range(3):
        e(f"v_add_f32 v{16+3*c}, v{16+3*c}, v{17+3*c}\nv_add_f32 v{16+3*c}, v{16+3*c}, v{18+3*c}")
    e(f"""buffer_atomic_add_f32 v16, v{A10}, {W}, s68 offen
buffer_atomic_add_f32 v19, v{A10}, {W}, s68 offen offset:1024
s_cmp_lg_u32 s22, 0
s_cbranch_scc1 p2_at3
buffer_atomic_add_f32 v22, v{A10}, {W}, s68 offen offset:2048""")
    k.label("p2_at3")
    stamp(k, 5)
    erow(0)
    erow(1)
    e(f"""s_waitcnt vmcnt(4)
s_barrier
s_cmp_ge_u32 s22, 2
s_cbranch_scc1 {Lend}
s_cmp_eq_u32 s22, 1
s_cbranch_scc1 p2_cnt
v_mov_b32 v{A9}, {WS_CNT}
v_mov_b32 v{A10}, 1
s_mov_b64 exec, 1
buffer_atomic_add v{A10}, v{A9}, {W}, 0 offen sc0
s_waitcnt vmcnt(0)
ds_write_b32 v{T+9}, v{A10} offset:{L_FLAG}
s_mov_b64 exec, -1
s_waitcnt lgkmcnt(0)
""")
    k.label("p2_cnt")
    stamp(k, 6)
    dump(k, 7)
    if PROF: e("s_mov_b64 exec, -1")
    e(f"""s_barrier
ds_read_b32 v{A10}, v{T+9} offset:{L_FLAG}
s_waitcnt lgkmcnt(0)
v_readfirstlane_b32 s70, v{A10}
s_nop 3
s_cmp_lg_u32 s70, {NFFN-1}
s_cbranch_scc1 {Lend}
v_lshlrev_b32 v{A9}, 1, v{T+13}
s_mov_b32 s71, {WS_Y}
""")
    YL = 152
    for r in range(YREP):
        e(f"""buffer_load_dwordx4 {vr(YL+8*r,4)}, v{A9}, {W}, s71 offen sc0 sc1
buffer_load_dwordx4 {vr(YL+8*r+4,4)}, v{A9}, {W}, s71 offen offset:16 sc0 sc1
s_add_u32 s71, s71, 2304""")
    SG = T + 8
    e(f"""v_fma_f32 v{SG}, -v{SMB}, s48, v{SS+2}
v_mul_f32 v{SG}, v{SG}, v{SRS}
v_cvt_pk_bf16_f32 v{SG}, v{SG}, v{SG}
v_and_b32 v{SG}, 0xffff0000, v{SG}
v_mul_f32 v{SG}, {f32hex(-1.4426950408889634)}, v{SG}
v_exp_f32 v{SG}, v{SG}
s_nop 0
v_add_f32 v{SG}, 1.0, v{SG}
v_rcp_f32 v{SG}, v{SG}
s_nop 0
v_cvt_pk_bf16_f32 v{SG}, v{SG}, v{SG}
v_and_b32 v{SG}, 0xffff0000, v{SG}
s_waitcnt vmcnt(0)""")
    for r in range(1, YREP):
        for i in range(8):
            e(f"v_add_f32 v{YL+i}, v{YL+i}, v{YL+8*r+i}")
    PK = 40
    def rnd(base):
        for i in range(4):
            e(f"v_cvt_pk_bf16_f32 v{PK+i}, v{base+2*i}, v{base+2*i+1}")
        for i in range(4):
            e(f"""v_lshlrev_b32 v{base+2*i}, 16, v{PK+i}
v_and_b32 v{base+2*i+1}, 0xffff0000, v{PK+i}""")
    rnd(YL)
    for i in range(8):
        e(f"v_mul_f32 v{YL+i}, v{YL+i}, v{SG}")
    rnd(YL)
    for i in range(4):
        e(f"""v_lshlrev_b32 v{YL+8+2*i}, 16, v{SX2+i}
v_and_b32 v{YL+8+2*i+1}, 0xffff0000, v{SX2+i}""")
    for i in range(8):
        e(f"v_add_f32 v{YL+i}, v{YL+i}, v{YL+8+i}")
    rnd(YL)
    for i in range(8):
        e(f"v_add_f32 v{YL+i}, v{YL+i}, v{SHF+i}")
    for i in range(4):
        e(f"v_cvt_pk_bf16_f32 v{PK+i}, v{YL+2*i}, v{YL+2*i+1}")
    e(f"buffer_store_dwordx4 {vr(PK,4)}, v{T+13}, s[{OUTR}:{OUTR+3}], s54 offen")
    if PROF:
        e("s_waitcnt vmcnt(0)")
        stamp(k, 7)
        dump(k, 8)

def gen_k34():
    k = K("k3_kernel")
    e = k.e
    e(f"""s_cmp_ge_u32 s2, {K34_GRID}
s_cbranch_scc1 k34_end
s_load_dwordx2 s[4:5], s[0:1], 80
v_lshrrev_b32 v5, 6, v0
v_and_b32 v1, 63, v0
v_readfirstlane_b32 s22, v5""")
    stamp(k, 0)
    e("s_waitcnt lgkmcnt(0)")
    srd(k, 8, 4, WS_SIZE)
    e(f"""s_cmp_ge_u32 s2, {NG}
s_cbranch_scc1 k34_p2""")
    gen_gemm(k)
    k.label("k34_p2")
    gen_p2(k)
    k.label("k34_end")
    e("s_endpgm")
    return k, 256, 100
```

```python
from asmlib import *
from layout import *
import os
PROF = int(os.environ.get("PROF", "0"))
STATPK = int(os.environ.get("STATPK", "1"))

def gen_k1():
    k = K("k1_kernel")
    e = k.e
    def stamp(i):
        if PROF:
            e(f"s_memtime s[{88+2*i}:{89+2*i}]")
    XA, WA = 16, 20
    WSR, WOR, WRR, ZR = 24, 28, 32, 52
    LANE, M, HALF = 1, 2, 3
    T = 22
    Lend = "k1_end"
    e(f"""s_cmp_ge_u32 s2, 256
s_cbranch_scc1 {Lend}
s_load_dwordx4 s[4:7], s[0:1], 0
s_load_dwordx4 s[12:15], s[0:1], 72
{"s_memtime s[88:89]" if PROF else ""}
{"s_memrealtime s[98:99]" if PROF else ""}
v_lshrrev_b32 v{T}, 6, v0
v_and_b32 v{LANE}, 63, v0
v_readfirstlane_b32 s38, v{T}
v_and_b32 v{M}, 31, v0
v_bfe_u32 v{HALF}, v0, 5, 1
s_and_b32 s36, s2, 7
s_lshl_b32 s36, s36, 1
s_bfe_u32 s46, s2, 0x10003
s_add_u32 s36, s36, s46
s_lshr_b32 s37, s2, 4
s_mov_b32 s47, 0x3f803f80
s_mul_i32 s50, s37, 216
s_sub_u32 s46, s37, 11
s_lshl_b32 s46, s46, 8
s_add_u32 s46, s46, 2304
s_cmp_ge_u32 s37, 11
s_cselect_b32 s50, s46, s50
s_cselect_b32 s48, 1, 0
s_lshr_b32 s67, s38, 2
s_and_b32 s38, s38, 3
s_waitcnt lgkmcnt(0)
""")
    srd(k, XA, 4, S * D * 2)
    srd(k, WA, 6, D * 3 * D * 2)
    srd(k, WSR, 14, WS_SIZE)
    e(f"""s_cmp_eq_u32 s67, 1
s_cbranch_scc1 k1_prod0""")
    XOE, XOO, WOFF = 4, 5, 6
    WOT, WOH = 16, 8
    DBG = 56
    SCR = 32768
    e(f"""s_load_dwordx2 s[8:9], s[0:1], 16
s_load_dwordx2 s[10:11], s[0:1], 32
v_lshrrev_b32 v{T}, 3, v{LANE}
v_lshrrev_b32 v{T+1}, 4, v{LANE}
v_and_b32 v{T+2}, 7, v{LANE}
v_xor_b32 v{T+2}, v{T+2}, v{T+1}
v_mul_u32_u24 v{T}, 1152, v{T}
v_lshl_add_u32 v{XOE}, v{T+2}, 4, v{T}
v_xor_b32 v{XOO}, 64, v{XOE}
v_and_b32 v{T+3}, 15, v{LANE}
v_lshlrev_b32 v{T+4}, 2, v{T+1}
v_xor_b32 v{T+3}, v{T+3}, v{T+4}
v_mul_u32_u24 v{T+4}, 3456, v{T+1}
v_lshl_add_u32 v{WOFF}, v{T+3}, 4, v{T+4}
s_lshl_b32 s46, s48, 1
s_add_u32 s46, s46, 14
v_cmp_gt_u32 s[60:61], s46, v{T+3}
v_mov_b32 v{T+4}, {HUGE}
s_lshl_b32 s41, s36, 7
s_lshl_b32 s46, s38, 5
v_cndmask_b32 v{WOFF}, v{T+4}, v{WOFF}, s[60:61]
s_add_u32 s41, s41, s46
s_mul_i32 s41, s41, 1152
s_mul_i32 s42, s38, {16*3456}
s_add_u32 s42, s42, s50
s_lshl_b32 s43, s38, 12
""")

    def dma_stage():
        for j in range(4):
            e(f"""s_add_u32 m0, s43, {j*1024}
s_add_u32 s46, s41, {j*9216}
buffer_load_dwordx4 v{XOE if j % 2 == 0 else XOO}, s[{XA}:{XA+3}], s46 offen lds
s_add_u32 m0, s43, {16384+j*1024}
s_add_u32 s46, s42, {j*13824}
buffer_load_dwordx4 v{WOFF}, s[{WA}:{WA+3}], s46 offen lds""")
        e(f"""s_add_u32 s41, s41, 128
s_add_u32 s42, s42, {64*3456}
s_add_u32 s43, s43, 32768
s_and_b32 s43, s43, 0x1ffff""")

    e("s_mov_b32 s44, 0")
    POLL = 12
    LL, LL2, LPROD, LCONT, LSIG = "k1_lloop", "k1_lskip", "k1_prod", "k1_cont", "k1_sig"
    k.label(LL)
    e(f"""s_cmp_lt_u32 s44, 3
s_cbranch_scc1 {LL2}
s_waitcnt vmcnt(16)
s_barrier""")
    k.label(LL2)
    dma_stage()
    e(f"""s_add_u32 s44, s44, 1
s_cmp_eq_u32 s44, 1
s_cbranch_scc1 k1_wo
""")
    k.label(LCONT)
    e(f"""s_cmp_lt_u32 s44, 9
s_cbranch_scc1 {LL}
buffer_load_dwordx4 v[36:39], v{POLL}, s[{DBG}:{DBG+3}], 0 offen sc1
s_waitcnt vmcnt(17)
s_barrier
s_waitcnt vmcnt(9)
s_barrier
s_mov_b32 s62, 0
s_mov_b32 s74, 0
s_waitcnt vmcnt(0)
s_branch k1_pchk
""")
    k.label("k1_poll")
    e(f"""s_sleep 8
buffer_load_dwordx4 v[36:39], v{POLL}, s[{DBG}:{DBG+3}], 0 offen sc1
s_waitcnt vmcnt(0)""")
    k.label("k1_pchk")
    e(f"""v_and_b32 v36, v36, v37
v_and_b32 v38, v38, v39
v_and_b32 v36, v36, v38
s_nop 0
v_readfirstlane_b32 s63, v36
s_add_u32 s62, s62, 1
s_cmp_eq_u32 s63, {"0x01010102" if os.environ.get("K1FB") else "0x01010101"}
s_cbranch_scc1 k1_polled
s_cmp_lt_u32 s62, {int(os.environ.get("K1POLL", "64"))}
s_cbranch_scc1 k1_poll
s_mov_b32 s64, 0
s_mov_b32 s73, 1
s_mov_b32 s74, 1
s_branch {LPROD}""")
    k.label("k1_polled")
    e(f"""s_lshl_b32 s46, s36, 10
s_lshl_b32 s62, s38, 8
s_add_u32 s46, s46, s62
s_add_u32 s46, s46, {WS_XST}
v_lshlrev_b32 v{T}, 3, v{M}
buffer_load_dwordx2 v[32:33], v{T}, s[{WSR}:{WSR+3}], s46 offen sc1
s_barrier
s_cmp_eq_u32 s74, 0
s_cbranch_scc1 k1_fetched
buffer_load_dwordx2 v[32:33], v{T}, s[{WSR}:{WSR+3}], s46 offen sc1""")
    k.label("k1_fetched")
    e(f"""v_add_u32 v{T}, s62, v{T}
s_waitcnt vmcnt(0)
ds_write_b64 v{T}, v[32:33] offset:{SCR}
s_waitcnt lgkmcnt(0)
s_barrier
s_branch k1_side
""")
    k.label("k1_wo")
    e(f"""s_lshl_b32 s46, s36, 4
v_mov_b32 v{POLL}, s46
s_waitcnt lgkmcnt(0)""")
    srd(k, WOR, 8, D * D * 2)
    srd(k, WRR, 10, D * 2)
    srd(k, DBG, 12, 256)
    e(f"""s_lshl_b32 s51, s38, 8
s_add_u32 s51, s51, s2
s_mul_i32 s68, s51, 1821
s_lshr_b32 s68, s68, 16
s_mul_i32 s69, s68, 36
s_sub_u32 s69, s51, s69
s_mul_i32 s70, s69, {18*1152}
s_sub_u32 s46, s69, 32
s_mul_i32 s46, s46, {144*1152}
s_add_u32 s46, s46, {16*1152}
s_cmp_ge_u32 s69, 32
s_cselect_b32 s70, s46, s70
s_cselect_b32 s71, {72*1152}, {8*1152}
s_cselect_b32 s72, {18*1152}, {2*1152}
s_cmp_ge_u32 s51, 648
s_cselect_b32 s70, {HUGE}, s70
v_and_b32 v{T}, 0x13, v{M}
v_and_b32 v{T+1}, 4, v{M}
v_lshl_or_b32 v{T}, v{T+1}, 1, v{T}
v_and_b32 v{T+1}, 8, v{M}
v_lshrrev_b32 v{T+1}, 1, v{T+1}
v_or_b32 v{T}, v{T}, v{T+1}
s_lshl_b32 s68, s68, 5
v_add_u32 v{T}, s68, v{T}
v_lshlrev_b32 v{T}, 1, v{T}
v_mul_lo_u32 v{T+1}, v{HALF}, s71
v_add_u32 v{T}, v{T}, v{T+1}
""")
    for jj in range(4):
        e(f"""buffer_load_ushort v{WOT+jj}, v{T}, s[{WOR}:{WOR+3}], s70 offen
buffer_load_ushort v{WOH+jj}, v{T}, s[{WOR}:{WOR+3}], s70 offen offset:1152""")
        if jj < 3:
            e("s_add_u32 s70, s70, s72")
    e(f"s_branch {LCONT}")
    k.label("k1_prod0")
    e(f"""s_mov_b32 s64, s37
s_mov_b32 s73, 0""")
    k.label(LPROD)
    DX, SX, SQ, UU = 176, 188, 190, 192
    PX, PX3 = 32, 33
    e(f"""v_mul_u32_u24 v{PX}, 1152, v{HALF}
v_lshl_add_u32 v{PX}, v{M}, 4, v{PX}
v_cmp_gt_u32 s[60:61], 8, v{M}
v_mov_b32 v{T+4}, {HUGE}
s_nop 0
v_cndmask_b32 v{PX3}, v{T+4}, v{PX}, s[60:61]
""")
    k.label("k1_ploop")
    e(f"""s_lshl_b32 s46, s36, 7
s_lshl_b32 s68, s64, 3
s_add_u32 s46, s46, s68
s_lshl_b32 s68, s38, 1
s_add_u32 s68, s46, s68
s_mul_i32 s46, s68, 1152
buffer_load_dwordx4 {vr(DX,4)}, v{PX}, s[{XA}:{XA+3}], s46 offen
buffer_load_dwordx4 {vr(DX+4,4)}, v{PX}, s[{XA}:{XA+3}], s46 offen offset:512
buffer_load_dwordx4 {vr(DX+8,4)}, v{PX3}, s[{XA}:{XA+3}], s46 offen offset:1024
s_cmp_eq_u32 s73, 0
s_cbranch_scc1 k1_compute
""")
    k.label("k1_pfin")
    for r in range(188, 192):
        e(f"v_mov_b32 v{r}, 0")
    for i in range(12):
        u = UU + 2 * (i % 4)
        if i % 4 == 0:
            e(f"s_waitcnt vmcnt({2 - i//4})")
        e(f"""v_lshlrev_b32 v{u}, 16, v{DX+i}
v_and_b32 v{u+1}, 0xffff0000, v{DX+i}
v_add_f32 v{SX}, v{SX}, v{u}
v_add_f32 v{SX+1}, v{SX+1}, v{u+1}
v_fmac_f32 v{SQ}, v{u}, v{u}
v_fmac_f32 v{SQ+1}, v{u+1}, v{u+1}""")
    e(f"""v_add_f32 v{SX}, v{SX}, v{SX+1}
v_add_f32 v{SQ}, v{SQ}, v{SQ+1}
s_lshl_b32 s46, s68, 3
s_add_u32 s46, s46, {WS_XST}""")
    for sh, rm in [("row_shr:1", "0xf"), ("row_shr:2", "0xf"), ("row_shr:4", "0xf"), ("row_shr:8", "0xf"), ("row_bcast:15", "0xa")]:
        e(f"""v_add_f32_dpp v{SX}, v{SX}, v{SX} {sh} row_mask:{rm} bank_mask:0xf
v_add_f32_dpp v{SQ}, v{SQ}, v{SQ} {sh} row_mask:{rm} bank_mask:0xf
s_nop 0""")
    A_T, B_T = 22, 23
    e(f"""v_mul_f32 v{T+2}, {f32hex(1.0/576)}, v{SX}
v_mul_f32 v{T+3}, {f32hex(1.0/576)}, v{SQ}
v_fma_f32 v{T+3}, -v{T+2}, v{T+2}, v{T+3}
v_max_f32 v{T+3}, 0, v{T+3}
v_cvt_pk_bf16_f32 v{T+2}, v{T+2}, v{T+2}
v_cvt_pk_bf16_f32 v{T+3}, v{T+3}, v{T+3}
v_and_b32 v{T+2}, 0xffff0000, v{T+2}
v_and_b32 v{T+3}, 0xffff0000, v{T+3}
v_add_f32 v{T+3}, {f32hex(1e-5)}, v{T+3}
v_cvt_pk_bf16_f32 v{T+3}, v{T+3}, v{T+3}
v_and_b32 v{T+3}, 0xffff0000, v{T+3}
v_sqrt_f32 v{T+3}, v{T+3}
v_sub_f32 v{B_T}, 0, v{T+2}
v_cvt_pk_bf16_f32 v{T+3}, v{T+3}, v{T+3}
v_and_b32 v{T+3}, 0xffff0000, v{T+3}
v_rcp_f32 v{A_T}, v{T+3}
v_lshlrev_b32 v{T+2}, 3, v{HALF}
s_mov_b32 exec_lo, 0x80000000
s_mov_b32 exec_hi, 0x80000000
buffer_store_dwordx2 v[{A_T}:{B_T}], v{T+2}, s[{WSR}:{WSR+3}], s46 offen sc1
s_mov_b64 exec, -1
s_cmp_eq_u32 s73, 0
s_cbranch_scc1 k1_pret
s_add_u32 s64, s64, 1
s_waitcnt vmcnt(0)
s_cmp_lt_u32 s64, 16
s_cbranch_scc1 k1_ploop
s_branch k1_polled
""")
    k.label("k1_side")
    e(f"""s_lshl_b32 s46, s51, 10
s_add_u32 s46, s46, {WS_WOP}
s_cmp_ge_u32 s51, 648
s_cselect_b32 s46, {HUGE}, s46
v_lshlrev_b32 v{T}, 4, v{LANE}
v_lshl_or_b32 v{WOT}, v{WOH}, 16, v{WOT}
v_lshl_or_b32 v{WOT+1}, v{WOH+1}, 16, v{WOT+1}
v_lshl_or_b32 v{WOT+2}, v{WOH+2}, 16, v{WOT+2}
v_lshl_or_b32 v{WOT+3}, v{WOH+3}, 16, v{WOT+3}
buffer_store_dwordx4 {vr(WOT,4)}, v{T}, s[{WSR}:{WSR+3}], s46 offen
s_cmp_lt_u32 s2, 240
s_cbranch_scc1 {Lend}
s_add_u32 s{ZR}, s14, {WS_ST}
s_addc_u32 s{ZR+1}, s15, 0
s_and_b32 s{ZR+1}, s{ZR+1}, 0xffff
s_mov_b32 s{ZR+2}, {ZERO_BYTES}
s_mov_b32 s{ZR+3}, 0x20000
s_sub_u32 s46, s2, 240
s_lshl_b32 s46, s46, 12
v_lshlrev_b32 v{T+1}, 4, v0
v_mov_b32 v32, 0
v_mov_b32 v33, 0
v_mov_b32 v34, 0
v_mov_b32 v35, 0
buffer_store_dwordx4 v[32:35], v{T+1}, s[{ZR}:{ZR+3}], s46 offen
s_cmp_lg_u32 s51, 1023
s_cbranch_scc1 {Lend}
v_lshlrev_b32 v{T+1}, 2, v{LANE}
""")
    for i in range(5):
        e(f"buffer_load_dword v{36+i}, v{T+1}, s[{WRR}:{WRR+3}], 0 offen offset:{256*i}")
    e(f"v_mov_b32 v{T+2}, 0\ns_waitcnt vmcnt(0)")
    for i in range(5):
        e(f"v_dot2_f32_bf16 v{T+2}, v{36+i}, s47, v{T+2}")
    e("s_nop 3")
    for sh in ["row_shr:1", "row_shr:2", "row_shr:4", "row_shr:8"]:
        e(f"""v_mov_b32 v{T+3}, 0
s_nop 1
v_mov_b32_dpp v{T+3}, v{T+2} {sh} row_mask:0xf bank_mask:0xf
v_add_f32 v{T+2}, v{T+2}, v{T+3}""")
    for sh, rm in [("row_bcast:15", "0xa"), ("row_bcast:31", "0xc")]:
        e(f"""v_mov_b32 v{T+3}, 0
s_nop 1
v_mov_b32_dpp v{T+3}, v{T+2} {sh} row_mask:{rm} bank_mask:0xf
v_add_f32 v{T+2}, v{T+2}, v{T+3}""")
    e(f"""v_mov_b32 v{T+1}, {WS_WSUM}
s_mov_b32 exec_lo, 0
s_mov_b32 exec_hi, 0x80000000
buffer_store_dword v{T+2}, v{T+1}, s[{WSR}:{WSR+3}], 0 offen
s_endpgm
""")
    k.label("k1_compute")
    XRD0, XRD1, WRD0, WRD1 = 7, 8, 9, 10
    XA0, XA1, WA0, WA1 = 11, 12, 13, 14
    XSUM, XSQ, WCS = 16, 18, 20
    XAK = [[XA0, 4, 5, 6], [XA1, 15, 16, 17]]
    U = 220
    buf = [dict(X=[32+16*i, 36+16*i], W=[40+16*i, 44+16*i]) for i in range(4)]
    acc = lambda t, f: 96 + 32 * t + 16 * f
    e(f"""s_lshr_b32 s39, s38, 1
s_and_b32 s40, s38, 1
s_mov_b32 s49, 0xffff0000
v_bfe_u32 v{T}, v{M}, 1, 3
v_xor_b32 v{T}, v{T}, v{HALF}
v_lshlrev_b32 v{T+1}, 7, v{M}
v_lshl_add_u32 v{T+1}, v{T}, 4, v{T+1}
s_lshl_b32 s46, s38, 12
v_add_u32 v{XRD0}, s46, v{T+1}
v_xor_b32 v{XRD1}, 4096, v{XRD0}
""")
    R_, CQ, A_, KROW, QUAD, PERM = T, T+1, T+2, T+3, T+4, T+5
    e(f"""v_bfe_u32 v{R_}, v{LANE}, 2, 2
v_and_b32 v{CQ}, 3, v{LANE}
v_bfe_u32 v{A_}, v{LANE}, 4, 1
v_lshl_add_u32 v{KROW}, v{HALF}, 3, v{R_}
v_lshl_add_u32 v{QUAD}, v{A_}, 2, v{CQ}
v_and_b32 v{PERM}, 1, v{CQ}
v_lshlrev_b32 v{PERM}, 1, v{PERM}
v_lshrrev_b32 v{T+6}, 1, v{CQ}
v_or_b32 v{PERM}, v{PERM}, v{T+6}
v_mad_u32_u24 v{PERM}, v{A_}, 5, v{PERM}
s_lshl_b32 s61, s40, 1
s_add_u32 s62, s61, 1
s_add_u32 s61, s61, s39
s_sub_u32 s62, s62, s39
""")
    for f, (sft, dst) in enumerate([(61, WRD0), (62, WRD1)]):
        UB = T + 6
        e(f"""s_mul_i32 s46, s{sft}, 72
v_lshl_add_u32 v{UB}, v{PERM}, 3, s46
v_min_u32 v{T+7}, 2, v{QUAD}
v_mul_u32_u24 v{T+7}, 72, v{T+7}
v_add_u32 v{T+7}, 32, v{T+7}
s_cmp_eq_u32 s{sft}, 3
s_cselect_b64 vcc, -1, 0
s_lshl_b32 s46, s{sft}, 6
v_lshl_add_u32 v{T+8}, v{QUAD}, 3, s46
v_cndmask_b32 v{UB}, v{UB}, v{T+7}, vcc
s_cmp_eq_u32 s48, 1
s_cselect_b64 vcc, -1, 0
s_nop 1
v_cndmask_b32 v{UB}, v{UB}, v{T+8}, vcc
v_lshrrev_b32 v{T+7}, 4, v{UB}
v_lshlrev_b32 v{T+8}, 2, v{R_}
v_xor_b32 v{T+7}, v{T+7}, v{T+8}
v_and_b32 v{UB}, 15, v{UB}
v_lshl_add_u32 v{UB}, v{T+7}, 4, v{UB}
v_lshl_add_u32 v{UB}, v{KROW}, 8, v{UB}
v_add_u32 v{dst}, 16384, v{UB}
""")
    for r in list(range(64, 176)):
        e(f"v_mov_b32 v{r}, 0")
    for r in range(28, 32):
        e(f"v_mov_b32 v{r}, s47")
    e(f"""s_mov_b32 s44, 0
s_mov_b32 s45, 0
s_lshl_b32 s46, s36, 4
s_add_u32 s46, s46, s37
v_mov_b32 v18, s46
v_mov_b32 v19, 1""")
    srd(k, DBG, 12, 256)

    def reads(ks, b):
        if os.environ.get("NOREAD"):
            return
        e(f"""ds_read_b128 {vr(b['X'][0],4)}, v{XAK[0][ks]}
ds_read_b128 {vr(b['X'][1],4)}, v{XAK[1][ks]}
ds_read_b64_tr_b16 {vr(b['W'][0],2)}, v{WA0} offset:{16*ks*256}
ds_read_b64_tr_b16 {vr(b['W'][0]+2,2)}, v{WA0} offset:{(16*ks+4)*256}
ds_read_b64_tr_b16 {vr(b['W'][1],2)}, v{WA1} offset:{16*ks*256}
ds_read_b64_tr_b16 {vr(b['W'][1]+2,2)}, v{WA1} offset:{(16*ks+4)*256}""")

    def mfmas(b, isV):
        i = 0
        for t in range(2):
            for f in range(2):
                a = acc(t, f)
                X, W = vr(b['X'][t], 4), vr(b['W'][f], 4)
                if os.environ.get("NOMFMA"):
                    pass
                elif isV:
                    e(f"v_mfma_f32_32x32x16_bf16 {vr(a,16)}, {X}, {W}, {vr(a,16)}")
                else:
                    e(f"v_mfma_f32_32x32x16_bf16 {vr(a,16)}, {W}, {X}, {vr(a,16)}")
        mfma_cs(b, isV)

    def mfma_cs(b, isV):
        if os.environ.get("NOCS"): return
        W = vr(b['W'][0], 4)
        if isV:
            e(f"v_mfma_f32_32x32x16_bf16 v[160:175], v[28:31], {W}, v[160:175]")
        else:
            e(f"v_mfma_f32_32x32x16_bf16 v[160:175], {W}, v[28:31], v[160:175]")

    def mainloop(isV):
        L = k.newlabel("loop")
        k.lines.append(".p2align 3")
        k.label(L)
        e(f"""s_barrier
v_add_u32 v{XA0}, s45, v{XRD0}
v_add_u32 v{XA1}, s45, v{XRD1}
v_add_u32 v{WA0}, s45, v{WRD0}
v_add_u32 v{WA1}, s45, v{WRD1}""")
        if PROF:
            e("s_cmp_lg_u32 s44, 0\ns_cbranch_scc1 " + L + "x")
            stamp(1)
            k.label(L + "x")
            e("s_memtime s[76:77]\ns_waitcnt lgkmcnt(0)\ns_sub_u32 s76, s76, s88\ns_mov_b32 m0, s44\ns_nop 0\nv_writelane_b32 v200, s76, m0")
        reads(0, buf[0])
        for t in range(2):
            for ks in range(1, 4):
                e(f"v_xor_b32 v{XAK[t][ks]}, {ks<<5}, v{XAK[t][0]}")
        if int(os.environ.get("K1LATE", "1")):
            e("s_cmp_eq_u32 s44, 0\ns_cbranch_scc1 k1_pfin")
            k.label("k1_retV" if isV else "k1_retQ")
        mfmas(buf[2], isV)
        reads(1, buf[1])
        mfmas(buf[3], isV)
        reads(2, buf[2])
        e(f"""s_cmp_lg_u32 s44, 2
s_cbranch_scc1 {L}z
s_cmp_lg_u32 s38, 0
s_cbranch_scc1 {L}z
s_mov_b64 exec, 1
buffer_store_byte v19, v18, s[{DBG}:{DBG+3}], 0 offen sc1
s_mov_b64 exec, -1""")
        k.label(L + "z")
        e("s_waitcnt lgkmcnt(12)")
        mfmas(buf[0], isV)
        reads(3, buf[3])
        e("s_waitcnt lgkmcnt(12)")
        mfmas(buf[1], isV)
        e(f"""s_add_u32 s45, s45, 32768
s_and_b32 s45, s45, 0x1ffff
s_add_u32 s44, s44, 1
s_cmp_lg_u32 s44, 2
s_cbranch_scc1 {L}y
s_waitcnt vmcnt({2 if int(os.environ.get("K1TOUCH", "0")) else 0})""")
        k.label(L + "y")
        e(f"""s_cmp_lt_u32 s44, 9
s_waitcnt lgkmcnt(0)
s_cbranch_scc1 {L}""")
        mfmas(buf[2], isV)
        mfmas(buf[3], isV)
        stamp(2)

    SCR = 32768
    def stats_final(isV):
        if isV:
            e(f"""s_lshl_b32 s46, s61, 7
v_lshl_add_u32 v{T+5}, v{M}, 2, s46
s_nop 7
s_nop 3
v_mov_b32 v21, v160
ds_write_b32 v{T+5}, v160 offset:{SCR+1024}""")
        else:
            e(f"""s_lshl_b32 s46, s61, 7
v_lshl_add_u32 v{T+5}, v{HALF}, 6, s46
s_nop 7
s_nop 3
s_mov_b32 exec_lo, 1
s_mov_b32 exec_hi, 1
ds_write_b128 v{T+5}, v[160:163] offset:{SCR+1024}
ds_write_b128 v{T+5}, v[164:167] offset:{SCR+1024+16}
ds_write_b128 v{T+5}, v[168:171] offset:{SCR+1024+32}
ds_write_b128 v{T+5}, v[172:175] offset:{SCR+1024+48}
s_mov_b64 exec, -1""")
        e("s_waitcnt lgkmcnt(0)\ns_barrier")

    LV = "k1_vpath"
    LDONE = "k1_done"
    LATE = int(os.environ.get("K1LATE", "1"))
    TOUCH = int(os.environ.get("K1TOUCH", "0"))
    if LATE:
        e("s_branch k1_go")
        k.label("k1_pret")
        if TOUCH:
            e(f"""v_lshlrev_b32 v{T+2}, 18, v{LANE}
buffer_load_dword v{T+3}, v{T+2}, s[{WSR}:{WSR+3}], 0 offen
buffer_load_dword v{T+4}, v18, s[{DBG}:{DBG+3}], 0 offen""")
        e("s_cmp_eq_u32 s48, 1\ns_cbranch_scc1 k1_retV\ns_branch k1_retQ")
    else:
        e("s_branch k1_pfin")
        k.label("k1_pret")
    k.label("k1_go")
    e(f"s_cmp_eq_u32 s48, 1\ns_cbranch_scc1 {LV}")
    mainloop(False)
    stats_final(False)
    AB = [22, 24]
    CS = [160, 176]
    e(f"""s_lshl_b32 s46, s38, 8
v_lshl_add_u32 v{T+4}, v{M}, 3, s46
v_xor_b32 v{T+5}, 256, v{T+4}
ds_read_b64 v[22:23], v{T+4} offset:{SCR}
ds_read_b64 v[24:25], v{T+5} offset:{SCR}
""")
    e(f"""s_lshl_b32 s46, s62, 7
v_lshl_add_u32 v{T+4}, v{HALF}, 6, s46
ds_read_b128 v[176:179], v{T+4} offset:{SCR+1024}
ds_read_b128 v[180:183], v{T+4} offset:{SCR+1024+16}
ds_read_b128 v[184:187], v{T+4} offset:{SCR+1024+32}
ds_read_b128 v[188:191], v{T+4} offset:{SCR+1024+48}""")
    e(f"v_lshlrev_b32 v{T+7}, 4, v{LANE}")
    L16 = T + 7
    e(f"""s_lshl_b32 s63, s36, 2
s_xor_b32 s64, s38, 1
s_add_u32 s64, s64, s63
s_add_u32 s63, s63, s38
s_mul_i32 s65, s37, 3
s_waitcnt lgkmcnt(0)
""")
    SC = 32
    for f, sft in enumerate([61, 62]):
        Lrem, Lnext = k.newlabel("rem"), k.newlabel("next")
        e(f"""s_cmp_eq_u32 s{sft}, 3
s_cbranch_scc1 {Lrem}
s_add_u32 s66, s65, s{sft}
s_cmp_ge_u32 s66, 32
s_cbranch_scc1 {Lnext}
s_and_b32 s67, s66, 15
s_lshl_b32 s67, s67, 1
s_cmp_lt_u32 s66, 16
s_cselect_b32 s68, {f32hex(QSCALE)}, 1.0
s_cselect_b32 s69, 65536, {KVH}
""")
        for t, stt in enumerate([63, 64]):
            a = acc(t, f)
            e(f"""s_lshr_b32 s70, s{stt}, 1
s_mul_i32 s70, s70, {BLK}
s_and_b32 s71, s{stt}, 1
s_lshl_b32 s71, s71, 10
s_add_u32 s70, s70, s71
s_lshl_b32 s71, s{stt}, 10
s_add_u32 s71, s71, {WS_QM}
s_cmp_lt_u32 s66, 16
s_cselect_b32 s70, s71, s70
s_mul_i32 s71, s67, s69
s_add_u32 s70, s70, s71
s_add_u32 s71, s70, s69
v_mul_f32 v{SC}, s68, v{AB[t]}
""")
            for i in range(8):
                e(f"v_pk_fma_f32 {vr(a+2*i,2)}, {vr(CS[f]+2*i,2)}, v[{AB[t]}:{AB[t]+1}], {vr(a+2*i,2)} op_sel:[0,1,0] op_sel_hi:[1,1,1]")
            for i in range(8):
                e(f"v_pk_mul_f32 {vr(a+2*i,2)}, {vr(a+2*i,2)}, v[{SC}:{SC+1}] op_sel_hi:[1,0]")
            P = 40 + 8 * t
            for i in range(8):
                e(f"v_cvt_pk_bf16_f32 v{P+i}, v{a+2*i}, v{a+2*i+1}")
            e(f"""buffer_store_dwordx4 {vr(P,4)}, v{L16}, s[{WSR}:{WSR+3}], s70 offen
buffer_store_dwordx4 {vr(P+4,4)}, v{L16}, s[{WSR}:{WSR+3}], s71 offen""")
        e(f"""s_cmp_lt_u32 s66, 16
s_cbranch_scc1 {Lnext}""")
        NN = [[56, 58], [60, 62]]
        for t in range(2):
            a = acc(t, f)
            for hb in range(2):
                N = NN[t][hb]
                b = a + 8 * hb
                e(f"v_pk_mul_f32 v[{N}:{N+1}], {vr(b,2)}, {vr(b,2)}")
            for i in range(1, 4):
                for hb in range(2):
                    N = NN[t][hb]
                    b = a + 8 * hb
                    e(f"v_pk_fma_f32 v[{N}:{N+1}], {vr(b+2*i,2)}, {vr(b+2*i,2)}, v[{N}:{N+1}]")
        for t in range(2):
            for hb in range(2):
                N = NN[t][hb]
                e(f"v_add_f32 v{N}, v{N}, v{N+1}")
        e(f"""s_lshl_b32 s70, s67, 8
s_and_b32 s71, s63, 62
s_lshl_b32 s71, s71, 2
v_permlane32_swap_b32 v56, v58
v_permlane32_swap_b32 v60, v62
s_add_u32 s70, s70, s71
s_add_u32 s70, s70, {WS_KNM}
v_add_f32 v56, v56, v58
v_add_f32 v60, v60, v62
v_max_f32 v56, v56, v60
v_lshlrev_b32 v58, 8, v{HALF}
s_nop 0
v_max_f32_dpp v56, v56, v56 row_shr:1 row_mask:0xf bank_mask:0xf
s_nop 1
v_max_f32_dpp v56, v56, v56 row_shr:2 row_mask:0xf bank_mask:0xf
s_nop 1
v_max_f32_dpp v56, v56, v56 row_shr:4 row_mask:0xf bank_mask:0xf
s_nop 1
v_max_f32_dpp v56, v56, v56 row_shr:8 row_mask:0xf bank_mask:0xf
s_nop 1
v_max_f32_dpp v56, v56, v56 row_bcast:15 row_mask:0xa bank_mask:0xf
s_mov_b32 exec_lo, 0x80000000
s_mov_b32 exec_hi, 0x80000000
v_mov_b32 v57, v56
buffer_store_dwordx2 v[56:57], v58, s[{WSR}:{WSR+3}], s70 offen
s_mov_b64 exec, -1
""")
        e(f"s_branch {Lnext}")
        k.label(Lrem)
        for t, stt in enumerate([63, 64]):
            a = acc(t, f)
            e(f"""s_lshr_b32 s70, s{stt}, 1
s_mul_i32 s70, s70, {BLK}
s_and_b32 s71, s{stt}, 1
s_lshl_b32 s71, s71, 7
s_add_u32 s70, s70, s71
s_add_u32 s70, s70, 4480
s_lshl_b32 s71, s{stt}, 7
s_add_u32 s71, s71, {WS_QR}
s_lshl_b32 s73, s{stt}, 2
s_add_u32 s73, s73, {WS_KNR}
""")
            for j in range(3):
                b = 76 + 4 * j
                e(f"""s_add_u32 s66, s65, {j}
s_and_b32 s67, s66, 15
s_lshl_b32 s67, s67, 1
s_lshl_b32 s74, s67, 8
s_add_u32 s74, s74, s73
s_cmp_lt_u32 s66, 16
s_cselect_b32 s{b+1}, 8192, {KVH}
s_cselect_b32 s{b+2}, {f32hex(QSCALE)}, 1.0
s_cselect_b32 s{b}, s71, s70
s_cselect_b32 s{b+3}, {HUGE}, s74
s_mul_i32 s67, s67, s{b+1}
s_add_u32 s{b}, s{b}, s67
s_cmp_ge_u32 s66, 32
s_cselect_b32 s{b}, {HUGE}, s{b}
s_cselect_b32 s{b+3}, {HUGE}, s{b+3}
""")
            V = 32
            e(f"""v_cmp_eq_u32 s[74:75], 1, v{HALF}
v_mov_b32 v{V}, s76
v_mov_b32 v{V+1}, s77
v_mov_b32 v{V+2}, s78
v_mov_b32 v{V+3}, s79
v_mov_b32 v{V+4}, s80
v_mov_b32 v{V+5}, s81
v_mov_b32 v{V+6}, s82
v_mov_b32 v{V+7}, s83
v_cndmask_b32 v{V}, v{V}, v{V+4}, s[74:75]
v_cndmask_b32 v{V+1}, v{V+1}, v{V+5}, s[74:75]
v_cndmask_b32 v{V+2}, v{V+2}, v{V+6}, s[74:75]
v_cndmask_b32 v{V+3}, v{V+3}, v{V+7}, s[74:75]
v_mov_b32 v{V+4}, s84
v_mov_b32 v{V+7}, s87
v_mov_b32 v{V+5}, {HUGE}
v_cndmask_b32 v{V+4}, v{V+4}, v{V+5}, s[74:75]
v_cndmask_b32 v{V+7}, v{V+7}, v{V+5}, s[74:75]
v_lshl_add_u32 v{V}, v{M}, 2, v{V}
v_lshl_add_u32 v{V+4}, v{M}, 2, v{V+4}
v_add_u32 v{V+1}, v{V}, v{V+1}
v_add_u32 v{V+5}, s85, v{V+4}
v_mul_f32 v{V+2}, v{V+2}, v{AB[t]}
v_mul_f32 v{V+6}, s86, v{AB[t]}
""")
            for i in range(8):
                e(f"v_fma_f32 v{a+i}, v{CS[f]+i}, v{AB[t]+1}, v{a+i}")
            for i in range(8):
                e(f"v_mul_f32 v{a+i}, v{a+i}, v{V+2 if i < 4 else V+6}")
            P = 40
            for i in range(4):
                e(f"""v_cvt_pk_bf16_f32 v{P+i}, v{a+2*i}, v{a+2*i+1}
v_mul_f32 v{P+4+i}, v{a+2*i}, v{a+2*i}
v_fma_f32 v{P+4+i}, v{a+2*i+1}, v{a+2*i+1}, v{P+4+i}""")
            for i, ad in enumerate([V, V+1, V+4, V+5]):
                e(f"buffer_store_dword v{P+i}, v{ad}, s[{WSR}:{WSR+3}], 0 offen")
            for sh in ["row_shr:1", "row_shr:2", "row_shr:4", "row_shr:8"]:
                for i in range(4):
                    e(f"v_max_f32_dpp v{P+4+i}, v{P+4+i}, v{P+4+i} {sh} row_mask:0xf bank_mask:0xf")
            for i in range(4):
                e(f"v_max_f32_dpp v{P+4+i}, v{P+4+i}, v{P+4+i} row_bcast:15 row_mask:0xa bank_mask:0xf")
            e(f"""s_mov_b32 exec_lo, 0x80000000
s_mov_b32 exec_hi, 0x80000000
buffer_store_dword v{P+4}, v{V+3}, s[{WSR}:{WSR+3}], 0 offen
buffer_store_dword v{P+5}, v{V+3}, s[{WSR}:{WSR+3}], 0 offen offset:256
buffer_store_dword v{P+6}, v{V+7}, s[{WSR}:{WSR+3}], 0 offen
buffer_store_dword v{P+7}, v{V+7}, s[{WSR}:{WSR+3}], 0 offen offset:256
s_mov_b64 exec, -1
""")
        k.label(Lnext)
    e(f"s_branch {LDONE}")
    k.label(LV)
    mainloop(True)
    stats_final(True)
    RW = 160
    CSL = [21, 26]
    ADR = [(18, 19), (20, 27)]
    e(f"""s_lshl_b32 s46, s62, 7
v_lshl_add_u32 v{T+5}, v{M}, 2, s46
ds_read_b32 v{CSL[1]}, v{T+5} offset:{SCR+1024}
s_lshl_b32 s46, s38, 8
v_lshl_add_u32 v{T+8}, v{HALF}, 5, s46
v_xor_b32 v{T+9}, 256, v{T+8}
s_lshl_b32 s63, s36, 2
s_xor_b32 s64, s38, 1
s_add_u32 s64, s64, s63
s_add_u32 s63, s63, s38
s_sub_u32 s65, s37, 11
s_lshl_b32 s65, s65, 7
v_mov_b32 v32, s47
v_mov_b32 v33, s47
v_mov_b32 v34, s47
v_mov_b32 v35, s47
""")
    def rwread(t):
        for a in range(4):
            e(f"""ds_read_b128 {vr(RW+8*a,4)}, v{T+8+t} offset:{SCR+a*64}
ds_read_b128 {vr(RW+8*a+4,4)}, v{T+8+t} offset:{SCR+a*64+16}""")
    rwread(0)
    SLOTC = 0 | (13 << 5) | (9 << 10) | (4 << 15) | (17 << 20)
    for f, sft in enumerate([61, 62]):
        AD, AO = ADR[f]
        e(f"""s_lshl_b32 s66, s{sft}, 5
s_add_u32 s66, s66, s65
v_add_u32 v{T+2}, s66, v{M}
v_mul_u32_u24 v{T+3}, 3641, v{T+2}
v_lshrrev_b32 v{T+3}, 16, v{T+3}
v_mul_u32_u24 v{T+6}, 18, v{T+3}
v_sub_u32 v{T+2}, v{T+2}, v{T+6}
v_lshrrev_b32 v{T+6}, 2, v{T+2}
v_mul_u32_u24 v{T+6}, 5, v{T+6}
s_mov_b32 s46, {SLOTC}
v_bfe_u32 v{T+6}, s46, v{T+6}, 5
v_and_b32 v{T+7}, 3, v{T+2}
v_add_u32 v{T+6}, v{T+6}, v{T+7}
s_mov_b32 s46, {KVH}
v_mul_lo_u32 v{T+3}, v{T+3}, s46
v_mul_u32_u24 v{T+7}, 304, v{HALF}
v_add_u32 v{T+3}, v{T+3}, v{T+7}
s_cmp_ge_u32 s66, 576
s_cselect_b32 s46, {HUGE}, 0
v_add_u32 v{T+3}, s46, v{T+3}
v_lshl_add_u32 v{AD}, v{T+6}, 4, v{T+3}
v_add_u32 v{AO}, 128, v{T+3}
v_cmp_eq_u32 vcc, 0, v{T+2}
v_mov_b32 v{T+7}, {HUGE}
s_nop 0
v_cndmask_b32 v{AO}, v{T+7}, v{AO}, vcc
""")
    for t, stt in enumerate([63, 64]):
        e(f"""s_lshr_b32 s70, s{stt}, 1
s_mul_i32 s70, s70, {BLK}
s_and_b32 s71, s{stt}, 1
s_mul_i32 s71, s71, 1216
s_add_u32 s70, s70, s71
s_add_u32 s70, s70, 2048
s_waitcnt lgkmcnt(0)
""")
        for f in range(2):
            a = acc(t, f)
            for r in range(16):
                e(f"v_fma_f32 v{a+r}, v{CSL[f]}, v{RW+2*r+1}, v{a+r}")
            for r in range(16):
                e(f"v_mul_f32 v{a+r}, v{a+r}, v{RW+2*r}")
        if t == 0:
            rwread(1)
        for f in range(2):
            a = acc(t, f)
            AD, AO = ADR[f]
            P = 40 + 8 * f
            for i in range(8):
                e(f"v_cvt_pk_bf16_f32 v{P+i}, v{a+2*i}, v{a+2*i+1}")
            e(f"""buffer_store_dwordx4 {vr(P,4)}, v{AD}, s[{WSR}:{WSR+3}], s70 offen
buffer_store_dwordx4 {vr(P+4,4)}, v{AD}, s[{WSR}:{WSR+3}], s70 offen offset:608
buffer_store_dwordx4 v[32:35], v{AO}, s[{WSR}:{WSR+3}], s70 offen
buffer_store_dwordx4 v[32:35], v{AO}, s[{WSR}:{WSR+3}], s70 offen offset:608
""")
    k.label(LDONE)
    if PROF:
        e(f"""s_memtime s[94:95]
s_waitcnt vmcnt(0)
s_memtime s[96:97]
s_memrealtime s[78:79]
s_waitcnt lgkmcnt(0)
s_mov_b32 m0, 10
s_nop 0
v_writelane_b32 v200, s98, m0
s_mov_b32 m0, 11
s_nop 0
v_writelane_b32 v200, s78, m0
s_sub_u32 s90, s90, s88
s_sub_u32 s92, s92, s88
s_sub_u32 s94, s94, s88
s_sub_u32 s96, s96, s88
v_mov_b32 v192, s90
v_mov_b32 v193, s92
v_mov_b32 v194, s94
v_mov_b32 v195, s96
s_lshl_b32 s46, s2, 2
s_add_u32 s46, s46, s38
s_lshl_b32 s46, s46, 4
s_add_u32 s46, s46, 0xF10000
v_mov_b32 v196, 0
s_mov_b64 exec, 1
buffer_store_dwordx4 v[192:195], v196, s[{WSR}:{WSR+3}], s46 offen
s_mov_b64 exec, 0xffff
s_lshl_b32 s46, s2, 2
s_add_u32 s46, s46, s38
s_lshl_b32 s46, s46, 6
s_add_u32 s46, s46, 0xF40000
v_lshlrev_b32 v196, 2, v1
buffer_store_dword v200, v196, s[{WSR}:{WSR+3}], s46 offen
s_mov_b64 exec, -1""")
    k.label(Lend)
    e("s_endpgm")
    return k, 208, 102
```

```python
from asmlib import *
from layout import *
import os
PROF = int(os.environ.get("PROF", "0"))

def gen_k1():
    k = K("k1_kernel")
    e = k.e
    def stamp(i):
        if PROF:
            e(f"s_memtime s[{88+2*i}:{89+2*i}]")
    XA, WA, WSR, WOR, WRR, ZR, DBG = 16, 20, 24, 28, 32, 52, 56
    LANE, M, HALF = 1, 2, 3
    XOE, XOO, WOFF = 4, 5, 6
    XRD, WRD0, WRD1 = 7, 8, 9
    XAK = [10, 11, 12, 13]
    WA0, WA1 = 14, 15
    POLL = 16
    T = 20
    WOT, WOH = 128, 132
    DX = 136
    buf = [dict(X=32+12*i, W=[36+12*i, 40+12*i]) for i in range(4)]
    acc = lambda f: 80 + 16 * f
    CSA = 112
    SCR = 32768
    Lend = "k1_end"
    e(f"""s_cmp_ge_u32 s2, 256
s_cbranch_scc1 {Lend}
s_load_dwordx4 s[4:7], s[0:1], 0
s_load_dwordx4 s[12:15], s[0:1], 72
s_load_dwordx2 s[8:9], s[0:1], 16
s_load_dwordx2 s[10:11], s[0:1], 32
{"s_memtime s[88:89]" if PROF else ""}
{"s_memrealtime s[98:99]" if PROF else ""}
v_lshrrev_b32 v{T}, 6, v0
v_and_b32 v{LANE}, 63, v0
v_readfirstlane_b32 s38, v{T}
v_and_b32 v{M}, 31, v0
v_bfe_u32 v{HALF}, v0, 5, 1
s_and_b32 s36, s2, 7
s_lshl_b32 s36, s36, 1
s_bfe_u32 s46, s2, 0x10003
s_add_u32 s36, s36, s46
s_lshr_b32 s37, s2, 4
s_mov_b32 s47, 0x3f803f80
s_mul_i32 s50, s37, 216
s_sub_u32 s46, s37, 11
s_lshl_b32 s46, s46, 8
s_add_u32 s46, s46, 2304
s_cmp_ge_u32 s37, 11
s_cselect_b32 s50, s46, s50
s_cselect_b32 s48, 1, 0
v_lshrrev_b32 v{T}, 3, v{LANE}
v_lshrrev_b32 v{T+1}, 4, v{LANE}
v_and_b32 v{T+2}, 7, v{LANE}
v_xor_b32 v{T+2}, v{T+2}, v{T+1}
v_mul_u32_u24 v{T}, 1152, v{T}
v_lshl_add_u32 v{XOE}, v{T+2}, 4, v{T}
v_xor_b32 v{XOO}, 64, v{XOE}
v_and_b32 v{T+3}, 15, v{LANE}
v_lshlrev_b32 v{T+4}, 2, v{T+1}
v_xor_b32 v{T+3}, v{T+3}, v{T+4}
v_mul_u32_u24 v{T+4}, 3456, v{T+1}
v_lshl_add_u32 v{WOFF}, v{T+3}, 4, v{T+4}
s_lshl_b32 s46, s48, 1
s_add_u32 s46, s46, 14
v_cmp_gt_u32 s[60:61], s46, v{T+3}
v_mov_b32 v{T+4}, {HUGE}
s_lshl_b32 s41, s36, 7
s_lshl_b32 s46, s38, 4
v_cndmask_b32 v{WOFF}, v{T+4}, v{WOFF}, s[60:61]
s_add_u32 s41, s41, s46
s_mul_i32 s41, s41, 1152
s_mul_i32 s42, s38, {8*3456}
s_add_u32 s42, s42, s50
s_lshl_b32 s43, s38, 11
s_waitcnt lgkmcnt(0)
""")
    srd(k, XA, 4, S * D * 2)
    srd(k, WA, 6, D * 3 * D * 2)
    def dma_stage():
        for j in range(2):
            e(f"""s_add_u32 m0, s43, {j*1024}
s_add_u32 s46, s41, {j*9216}
buffer_load_dwordx4 v{XOE if j % 2 == 0 else XOO}, s[{XA}:{XA+3}], s46 offen lds
s_add_u32 m0, s43, {16384+j*1024}
s_add_u32 s46, s42, {j*13824}
buffer_load_dwordx4 v{WOFF}, s[{WA}:{WA+3}], s46 offen lds""")
        e(f"""s_add_u32 s41, s41, 128
s_add_u32 s42, s42, {64*3456}
s_add_u32 s43, s43, 32768
s_and_b32 s43, s43, 0x1ffff""")
    dma_stage()
    PX, PX3 = 144, 145
    e(f"""v_lshlrev_b32 v{PX}, 4, v{LANE}
v_cmp_gt_u32 s[60:61], 8, v{LANE}
s_mov_b32 s64, s37
s_mov_b32 s73, 0
v_cndmask_b32 v{PX3}, v{T+4}, v{PX}, s[60:61]""")
    k.label("k1_ploop")
    e(f"""s_lshl_b32 s46, s36, 7
s_lshl_b32 s68, s64, 3
s_add_u32 s46, s46, s68
s_add_u32 s68, s46, s38
s_mul_i32 s46, s68, 1152
buffer_load_dwordx4 {vr(DX,4)}, v{PX}, s[{XA}:{XA+3}], s46 offen
buffer_load_dwordx4 {vr(DX+4,4)}, v{PX3}, s[{XA}:{XA+3}], s46 offen offset:1024
s_cmp_eq_u32 s73, 1
s_cbranch_scc1 k1_pfin0
""")
    dma_stage()
    dma_stage()
    srd(k, WSR, 14, WS_SIZE)
    srd(k, WOR, 8, D * D * 2)
    srd(k, WRR, 10, D * 2)
    srd(k, DBG, 12, 256)
    e(f"""s_lshl_b32 s51, s38, 8
s_add_u32 s51, s51, s2
s_mul_i32 s65, s51, 1821
s_lshr_b32 s65, s65, 16
s_mul_i32 s69, s65, 36
s_sub_u32 s69, s51, s69
s_mul_i32 s70, s69, {18*1152}
s_sub_u32 s46, s69, 32
s_mul_i32 s46, s46, {144*1152}
s_add_u32 s46, s46, {16*1152}
s_cmp_ge_u32 s69, 32
s_cselect_b32 s70, s46, s70
s_cselect_b32 s71, {72*1152}, {8*1152}
s_cselect_b32 s72, {18*1152}, {2*1152}
s_cmp_ge_u32 s51, 648
s_cbranch_scc1 k1_nowo
v_and_b32 v{T}, 0x13, v{M}
v_and_b32 v{T+1}, 4, v{M}
v_lshl_or_b32 v{T}, v{T+1}, 1, v{T}
v_and_b32 v{T+1}, 8, v{M}
v_lshrrev_b32 v{T+1}, 1, v{T+1}
v_or_b32 v{T}, v{T}, v{T+1}
s_lshl_b32 s65, s65, 5
v_add_u32 v{T}, s65, v{T}
v_lshlrev_b32 v{T}, 1, v{T}
v_mul_lo_u32 v{T+1}, v{HALF}, s71
v_add_u32 v{T}, v{T}, v{T+1}
""")
    for jj in range(4):
        e(f"""buffer_load_ushort v{WOT+jj}, v{T}, s[{WOR}:{WOR+3}], s70 offen
buffer_load_ushort v{WOH+jj}, v{T}, s[{WOR}:{WOR+3}], s70 offen offset:1152""")
        if jj < 3:
            e("s_add_u32 s70, s70, s72")
    k.label("k1_nowo")
    e(f"""s_and_b32 s39, s38, 3
s_lshr_b32 s40, s38, 2
v_bfe_u32 v{T}, v{M}, 1, 3
v_xor_b32 v{T}, v{T}, v{HALF}
v_lshlrev_b32 v{T+1}, 7, v{M}
v_lshl_add_u32 v{T+1}, v{T}, 4, v{T+1}
s_lshl_b32 s46, s39, 12
v_add_u32 v{XRD}, s46, v{T+1}
""")
    R_, CQ, A_, KROW, QUAD, PERM = T, T+1, T+2, T+3, T+4, T+5
    e(f"""v_bfe_u32 v{R_}, v{LANE}, 2, 2
v_and_b32 v{CQ}, 3, v{LANE}
v_bfe_u32 v{A_}, v{LANE}, 4, 1
v_lshl_add_u32 v{KROW}, v{HALF}, 3, v{R_}
v_lshl_add_u32 v{QUAD}, v{A_}, 2, v{CQ}
v_and_b32 v{PERM}, 1, v{CQ}
v_lshlrev_b32 v{PERM}, 1, v{PERM}
v_lshrrev_b32 v{T+6}, 1, v{CQ}
v_or_b32 v{PERM}, v{PERM}, v{T+6}
v_mad_u32_u24 v{PERM}, v{A_}, 5, v{PERM}
s_and_b32 s46, s39, 1
s_lshl_b32 s61, s40, 1
s_add_u32 s61, s61, s46
s_xor_b32 s62, s61, 1
s_cmp_eq_u32 s61, s39
s_cselect_b32 s49, 1, 0
s_cmp_eq_u32 s48, 1
s_cselect_b64 s[76:77], -1, 0
""")
    for f, (sft, dst) in enumerate([(61, WRD0), (62, WRD1)]):
        UB = T + 6
        e(f"""s_mul_i32 s46, s{sft}, 72
v_lshl_add_u32 v{UB}, v{PERM}, 3, s46
v_min_u32 v{T+7}, 2, v{QUAD}
v_mul_u32_u24 v{T+7}, 72, v{T+7}
v_add_u32 v{T+7}, 32, v{T+7}
s_cmp_eq_u32 s{sft}, 3
s_cselect_b64 s[74:75], -1, 0
s_lshl_b32 s46, s{sft}, 6
v_lshl_add_u32 v28, v{QUAD}, 3, s46
v_cndmask_b32 v{UB}, v{UB}, v{T+7}, s[74:75]
v_cndmask_b32 v{UB}, v{UB}, v28, s[76:77]
v_lshrrev_b32 v{T+7}, 4, v{UB}
v_lshlrev_b32 v28, 2, v{R_}
v_xor_b32 v{T+7}, v{T+7}, v28
v_and_b32 v{UB}, 15, v{UB}
v_lshl_add_u32 v{UB}, v{T+7}, 4, v{UB}
v_lshl_add_u32 v{UB}, v{KROW}, 8, v{UB}
v_add_u32 v{dst}, 16384, v{UB}
""")
    for r in range(56, 128):
        e(f"v_mov_b32 v{r}, 0")
    for r in range(28, 32):
        e(f"v_mov_b32 v{r}, s47")
    e(f"""s_mov_b32 s44, 0
s_mov_b32 s45, 0
s_lshl_b32 s46, s36, 2
v_mov_b32 v{POLL}, s46
v_mov_b32 v{POLL+2}, 1
s_cmp_ge_u32 s51, 648
s_cbranch_scc1 k1_pw8
s_waitcnt vmcnt(16)
s_branch k1_pfin""")
    k.label("k1_pw8")
    e("s_waitcnt vmcnt(8)\ns_branch k1_pfin")
    k.label("k1_pfin0")
    e("s_waitcnt vmcnt(0)")
    k.label("k1_pfin")
    SX, SQ, UU = 146, 148, 150
    for i in range(8):
        u = UU + 2 * (i % 2)
        e(f"""v_lshlrev_b32 v{u}, 16, v{DX+i}
v_and_b32 v{u+1}, 0xffff0000, v{DX+i}""")
        if i == 0:
            e(f"""v_pk_mul_f32 {vr(SQ,2)}, {vr(u,2)}, {vr(u,2)}
v_mov_b32 v{SX}, v{u}
v_mov_b32 v{SX+1}, v{u+1}""")
        else:
            e(f"""v_pk_add_f32 {vr(SX,2)}, {vr(SX,2)}, {vr(u,2)}
v_pk_fma_f32 {vr(SQ,2)}, {vr(u,2)}, {vr(u,2)}, {vr(SQ,2)}""")
    e(f"""v_add_f32 v{SX}, v{SX}, v{SX+1}
v_add_f32 v{SQ}, v{SQ}, v{SQ+1}
s_lshl_b32 s46, s68, 3
s_add_u32 s46, s46, {WS_XST}""")
    for sh, rm in [("row_shr:1", "0xf"), ("row_shr:2", "0xf"), ("row_shr:4", "0xf"), ("row_shr:8", "0xf"), ("row_bcast:15", "0xa"), ("row_bcast:31", "0xc")]:
        e(f"""v_add_f32_dpp v{SX}, v{SX}, v{SX} {sh} row_mask:{rm} bank_mask:0xf
v_add_f32_dpp v{SQ}, v{SQ}, v{SQ} {sh} row_mask:{rm} bank_mask:0xf
s_nop 0""")
    A_T, B_T, U1, U2 = 150, 151, 152, 153
    e(f"""v_mul_f32 v{U1}, {f32hex(1.0/576)}, v{SX}
v_mul_f32 v{U2}, {f32hex(1.0/576)}, v{SQ}
v_fma_f32 v{U2}, -v{U1}, v{U1}, v{U2}
v_max_f32 v{U2}, 0, v{U2}
v_cvt_pk_bf16_f32 v{U1}, v{U1}, v{U1}
v_cvt_pk_bf16_f32 v{U2}, v{U2}, v{U2}
v_and_b32 v{U1}, 0xffff0000, v{U1}
v_and_b32 v{U2}, 0xffff0000, v{U2}
v_add_f32 v{U2}, {f32hex(1e-5)}, v{U2}
v_cvt_pk_bf16_f32 v{U2}, v{U2}, v{U2}
v_and_b32 v{U2}, 0xffff0000, v{U2}
v_sqrt_f32 v{U2}, v{U2}
v_sub_f32 v{B_T}, 0, v{U1}
v_cvt_pk_bf16_f32 v{U2}, v{U2}, v{U2}
v_and_b32 v{U2}, 0xffff0000, v{U2}
v_rcp_f32 v{A_T}, v{U2}
v_mov_b32 v{U1}, 0
s_mov_b32 exec_lo, 0
s_mov_b32 exec_hi, 0x80000000
buffer_store_dwordx2 v[{A_T}:{B_T}], v{U1}, s[{WSR}:{WSR+3}], s46 offen sc1
s_mov_b64 exec, -1
s_cmp_eq_u32 s73, 0
s_cbranch_scc1 k1_go
s_add_u32 s64, s64, 1
s_waitcnt vmcnt(0)
s_cmp_lt_u32 s64, 16
s_cbranch_scc1 k1_ploop
s_setpc_b64 s[78:79]
""")
    k.label("k1_go")

    def reads(ks, b):
        e(f"""ds_read_b128 {vr(b['X'],4)}, v{XAK[ks]}
ds_read_b64_tr_b16 {vr(b['W'][0],2)}, v{WA0} offset:{16*ks*256}
ds_read_b64_tr_b16 {vr(b['W'][0]+2,2)}, v{WA0} offset:{(16*ks+4)*256}
ds_read_b64_tr_b16 {vr(b['W'][1],2)}, v{WA1} offset:{16*ks*256}
ds_read_b64_tr_b16 {vr(b['W'][1]+2,2)}, v{WA1} offset:{(16*ks+4)*256}""")
    def mfmas(b, isV):
        X = vr(b['X'], 4)
        for f in range(2):
            a = acc(f); W = vr(b['W'][f], 4)
            if isV: e(f"v_mfma_f32_32x32x16_bf16 {vr(a,16)}, {X}, {W}, {vr(a,16)}")
            else:   e(f"v_mfma_f32_32x32x16_bf16 {vr(a,16)}, {W}, {X}, {vr(a,16)}")
        Ls = k.newlabel("nocs")
        W = vr(b['W'][0], 4)
        e(f"s_cbranch_vccz {Ls}")
        if isV: e(f"v_mfma_f32_32x32x16_bf16 {vr(CSA,16)}, v[28:31], {W}, {vr(CSA,16)}")
        else:   e(f"v_mfma_f32_32x32x16_bf16 {vr(CSA,16)}, {W}, v[28:31], {vr(CSA,16)}")
        k.label(Ls)

    def mainloop(isV):
        L = k.newlabel("loop")
        e("s_cmp_eq_u32 s49, 1\ns_cselect_b64 vcc, -1, 0")
        k.lines.append(".p2align 3")
        k.label(L)
        e(f"""s_cmp_lt_u32 s44, 6
s_cbranch_scc1 {L}w8
s_cmp_eq_u32 s44, 6
s_cbranch_scc1 {L}w9
s_cmp_eq_u32 s44, 7
s_cbranch_scc1 {L}w5
s_branch {L}wd""")
        k.label(L + "w5")
        e(f"s_waitcnt vmcnt(5)\ns_branch {L}wd")
        k.label(L + "w9")
        e(f"s_waitcnt vmcnt(9)\ns_branch {L}wd")
        k.label(L + "w8")
        e("s_waitcnt vmcnt(8)")
        k.label(L + "wd")
        e(f"""s_barrier
v_add_u32 v{XAK[0]}, s45, v{XRD}
v_add_u32 v{WA0}, s45, v{WRD0}
v_add_u32 v{WA1}, s45, v{WRD1}""")
        if PROF:
            e("s_cmp_lg_u32 s44, 0\ns_cbranch_scc1 " + L + "x")
            stamp(1)
            k.label(L + "x")
        reads(0, buf[0])
        for ks in range(1, 4):
            e(f"v_xor_b32 v{XAK[ks]}, {ks<<5}, v{XAK[0]}")
        mfmas(buf[2], isV)
        reads(1, buf[1])
        mfmas(buf[3], isV)
        reads(2, buf[2])
        e(f"""s_cmp_gt_u32 s44, 5
s_cbranch_scc1 {L}nd""")
        dma_stage()
        e(f"""s_cmp_lg_u32 s44, 5
s_cbranch_scc1 {L}np
buffer_load_dword v{POLL+1}, v{POLL}, s[{DBG}:{DBG+3}], 0 offen sc1""")
        k.label(L + "np")
        e(f"""s_cmp_lg_u32 s44, 3
s_cbranch_scc1 {L}nd
s_cmp_lg_u32 s38, 7
s_cbranch_scc1 {L}nd
s_mov_b64 exec, 1
buffer_atomic_add v{POLL+2}, v{POLL}, s[{DBG}:{DBG+3}], 0 offen
s_mov_b64 exec, -1""")
        k.label(L + "nd")
        e("s_waitcnt lgkmcnt(10)")
        mfmas(buf[0], isV)
        reads(3, buf[3])
        e("s_waitcnt lgkmcnt(10)")
        mfmas(buf[1], isV)
        e(f"""s_cmp_lg_u32 s44, 7
s_cbranch_scc1 {L}nf
s_getpc_b64 s[80:81]""")
        k.label(L + "pb")
        e(f"""s_add_u32 s80, s80, {L}nf-{L}pb
s_addc_u32 s81, s81, 0
s_branch k1_fetch""")
        k.label(L + "nf")
        e(f"""s_add_u32 s45, s45, 32768
s_and_b32 s45, s45, 0x1ffff
s_add_u32 s44, s44, 1
s_cmp_lt_u32 s44, 9
s_waitcnt lgkmcnt(0)
s_cbranch_scc1 {L}""")
        mfmas(buf[2], isV)
        mfmas(buf[3], isV)
        stamp(2)
        e(f"""s_cmp_eq_u32 s74, 0
s_cbranch_scc1 {L}ok
buffer_load_dwordx2 v[{T+2}:{T+3}], v{T}, s[{WSR}:{WSR+3}], s75 offen sc1""")
        k.label(L + "ok")
        e(f"""s_lshl_b32 s46, s38, 7
v_add_u32 v{T}, s46, v{T}
s_waitcnt vmcnt(0)
s_mov_b64 exec, 0xffff
ds_write_b64 v{T}, v[{T+2}:{T+3}] offset:{SCR}
s_mov_b64 exec, -1
s_cbranch_vccz {L}ncp
s_lshl_b32 s46, s61, 7""")
        if isV:
            e(f"""v_lshl_add_u32 v{T+5}, v{M}, 2, s46
s_nop 7
ds_write_b32 v{T+5}, v{CSA} offset:{SCR+1024}""")
        else:
            e(f"""v_lshl_add_u32 v{T+5}, v{HALF}, 6, s46
s_nop 7
s_mov_b32 exec_lo, 1
s_mov_b32 exec_hi, 1
ds_write_b128 v{T+5}, {vr(CSA,4)} offset:{SCR+1024}
ds_write_b128 v{T+5}, {vr(CSA+4,4)} offset:{SCR+1024+16}
ds_write_b128 v{T+5}, {vr(CSA+8,4)} offset:{SCR+1024+32}
ds_write_b128 v{T+5}, {vr(CSA+12,4)} offset:{SCR+1024+48}
s_mov_b64 exec, -1""")
        k.label(L + "ncp")
        e("s_waitcnt lgkmcnt(0)\ns_barrier")

    LV, LDONE = "k1_vpath", "k1_done"
    e(f"s_cmp_eq_u32 s48, 1\ns_cbranch_scc1 {LV}")
    mainloop(False)
    AB = 22
    CS = [112, 136]
    L16 = 27
    e(f"""s_lshl_b32 s46, s39, 8
v_lshl_add_u32 v{T}, v{M}, 3, s46
ds_read_b64 v[{AB}:{AB+1}], v{T} offset:{SCR}""")
    for f, sft in enumerate([61, 62]):
        e(f"""s_lshl_b32 s46, s{sft}, 7
v_lshl_add_u32 v{T+4+f}, v{HALF}, 6, s46""")
        for q in range(4):
            e(f"ds_read_b128 {vr(CS[f]+4*q,4)}, v{T+4+f} offset:{SCR+1024+16*q}")
    e(f"""v_lshlrev_b32 v{L16}, 4, v{LANE}
s_lshl_b32 s63, s36, 2
s_add_u32 s63, s63, s39
s_mul_i32 s65, s37, 3
s_lshr_b32 s82, s63, 1
s_mul_i32 s82, s82, {BLK}
s_and_b32 s83, s63, 1
s_waitcnt lgkmcnt(0)
""")
    SC = 32
    for f, sft in enumerate([61, 62]):
        Lrem, Lnext = k.newlabel("rem"), k.newlabel("next")
        a = acc(f)
        e(f"""s_cmp_eq_u32 s{sft}, 3
s_cbranch_scc1 {Lrem}
s_add_u32 s66, s65, s{sft}
s_cmp_ge_u32 s66, 32
s_cbranch_scc1 {Lnext}
s_and_b32 s67, s66, 15
s_lshl_b32 s67, s67, 1
s_lshl_b32 s71, s83, 10
s_add_u32 s70, s82, s71
s_lshl_b32 s71, s63, 10
s_add_u32 s71, s71, {WS_QM}
s_cmp_lt_u32 s66, 16
s_cselect_b32 s68, {f32hex(QSCALE)}, 1.0
s_cselect_b32 s69, 65536, {KVH}
s_cselect_b32 s70, s71, s70
s_mul_i32 s71, s67, s69
s_add_u32 s70, s70, s71
s_add_u32 s71, s70, s69
v_mul_f32 v{SC}, s68, v{AB}
""")
        for i in range(8):
            e(f"v_pk_fma_f32 {vr(a+2*i,2)}, {vr(CS[f]+2*i,2)}, v[{AB}:{AB+1}], {vr(a+2*i,2)} op_sel:[0,1,0] op_sel_hi:[1,1,1]")
        for i in range(8):
            e(f"v_pk_mul_f32 {vr(a+2*i,2)}, {vr(a+2*i,2)}, v[{SC}:{SC+1}] op_sel_hi:[1,0]")
        P = 40 + 8 * f
        for i in range(8):
            e(f"v_cvt_pk_bf16_f32 v{P+i}, v{a+2*i}, v{a+2*i+1}")
        e(f"""buffer_store_dwordx4 {vr(P,4)}, v{L16}, s[{WSR}:{WSR+3}], s70 offen
buffer_store_dwordx4 {vr(P+4,4)}, v{L16}, s[{WSR}:{WSR+3}], s71 offen
s_cmp_lt_u32 s66, 16
s_cbranch_scc1 {Lnext}""")
        N0, N1 = 56, 58
        for hb, N in enumerate([N0, N1]):
            e(f"v_pk_mul_f32 v[{N}:{N+1}], {vr(a+8*hb,2)}, {vr(a+8*hb,2)}")
        for i in range(1, 4):
            for hb, N in enumerate([N0, N1]):
                b = a + 8 * hb
                e(f"v_pk_fma_f32 v[{N}:{N+1}], {vr(b+2*i,2)}, {vr(b+2*i,2)}, v[{N}:{N+1}]")
        e(f"""v_add_f32 v{N0}, v{N0}, v{N0+1}
v_add_f32 v{N1}, v{N1}, v{N1+1}
s_lshl_b32 s70, s67, 8
s_lshl_b32 s71, s63, 2
v_permlane32_swap_b32 v{N0}, v{N1}
s_add_u32 s70, s70, s71
s_add_u32 s70, s70, {WS_KNM}
v_add_f32 v{N0}, v{N0}, v{N1}
v_lshlrev_b32 v{N1}, 8, v{HALF}
s_nop 0
v_max_f32_dpp v{N0}, v{N0}, v{N0} row_shr:1 row_mask:0xf bank_mask:0xf
s_nop 1
v_max_f32_dpp v{N0}, v{N0}, v{N0} row_shr:2 row_mask:0xf bank_mask:0xf
s_nop 1
v_max_f32_dpp v{N0}, v{N0}, v{N0} row_shr:4 row_mask:0xf bank_mask:0xf
s_nop 1
v_max_f32_dpp v{N0}, v{N0}, v{N0} row_shr:8 row_mask:0xf bank_mask:0xf
s_nop 1
v_max_f32_dpp v{N0}, v{N0}, v{N0} row_bcast:15 row_mask:0xa bank_mask:0xf
s_mov_b32 exec_lo, 0x80000000
s_mov_b32 exec_hi, 0x80000000
buffer_store_dword v{N0}, v{N1}, s[{WSR}:{WSR+3}], s70 offen
s_mov_b64 exec, -1
s_branch {Lnext}""")
        k.label(Lrem)
        e(f"""s_lshl_b32 s71, s83, 7
s_add_u32 s70, s82, s71
s_add_u32 s70, s70, 4480
s_lshl_b32 s71, s63, 7
s_add_u32 s71, s71, {WS_QR}
s_lshl_b32 s73, s63, 2
s_add_u32 s73, s73, {WS_KNR}
""")
        SB = [84, 88, 92] if not PROF else [84, 40, 44]
        for j in range(3):
            b = SB[j]
            e(f"""s_add_u32 s66, s65, {j}
s_and_b32 s67, s66, 15
s_lshl_b32 s67, s67, 1
s_lshl_b32 s74, s67, 8
s_add_u32 s74, s74, s73
s_cmp_lt_u32 s66, 16
s_cselect_b32 s{b+1}, 8192, {KVH}
s_cselect_b32 s{b+2}, {f32hex(QSCALE)}, 1.0
s_cselect_b32 s{b}, s71, s70
s_cselect_b32 s{b+3}, {HUGE}, s74
s_mul_i32 s67, s67, s{b+1}
s_add_u32 s{b}, s{b}, s67
s_cmp_ge_u32 s66, 32
s_cselect_b32 s{b}, {HUGE}, s{b}
s_cselect_b32 s{b+3}, {HUGE}, s{b+3}
""")
        V = 56
        b0, b1, b2 = SB
        e(f"""v_cmp_eq_u32 s[74:75], 1, v{HALF}
v_mov_b32 v{V}, s{b0}
v_mov_b32 v{V+1}, s{b0+1}
v_mov_b32 v{V+2}, s{b0+2}
v_mov_b32 v{V+3}, s{b0+3}
v_mov_b32 v{V+4}, s{b1}
v_mov_b32 v{V+5}, s{b1+1}
v_mov_b32 v{V+6}, s{b1+2}
v_mov_b32 v{V+7}, s{b1+3}
v_cndmask_b32 v{V}, v{V}, v{V+4}, s[74:75]
v_cndmask_b32 v{V+1}, v{V+1}, v{V+5}, s[74:75]
v_cndmask_b32 v{V+2}, v{V+2}, v{V+6}, s[74:75]
v_cndmask_b32 v{V+3}, v{V+3}, v{V+7}, s[74:75]
v_mov_b32 v{V+4}, s{b2}
v_mov_b32 v{V+7}, s{b2+3}
v_mov_b32 v{V+5}, {HUGE}
v_cndmask_b32 v{V+4}, v{V+4}, v{V+5}, s[74:75]
v_cndmask_b32 v{V+7}, v{V+7}, v{V+5}, s[74:75]
v_lshl_add_u32 v{V}, v{M}, 2, v{V}
v_lshl_add_u32 v{V+4}, v{M}, 2, v{V+4}
v_add_u32 v{V+1}, v{V}, v{V+1}
v_add_u32 v{V+5}, s{b2+1}, v{V+4}
v_mul_f32 v{V+2}, v{V+2}, v{AB}
v_mul_f32 v{V+6}, s{b2+2}, v{AB}
""")
        for i in range(8):
            e(f"v_fma_f32 v{a+i}, v{CS[f]+i}, v{AB+1}, v{a+i}")
        for i in range(8):
            e(f"v_mul_f32 v{a+i}, v{a+i}, v{V+2 if i < 4 else V+6}")
        P = 64
        for i in range(4):
            e(f"""v_cvt_pk_bf16_f32 v{P+i}, v{a+2*i}, v{a+2*i+1}
v_mul_f32 v{P+4+i}, v{a+2*i}, v{a+2*i}
v_fma_f32 v{P+4+i}, v{a+2*i+1}, v{a+2*i+1}, v{P+4+i}""")
        for i, ad in enumerate([V, V+1, V+4, V+5]):
            e(f"buffer_store_dword v{P+i}, v{ad}, s[{WSR}:{WSR+3}], 0 offen")
        for sh in ["row_shr:1", "row_shr:2", "row_shr:4", "row_shr:8"]:
            for i in range(4):
                e(f"v_max_f32_dpp v{P+4+i}, v{P+4+i}, v{P+4+i} {sh} row_mask:0xf bank_mask:0xf")
        for i in range(4):
            e(f"v_max_f32_dpp v{P+4+i}, v{P+4+i}, v{P+4+i} row_bcast:15 row_mask:0xa bank_mask:0xf")
        e(f"""s_mov_b32 exec_lo, 0x80000000
s_mov_b32 exec_hi, 0x80000000
buffer_store_dword v{P+4}, v{V+3}, s[{WSR}:{WSR+3}], 0 offen
buffer_store_dword v{P+5}, v{V+3}, s[{WSR}:{WSR+3}], 0 offen offset:256
buffer_store_dword v{P+6}, v{V+7}, s[{WSR}:{WSR+3}], 0 offen
buffer_store_dword v{P+7}, v{V+7}, s[{WSR}:{WSR+3}], 0 offen offset:256
s_mov_b64 exec, -1
""")
        k.label(Lnext)
    e(f"s_branch {LDONE}")
    k.label("k1_fetch")
    e(f"""s_mov_b32 s72, 0
s_mov_b32 s74, 0
s_waitcnt vmcnt(0)
s_branch k1_pchk""")
    k.label("k1_poll")
    e(f"""s_sleep 8
buffer_load_dword v{POLL+1}, v{POLL}, s[{DBG}:{DBG+3}], 0 offen sc1
s_waitcnt vmcnt(0)""")
    k.label("k1_pchk")
    e(f"""v_readfirstlane_b32 s75, v{POLL+1}
s_add_u32 s72, s72, 1
s_cmp_ge_u32 s75, {17 if os.environ.get("K1FB") else (0 if os.environ.get("K1NOPOLL") else 16)}
s_cbranch_scc1 k1_polled
s_cmp_lt_u32 s72, {int(os.environ.get("K1POLL", "64"))}
s_cbranch_scc1 k1_poll
s_mov_b32 s64, 0
s_mov_b32 s73, 1
s_mov_b32 s74, 1
s_getpc_b64 s[78:79]""")
    k.label("k1_pb2")
    e(f"""s_add_u32 s78, s78, k1_polled-k1_pb2
s_addc_u32 s79, s79, 0
s_branch k1_ploop""")
    k.label("k1_polled")
    e(f"""s_lshl_b32 s75, s36, 10
s_lshl_b32 s46, s38, 7
s_add_u32 s75, s75, s46
s_add_u32 s75, s75, {WS_XST}
v_and_b32 v{T}, 15, v{LANE}
v_lshlrev_b32 v{T}, 3, v{T}
buffer_load_dwordx2 v[{T+2}:{T+3}], v{T}, s[{WSR}:{WSR+3}], s75 offen sc1
s_setpc_b64 s[80:81]""")
    k.label(LV)
    mainloop(True)
    RW = 128
    CSL = [20, 21]
    ADR = [(16, 17), (18, 19)]
    e(f"""s_lshl_b32 s46, s61, 7
v_lshl_add_u32 v{T+5}, v{M}, 2, s46
v_xor_b32 v{T+6}, 128, v{T+5}
s_lshl_b32 s46, s39, 8
v_lshl_add_u32 v{T+7}, v{HALF}, 5, s46
v_lshl_or_b32 v{WOT}, v{WOH}, 16, v{WOT}
v_lshl_or_b32 v{WOT+1}, v{WOH+1}, 16, v{WOT+1}
v_lshl_or_b32 v{WOT+2}, v{WOH+2}, 16, v{WOT+2}
v_lshl_or_b32 v{WOT+3}, v{WOH+3}, 16, v{WOT+3}
v_mov_b32 v72, v{WOT}
v_mov_b32 v73, v{WOT+1}
v_mov_b32 v74, v{WOT+2}
v_mov_b32 v75, v{WOT+3}
ds_read_b32 v{CSL[0]}, v{T+5} offset:{SCR+1024}
ds_read_b32 v{CSL[1]}, v{T+6} offset:{SCR+1024}""")
    for a in range(4):
        e(f"""ds_read_b128 {vr(RW+8*a,4)}, v{T+7} offset:{SCR+a*64}
ds_read_b128 {vr(RW+8*a+4,4)}, v{T+7} offset:{SCR+a*64+16}""")
    e(f"""s_lshl_b32 s63, s36, 2
s_add_u32 s63, s63, s39
s_sub_u32 s65, s37, 11
s_lshl_b32 s65, s65, 7
s_lshr_b32 s70, s63, 1
s_mul_i32 s70, s70, {BLK}
s_and_b32 s71, s63, 1
s_mul_i32 s71, s71, 1216
s_add_u32 s70, s70, s71
s_add_u32 s70, s70, 2048
""")
    SLOTC = 0 | (13 << 5) | (9 << 10) | (4 << 15) | (17 << 20)
    for f, sft in enumerate([61, 62]):
        AD, AO = ADR[f]
        e(f"""s_lshl_b32 s66, s{sft}, 5
s_add_u32 s66, s66, s65
v_add_u32 v{T+2}, s66, v{M}
v_mul_u32_u24 v{T+3}, 3641, v{T+2}
v_lshrrev_b32 v{T+3}, 16, v{T+3}
v_mul_u32_u24 v{T+6}, 18, v{T+3}
v_sub_u32 v{T+2}, v{T+2}, v{T+6}
v_lshrrev_b32 v{T+6}, 2, v{T+2}
v_mul_u32_u24 v{T+6}, 5, v{T+6}
s_mov_b32 s46, {SLOTC}
v_bfe_u32 v{T+6}, s46, v{T+6}, 5
v_and_b32 v{T+7}, 3, v{T+2}
v_add_u32 v{T+6}, v{T+6}, v{T+7}
s_mov_b32 s46, {KVH}
v_mul_lo_u32 v{T+3}, v{T+3}, s46
v_mul_u32_u24 v{T+7}, 304, v{HALF}
v_add_u32 v{T+3}, v{T+3}, v{T+7}
s_cmp_ge_u32 s66, 576
s_cselect_b32 s46, {HUGE}, 0
v_add_u32 v{T+3}, s46, v{T+3}
v_cmp_eq_u32 s[74:75], 0, v{T+2}
v_lshl_add_u32 v{AD}, v{T+6}, 4, v{T+3}
v_add_u32 v{AO}, 128, v{T+3}
v_mov_b32 v{T+7}, {HUGE}
v_cndmask_b32 v{AO}, v{T+7}, v{AO}, s[74:75]
""")
    e("s_waitcnt lgkmcnt(0)")
    for f in range(2):
        a = acc(f)
        AD, AO = ADR[f]
        for r in range(16):
            e(f"v_fma_f32 v{a+r}, v{CSL[f]}, v{RW+2*r+1}, v{a+r}")
        for r in range(16):
            e(f"v_mul_f32 v{a+r}, v{a+r}, v{RW+2*r}")
        P = 40 + 8 * f
        for i in range(8):
            e(f"v_cvt_pk_bf16_f32 v{P+i}, v{a+2*i}, v{a+2*i+1}")
        e(f"""buffer_store_dwordx4 {vr(P,4)}, v{AD}, s[{WSR}:{WSR+3}], s70 offen
buffer_store_dwordx4 {vr(P+4,4)}, v{AD}, s[{WSR}:{WSR+3}], s70 offen offset:608
buffer_store_dwordx4 v[28:31], v{AO}, s[{WSR}:{WSR+3}], s70 offen
buffer_store_dwordx4 v[28:31], v{AO}, s[{WSR}:{WSR+3}], s70 offen offset:608
""")
    e("s_branch k1_side2")
    k.label(LDONE)
    e(f"""v_lshl_or_b32 v72, v{WOH}, 16, v{WOT}
v_lshl_or_b32 v73, v{WOH+1}, 16, v{WOT+1}
v_lshl_or_b32 v74, v{WOH+2}, 16, v{WOT+2}
v_lshl_or_b32 v75, v{WOH+3}, 16, v{WOT+3}""")
    k.label("k1_side2")
    if PROF:
        e(f"""s_memtime s[94:95]
s_waitcnt vmcnt(0)
s_memtime s[96:97]
s_memrealtime s[78:79]
s_waitcnt lgkmcnt(0)
s_mov_b32 m0, 10
s_nop 0
v_writelane_b32 v164, s98, m0
s_mov_b32 m0, 11
s_nop 0
v_writelane_b32 v164, s78, m0
s_sub_u32 s90, s90, s88
s_sub_u32 s92, s92, s88
s_sub_u32 s94, s94, s88
s_sub_u32 s96, s96, s88
v_mov_b32 v160, s90
v_mov_b32 v161, s92
v_mov_b32 v162, s94
v_mov_b32 v163, s96
s_lshl_b32 s46, s2, 2
s_add_u32 s46, s46, s39
s_lshl_b32 s46, s46, 4
s_add_u32 s46, s46, 0xF10000
v_mov_b32 v165, 0
s_mov_b64 exec, 1
buffer_store_dwordx4 v[160:163], v165, s[{WSR}:{WSR+3}], s46 offen
s_mov_b64 exec, 0xffff
s_lshl_b32 s46, s2, 2
s_add_u32 s46, s46, s39
s_lshl_b32 s46, s46, 6
s_add_u32 s46, s46, 0xF40000
v_lshlrev_b32 v165, 2, v1
buffer_store_dword v164, v165, s[{WSR}:{WSR+3}], s46 offen
s_mov_b64 exec, -1""")
    e(f"""s_cmp_ge_u32 s51, 648
s_cbranch_scc1 k1_nwos
s_lshl_b32 s46, s51, 10
s_add_u32 s46, s46, {WS_WOP}
v_lshlrev_b32 v{T}, 4, v{LANE}
buffer_store_dwordx4 v[72:75], v{T}, s[{WSR}:{WSR+3}], s46 offen""")
    k.label("k1_nwos")
    e(f"""s_cmp_lt_u32 s2, 240
s_cbranch_scc1 {Lend}
s_add_u32 s{ZR}, s14, {WS_ST}
s_addc_u32 s{ZR+1}, s15, 0
s_and_b32 s{ZR+1}, s{ZR+1}, 0xffff
s_mov_b32 s{ZR+2}, {ZERO_BYTES}
s_mov_b32 s{ZR+3}, 0x20000
s_sub_u32 s46, s2, 240
s_lshl_b32 s46, s46, 13
v_lshlrev_b32 v{T+1}, 4, v0
v_mov_b32 v32, 0
v_mov_b32 v33, 0
v_mov_b32 v34, 0
v_mov_b32 v35, 0
buffer_store_dwordx4 v[32:35], v{T+1}, s[{ZR}:{ZR+3}], s46 offen
s_cmp_lg_u32 s51, 2047
s_cbranch_scc1 {Lend}
v_lshlrev_b32 v{T+1}, 2, v{LANE}
""")
    for i in range(5):
        e(f"buffer_load_dword v{76+i}, v{T+1}, s[{WRR}:{WRR+3}], 0 offen offset:{256*i}")
    e(f"v_mov_b32 v{T+2}, 0\ns_waitcnt vmcnt(0)")
    for i in range(5):
        e(f"v_dot2_f32_bf16 v{T+2}, v{76+i}, s47, v{T+2}")
    e("s_nop 3")
    for sh, rm in [("row_shr:1", "0xf"), ("row_shr:2", "0xf"), ("row_shr:4", "0xf"), ("row_shr:8", "0xf"), ("row_bcast:15", "0xa"), ("row_bcast:31", "0xc")]:
        e(f"v_add_f32_dpp v{T+2}, v{T+2}, v{T+2} {sh} row_mask:{rm} bank_mask:0xf\ns_nop 1")
    e(f"""v_mov_b32 v{T+1}, {WS_WSUM}
s_mov_b32 exec_lo, 0
s_mov_b32 exec_hi, 0x80000000
buffer_store_dword v{T+2}, v{T+1}, s[{WSR}:{WSR+3}], 0 offen
""")
    k.label(Lend)
    e("s_endpgm")
    return k, 168, 102
```

```python
from asmlib import *
from layout import *
import os
PROF = int(os.environ.get("PROF", "0"))
NG = 256
NP2 = 256
NFFN = 144
L_X2 = 0
L_RED = 1152
L_PART = 1280
L_ACT = 1536
L_FLAG = 1792
L_YP = 4096
L_WG, L_WU = 4096, 40960
K34_LDS = 77824
K34_GRID = NG + NP2

def stamp(k, i):
    if PROF:
        k.e(f"s_memrealtime s[{80+2*i}:{81+2*i}]")
def dump(k, n):
    if PROF:
        k.e("s_waitcnt lgkmcnt(0)")
        k.e("s_mov_b64 exec, 1")
        k.e(f"s_lshl_b32 s78, s2, 7\ns_lshl_b32 s79, s22, 5\ns_add_u32 s78, s78, s79\ns_add_u32 s78, s78, 0xF20000\nv_mov_b32 v254, 0")
        for i in range(n):
            k.e(f"v_mov_b32 v255, s{80+2*i}\nbuffer_store_dword v255, v254, s[8:11], s78 offen offset:{4*i}")

def gen_gemm(k):
    e = k.e
    WSR, XR, WRR = 8, 12, 16
    LANE, M, HALF, L16 = 1, 2, 3, 4
    T = 5
    FR = 32
    ACC = 172
    e(f"""s_setprio 2
s_load_dwordx2 s[6:7], s[0:1], 0
s_load_dwordx2 s[20:21], s[0:1], 32
v_and_b32 v{M}, 31, v0
v_bfe_u32 v{HALF}, v0, 5, 1
v_lshlrev_b32 v{L16}, 4, v{LANE}
s_and_b32 s23, s2, 31
s_lshr_b32 s24, s2, 5
s_mul_i32 s25, s23, {2*36*1024}
s_mul_i32 s26, s22, {9*1024}
s_add_u32 s25, s25, s26
s_add_u32 s25, s25, {WS_OP}
s_mul_i32 s27, s24, {2*36*1024}
s_add_u32 s27, s27, s26
s_add_u32 s27, s27, {WS_WOP}
s_add_u32 s28, s25, {36*1024}
s_add_u32 s29, s27, {36*1024}
s_bfe_u32 s40, s24, 0x10001
s_add_u32 s40, s40, 16
s_mul_i32 s41, s40, {36*1024}
s_add_u32 s41, s41, s26
s_add_u32 s41, s41, {WS_WOP}
s_and_b32 s42, s24, 1
s_lshr_b32 s43, s24, 2
""")
    if os.environ.get("GOFF"):
        e("s_branch k3_noextra")
    e("""s_cmp_eq_u32 s42, 1
s_cselect_b32 s44, s28, s25
s_cselect_b32 s28, s25, s28
s_mov_b32 s25, s44""")
    W = f"s[{WSR}:{WSR+3}]"
    def loads(ks):
        b = FR + 20 * (ks % 7)
        off = (ks % 4) * 1024
        if ks and ks % 4 == 0:
            e("s_add_u32 s25, s25, 4096\ns_add_u32 s27, s27, 4096\ns_add_u32 s28, s28, 4096\ns_add_u32 s29, s29, 4096\ns_add_u32 s41, s41, 4096")
        e(f"""buffer_load_dwordx4 {vr(b,4)}, v{L16}, {W}, s25 offen offset:{off}
buffer_load_dwordx4 {vr(b+8,4)}, v{L16}, {W}, s27 offen offset:{off}
buffer_load_dwordx4 {vr(b+4,4)}, v{L16}, {W}, s28 offen offset:{off}
buffer_load_dwordx4 {vr(b+12,4)}, v{L16}, {W}, s29 offen offset:{off}
buffer_load_dwordx4 {vr(b+16,4)}, v{L16}, {W}, s41 offen offset:{off}""")
    for ks in range(7): loads(ks)
    e("s_waitcnt lgkmcnt(0)")
    srd(k, XR, 6, S * D * 2)
    srd(k, WRR, 20, D * 2)
    TK, FQ = 2, 3
    WADR, RADR, GOFF_, WOFF_ = 5, 6, 7, 31
    e(f"""v_and_b32 v{T+2}, 15, v{M}
v_lshlrev_b32 v{WADR}, 1, v{HALF}
v_xor_b32 v{WADR}, v{WADR}, v{T+2}
v_lshlrev_b32 v{WADR}, 4, v{WADR}
v_lshl_add_u32 v{WADR}, v{M}, 8, v{WADR}
s_lshl_b32 s36, s22, 14
v_add_u32 v{WADR}, s36, v{WADR}
v_lshlrev_b32 v30, 6, v{M}
v_lshl_add_u32 v30, v{HALF}, 5, v30
s_lshl_b32 s36, s22, 11
v_add_u32 v30, s36, v30
v_lshrrev_b32 v{TK}, 2, v{LANE}
v_and_b32 v{FQ}, 3, v{LANE}
v_lshlrev_b32 v{RADR}, 2, v{FQ}
v_xor_b32 v{RADR}, v{RADR}, v{TK}
v_lshlrev_b32 v{RADR}, 4, v{RADR}
v_lshl_add_u32 v{RADR}, v{TK}, 8, v{RADR}
s_lshl_b32 s36, s22, 12
v_add_u32 v{RADR}, s36, v{RADR}
v_mul_u32_u24 v{GOFF_}, 1152, v{TK}
v_lshl_add_u32 v29, v{FQ}, 3, v{GOFF_}
v_lshl_add_u32 v{GOFF_}, v{FQ}, 5, v{GOFF_}
v_lshlrev_b32 v{WOFF_}, 5, v{FQ}
v_lshlrev_b32 v28, 3, v{FQ}
s_lshr_b32 s30, s22, 1
s_xor_b32 s31, s30, s42
s_lshl_b32 s32, s23, 1
s_add_u32 s32, s32, s31
s_lshl_b32 s32, s32, 5
s_and_b32 s31, s22, 1
s_lshl_b32 s31, s31, 4
s_add_u32 s32, s32, s31
s_mul_i32 s34, s32, 1152
s_lshl_b32 s35, s24, 7
s_lshl_b32 s47, s40, 6
s_lshl_b32 s46, s43, 5
s_add_u32 s47, s47, s46
s_cmp_eq_u32 s30, 0
s_cselect_b32 s47, s47, {HUGE}
s_add_u32 s46, s34, s47
s_add_u32 s34, s34, s35
""")
    XV, WV, XE, WE = 8, 16, 24, 26
    acc = lambda a, b: ACC + 32 * a + 16 * b
    AE = ACC + 64
    nload = 35
    for ks in range(9):
        b = FR + 20 * (ks % 7)
        e(f"s_waitcnt vmcnt({nload - 5*(ks+1)})")
        for a in range(2):
            for n in range(2):
                c = vr(acc(a, n), 16) if ks else "0"
                e(f"v_mfma_f32_32x32x16_bf16 {vr(acc(a,n),16)}, {vr(b+8+4*n,4)}, {vr(b+4*a,4)}, {c}")
        c = vr(AE, 16) if ks else "0"
        e(f"v_mfma_f32_32x32x16_bf16 {vr(AE,16)}, {vr(b+16,4)}, {vr(b,4)}, {c}")
        if ks < 2:
            loads(ks + 7); nload += 5
        if ks == 1:
            e(f"""buffer_load_dwordx4 {vr(XV,4)}, v{GOFF_}, s[{XR}:{XR+3}], s34 offen
buffer_load_dwordx4 {vr(XV+4,4)}, v{GOFF_}, s[{XR}:{XR+3}], s34 offen offset:16
buffer_load_dwordx4 {vr(WV,4)}, v{WOFF_}, s[{WRR}:{WRR+3}], s35 offen
buffer_load_dwordx4 {vr(WV+4,4)}, v{WOFF_}, s[{WRR}:{WRR+3}], s35 offen offset:16
buffer_load_dwordx2 {vr(XE,2)}, v29, s[{XR}:{XR+3}], s46 offen
buffer_load_dwordx2 {vr(WE,2)}, v28, s[{WRR}:{WRR+3}], s47 offen""")
            nload += 6
    stamp(k, 1)
    WX = 32
    for i, cx in enumerate([1, 4, 5, 8, 9, 12, 13]):
        e(f"v_xor_b32 v{WX+i}, {cx*16}, v{WADR}")
    adr = {0: WADR, 1: WX, 4: WX+1, 5: WX+2, 8: WX+3, 9: WX+4, 12: WX+5, 13: WX+6}
    e("s_nop 4")
    for a in range(2):
        for n in range(2):
            for q in range(4):
                cx = n * 8 + (q >> 1) * 4 + (q & 1)
                e(f"ds_write_b128 v{adr[cx]}, {vr(acc(a,n)+4*q,4)} offset:{a*8192}")
    e(f"""v_add_u32 v30, 0x10000, v30
s_cmp_eq_u32 s43, 0
s_cbranch_scc1 k3_e0
ds_write_b128 v30, {vr(AE+8,4)}
ds_write_b128 v30, {vr(AE+12,4)} offset:16
s_branch k3_e1""")
    k.label("k3_e0")
    e(f"""ds_write_b128 v30, {vr(AE,4)}
ds_write_b128 v30, {vr(AE+4,4)} offset:16""")
    k.label("k3_e1")
    PT = 64
    XF, WF = 160, 180
    e(f"""v_xor_b32 v{WX}, 16, v{RADR}
v_xor_b32 v{WX+1}, 32, v{RADR}
v_xor_b32 v{WX+2}, 48, v{RADR}
s_and_b32 s36, s22, 1
s_lshl_b32 s36, s36, 10
s_add_u32 s36, s36, 0x10000
v_lshlrev_b32 v{WX+3}, 4, v{LANE}
v_add_u32 v{WX+3}, s36, v{WX+3}
s_waitcnt vmcnt(0)""")
    xs = [XV + i for i in range(8)] + [XE, XE + 1]
    ws_ = [WV + i for i in range(8)] + [WE, WE + 1]
    for i in range(10):
        e(f"""v_lshlrev_b32 v{XF+2*i}, 16, v{xs[i]}
v_and_b32 v{XF+2*i+1}, 0xffff0000, v{xs[i]}
v_lshlrev_b32 v{WF+2*i}, 16, v{ws_[i]}
v_and_b32 v{WF+2*i+1}, 0xffff0000, v{ws_[i]}""")
    e("s_waitcnt lgkmcnt(0)\ns_barrier")
    radr = [RADR, WX, WX + 1, WX + 2]
    for src in range(4):
        for i in range(4):
            e(f"ds_read_b128 {vr(PT+20*src+4*i,4)}, v{radr[i]} offset:{src*16384}")
        e(f"ds_read_b128 {vr(PT+20*src+16,4)}, v{WX+3} offset:{src*2048}")
    OWN = PT
    pk = lambda d, a, b: f"v_pk_add_f32 {vr(d,2)}, {vr(a,2)}, {vr(b,2)}"
    e("s_waitcnt lgkmcnt(10)")
    for r in range(0, 20, 2):
        e(pk(PT+r, PT+r, PT+20+r))
    e("s_waitcnt lgkmcnt(0)")
    for r in range(0, 20, 2):
        e(pk(PT+40+r, PT+40+r, PT+60+r))
    for r in range(0, 20, 2):
        e(pk(PT+r, PT+r, PT+40+r))
    HP = 144
    for i in range(10):
        e(f"v_cvt_pk_bf16_f32 v{HP+i}, v{OWN+2*i}, v{OWN+2*i+1}")
    for i in range(10):
        e(f"""v_lshlrev_b32 v{OWN+2*i}, 16, v{HP+i}
v_and_b32 v{OWN+2*i+1}, 0xffff0000, v{HP+i}""")
    for r in range(0, 20, 2):
        e(pk(OWN+r, OWN+r, XF+r))
    for i in range(10):
        e(f"v_cvt_pk_bf16_f32 v{HP+i}, v{OWN+2*i}, v{OWN+2*i+1}")
    e(f"""s_add_u32 s34, s34, {WS_H}
s_add_u32 s46, s46, {WS_H}
buffer_store_dwordx4 {vr(HP,4)}, v{GOFF_}, {W}, s34 offen sc1
buffer_store_dwordx4 {vr(HP+4,4)}, v{GOFF_}, {W}, s34 offen offset:16 sc1
buffer_store_dwordx2 {vr(HP+8,2)}, v29, {W}, s46 offen sc1
s_cmp_eq_u32 s30, 0
s_cselect_b32 s36, -1, 0""")
    for i in range(10):
        e(f"""v_lshlrev_b32 v{OWN+2*i}, 16, v{HP+i}
v_and_b32 v{OWN+2*i+1}, 0xffff0000, v{HP+i}""")
    for r in range(16, 20):
        e(f"v_and_b32 v{OWN+r}, s36, v{OWN+r}")
    S0, S1, S2 = 100, 102, 104
    e(f"""{pk(S0, OWN, OWN+2)}
v_pk_mul_f32 {vr(S1,2)}, {vr(OWN,2)}, {vr(OWN,2)}
v_pk_mul_f32 {vr(S2,2)}, {vr(OWN,2)}, {vr(WF,2)}""")
    for r in range(2, 20, 2):
        if r >= 4:
            e(pk(S0, S0, OWN+r))
        e(f"""v_pk_fma_f32 {vr(S1,2)}, {vr(OWN+r,2)}, {vr(OWN+r,2)}, {vr(S1,2)}
v_pk_fma_f32 {vr(S2,2)}, {vr(OWN+r,2)}, {vr(WF+r,2)}, {vr(S2,2)}""")
    e(f"""v_add_f32 v{S0}, v{S0}, v{S0+1}
v_add_f32 v{S1}, v{S1}, v{S1+1}
v_add_f32 v{S2}, v{S2}, v{S2+1}
s_lshl_b32 s36, s32, 2
s_add_u32 s36, s36, {WS_ST}
v_add_f32_dpp v{S0}, v{S0}, v{S0} quad_perm:[1,0,3,2] row_mask:0xf bank_mask:0xf
v_add_f32_dpp v{S1}, v{S1}, v{S1} quad_perm:[1,0,3,2] row_mask:0xf bank_mask:0xf
v_add_f32_dpp v{S2}, v{S2}, v{S2} quad_perm:[1,0,3,2] row_mask:0xf bank_mask:0xf
v_cmp_eq_u32 s[48:49], 1, v{FQ}
v_add_f32_dpp v{S0}, v{S0}, v{S0} quad_perm:[2,3,0,1] row_mask:0xf bank_mask:0xf
v_add_f32_dpp v{S1}, v{S1}, v{S1} quad_perm:[2,3,0,1] row_mask:0xf bank_mask:0xf
v_add_f32_dpp v{S2}, v{S2}, v{S2} quad_perm:[2,3,0,1] row_mask:0xf bank_mask:0xf
v_cmp_eq_u32 s[50:51], 2, v{FQ}
v_cmp_gt_u32 s[52:53], 3, v{FQ}
v_lshlrev_b32 v{WX}, 2, v{TK}
v_lshl_add_u32 v{WX}, v{FQ}, 13, v{WX}
v_cndmask_b32 v{S0}, v{S0}, v{S1}, s[48:49]
v_cndmask_b32 v{S0}, v{S0}, v{S2}, s[50:51]
s_mov_b64 exec, s[52:53]
buffer_atomic_add_f32 v{S0}, v{WX}, {W}, s36 offen
s_mov_b64 exec, -1""")
    k.label("k3_noextra")
    e(f"""s_bfe_u32 s36, s2, 0x30003
s_lshl_b32 s36, s36, 7
s_add_u32 s36, s36, {WS_CNTG}
v_lshlrev_b32 v{T+2}, 10, v{LANE}
v_mov_b32 v{T+1}, 1""")
    stamp(k, 2)
    e(f"""s_waitcnt vmcnt(0)
s_barrier""")
    stamp(k, 3)
    e(f"""s_cmp_lg_u32 s22, 0
s_cbranch_scc1 k34_end
s_mov_b64 exec, 0xff
buffer_atomic_add v{T+1}, v{T+2}, {W}, s36 offen""")
    dump(k, 4)
    e("s_endpgm")

def gen_p2(k):
    e = k.e
    WSR, GR, UR, DR, OUTR = 8, 12, 16, 24, 28
    W = f"s[{WSR}:{WSR+3}]"
    LANE, T = 1, 2
    ST = 16
    HR = 40
    RS_ = 56
    HS = 60
    SS = 64
    WD = 72
    WDF = 152
    Lend = "k34_end"
    INV = f32hex(1.0 / 576); EPS = f32hex(1e-5)
    e(f"""s_load_dwordx4 s[32:35], s[0:1], 40
s_load_dwordx4 s[36:39], s[0:1], 56
s_sub_u32 s23, s2, {NG}
v_lshlrev_b32 v{T+1}, 4, v0
v_lshlrev_b32 v{T+2}, 4, v{LANE}
v_cmp_gt_u32 s[40:41], 8, v{LANE}
v_add_u32 v{T+3}, 1024, v{T+2}
v_mov_b32 v{T+4}, {HUGE}
s_add_u32 s46, s4, {WS_WSUM}
s_addc_u32 s47, s5, 0
s_load_dword s48, s[46:47], 0
v_cndmask_b32 v{T+3}, v{T+4}, v{T+3}, s[40:41]
s_mov_b32 s42, 72
v_cmp_gt_u32 s[40:41], s42, v0
s_waitcnt lgkmcnt(0)
v_cndmask_b32 v{T+13}, v{T+4}, v{T+1}, s[40:41]
""")
    srd(k, GR, 32, D * F * 2)
    srd(k, UR, 34, D * F * 2)
    srd(k, DR, 36, D * F * 2)
    srd(k, OUTR, 38, S * D * 2)
    LNOD = "p2_nodma"
    e(f"""s_cmp_ge_u32 s23, {NFFN}
s_cbranch_scc1 {LNOD}
v_mul_u32_u24 v{T+5}, 911, v0
v_lshrrev_b32 v{T+5}, 16, v{T+5}
v_mul_u32_u24 v{T+6}, 72, v{T+5}
v_sub_u32 v{T+6}, v0, v{T+6}
v_mul_u32_u24 v{T+7}, 1152, v{T+5}
v_lshl_add_u32 v{T+7}, v{T+6}, 4, v{T+7}
s_mov_b32 s42, 216
v_cmp_gt_u32 s[40:41], s42, v0
s_and_b32 s59, s23, 7
s_mul_i32 s59, s59, 18
s_lshr_b32 s52, s23, 3
s_add_u32 s59, s59, s52
s_mul_i32 s52, s59, 36864
s_nop 0
v_cndmask_b32 v{T+7}, v{T+4}, v{T+7}, s[40:41]
""")
    for i in range(11):
        e(f"buffer_load_dwordx4 {vr(WD+4*i,4)}, v{T+7}, s[{DR}:{DR+3}], s52 offen")
        if i < 10: e(f"s_add_u32 s52, s52, {3*1152}")
    e(f"""v_lshrrev_b32 v{T+4}, 2, v{LANE}
v_mul_u32_u24 v{T+4}, 9216, v{T+4}
v_and_b32 v{T+8}, 3, v{LANE}
v_lshl_add_u32 v{T+4}, v{T+8}, 4, v{T+4}
s_sub_u32 s53, s22, 2
s_mul_i32 s50, s53, {16*9216}
s_lshl_b32 s51, s59, 6
s_add_u32 s50, s50, s51
s_lshl_b32 s51, s53, 10
s_mov_b32 s53, 0
""")
    e("s_waitcnt vmcnt(0)")
    for i in range(44):
        e(f"""v_lshlrev_b32 v{WDF+2*i}, 16, v{WD+i}
v_and_b32 v{WDF+2*i+1}, 0xffff0000, v{WD+i}""")
    k.label(LNOD)
    stamp(k, 1)
    TRIG = int(os.environ.get("P2TRIG", "8"))
    def poll(tag, thr):
        e(f"""s_cmp_lg_u32 s22, 0
s_cbranch_scc1 p2_polled{tag}
v_lshlrev_b32 v{T+8}, 7, v{LANE}
s_and_b32 s49, s23, 7
s_lshl_b32 s49, s49, 10
s_add_u32 s49, s49, {WS_CNTG}
s_mov_b32 s54, 0
s_mov_b64 exec, 0xff""")
        k.label(f"p2_poll{tag}")
        e(f"""buffer_load_dword v{T+9}, v{T+8}, {W}, s49 offen sc1
s_waitcnt vmcnt(0)
v_cmp_gt_u32 vcc, {thr}, v{T+9}
s_add_u32 s54, s54, 1
s_cmp_gt_u32 s54, 0x100000
s_cbranch_vccz p2_pdone{tag}
s_cbranch_scc1 p2_pdone{tag}
s_sleep {int(os.environ.get("P2SLEEP","12"))}
s_cmp_lt_u32 s23, {NFFN}
s_cbranch_scc1 p2_poll{tag}
s_sleep 40
s_branch p2_poll{tag}""")
        k.label(f"p2_pdone{tag}")
        e("s_mov_b64 exec, -1")
        k.label(f"p2_polled{tag}")
    poll("b", NG // 8)
    e(f"""v_mov_b32 v{T+9}, 0
v_mov_b32 v116, 0
v_mov_b32 v117, 0
v_mov_b32 v118, 0
v_mov_b32 v119, 0
ds_write_b128 v{T+9}, v[116:119] offset:{L_RED}
s_waitcnt lgkmcnt(0)
s_barrier""")
    stamp(k, 2)
    ST2 = 72
    e(f"""s_cmp_ge_u32 s22, 2
s_cbranch_scc1 p2_nost
v_lshlrev_b32 v{T+8}, 6, v0
s_mov_b32 s41, {WS_ST}""")
    for st in range(3):
        for q in range(4):
            e(f"buffer_load_dwordx4 {vr(ST2+16*st+4*q,4)}, v{T+8}, {W}, s41 offen offset:{16*q} sc1")
        if st < 2: e("s_add_u32 s41, s41, 8192")
    e("s_branch p2_skipdma")
    k.label("p2_nost")
    e(f"""s_cmp_ge_u32 s23, {NFFN}
s_cbranch_scc1 p2_skipdma""")
    k.label("p2_dma")
    e(f"""s_add_u32 m0, s51, {L_WG}
s_add_u32 s53, s53, 1
buffer_load_dwordx4 v{T+4}, s[{GR}:{GR+3}], s50 offen lds
s_add_u32 m0, s51, {L_WU}
s_add_u32 s51, s51, 2048
buffer_load_dwordx4 v{T+4}, s[{UR}:{UR+3}], s50 offen lds
s_add_u32 s50, s50, {2*16*9216}
s_cmp_lt_u32 s53, 18
s_cbranch_scc1 p2_dma""")
    k.label("p2_skipdma")
    e(f"""s_lshl_b32 s42, s23, 3
s_lshl_b32 s43, s22, 1
s_add_u32 s42, s42, s43
s_mul_i32 s43, s42, 1152
s_add_u32 s44, s43, {WS_H}
s_lshl_b32 s45, s42, 2
s_add_u32 s45, s45, {WS_ST}
buffer_load_dwordx4 {vr(HR,4)}, v{T+2}, {W}, s44 offen sc1
buffer_load_dwordx4 {vr(HR+4,4)}, v{T+3}, {W}, s44 offen sc1
buffer_load_dwordx4 {vr(HR+8,4)}, v{T+2}, {W}, s44 offen offset:1152 sc1
buffer_load_dwordx4 {vr(HR+12,4)}, v{T+3}, {W}, s44 offen offset:1152 sc1
buffer_load_dwordx2 {vr(RS_,2)}, v{T+9}, {W}, s45 offen sc1
s_add_u32 s45, s45, 8192
buffer_load_dwordx2 {vr(RS_+2,2)}, v{T+9}, {W}, s45 offen sc1
s_cmp_ge_u32 s22, 2
s_cbranch_scc1 p2_noam
v_lshlrev_b32 v{T+10}, 4, v0
v_sub_u32 v{T+10}, 2047, v{T+10}
s_waitcnt vmcnt(6)
""")
    KEY = 16
    for i in range(16):
        a_, b_, c_ = 120 + 3 * (i % 4), 121 + 3 * (i % 4), 122 + 3 * (i % 4)
        e(f"""v_mul_f32 v{a_}, {INV}, v{ST2+i}
v_mul_f32 v{b_}, {INV}, v{ST2+16+i}
v_fma_f32 v{b_}, -v{a_}, v{a_}, v{b_}
v_max_f32 v{b_}, 0, v{b_}
v_add_f32 v{b_}, {EPS}, v{b_}
v_rsq_f32 v{b_}, v{b_}
v_fma_f32 v{a_}, -v{a_}, s48, v{ST2+32+i}
v_mul_f32 v{a_}, v{a_}, v{b_}
v_ashrrev_i32 v{c_}, 31, v{a_}
v_or_b32 v{c_}, 0x80000000, v{c_}
v_xor_b32 v{a_}, v{a_}, v{c_}
v_and_b32 v{a_}, 0xfffff800, v{a_}
v_subrev_u32 v{c_}, {i}, v{T+10}
v_or_b32 v{KEY+i}, v{a_}, v{c_}""")
    for i in range(5):
        e(f"v_max3_u32 v{KEY+3*i}, v{KEY+3*i}, v{KEY+3*i+1}, v{KEY+3*i+2}")
    e(f"""v_max3_u32 v{KEY}, v{KEY}, v{KEY+3}, v{KEY+6}
v_max3_u32 v{KEY+9}, v{KEY+9}, v{KEY+12}, v{KEY+15}
v_max_u32 v{KEY}, v{KEY}, v{KEY+9}
s_lshl_b32 s49, s22, 3
v_mov_b32 v{T+11}, s49
v_max_u32_dpp v{KEY}, v{KEY}, v{KEY} row_shr:1 row_mask:0xf bank_mask:0xf
v_xor_b32 v{T+12}, 8, v{T+11}
v_mov_b32 v{KEY+1}, 1
v_max_u32_dpp v{KEY}, v{KEY}, v{KEY} row_shr:2 row_mask:0xf bank_mask:0xf
s_nop 1
v_max_u32_dpp v{KEY}, v{KEY}, v{KEY} row_shr:4 row_mask:0xf bank_mask:0xf
s_nop 1
v_max_u32_dpp v{KEY}, v{KEY}, v{KEY} row_shr:8 row_mask:0xf bank_mask:0xf
s_nop 1
v_max_u32_dpp v{KEY}, v{KEY}, v{KEY} row_bcast:15 row_mask:0xa bank_mask:0xf
s_nop 1
v_max_u32_dpp v{KEY}, v{KEY}, v{KEY} row_bcast:31 row_mask:0xc bank_mask:0xf
s_mov_b32 exec_lo, 0
s_mov_b32 exec_hi, 0x80000000
ds_write_b64 v{T+11}, v[{KEY}:{KEY+1}] offset:{L_RED}
s_mov_b64 exec, -1
v_readlane_b32 s53, v{KEY}, 63""")
    k.label("p2_spin")
    e(f"""ds_read_b64 v[116:117], v{T+12} offset:{L_RED}
s_waitcnt lgkmcnt(0)
v_readfirstlane_b32 s54, v117
v_readfirstlane_b32 s55, v116
s_nop 1
s_cmp_eq_u32 s54, 0
s_cbranch_scc1 p2_spin
s_max_u32 s53, s53, s55
s_and_b32 s53, s53, 0x7ff
s_sub_u32 s53, 2047, s53
s_sub_u32 s55, s23, {NFFN}
s_cmp_lt_u32 s55, {NP2-1-NFFN}
s_cbranch_scc1 p2_noam
s_mul_i32 s54, s53, 1152
s_add_u32 s55, s54, {WS_H}
s_lshl_b32 s56, s53, 2
s_add_u32 s56, s56, {WS_ST}
buffer_load_dwordx4 {vr(HS,4)}, v{T+13}, {W}, s55 offen sc1
buffer_load_dword v{SS}, v{T+9}, {W}, s56 offen sc1
s_add_u32 s56, s56, 8192
buffer_load_dword v{SS+1}, v{T+9}, {W}, s56 offen sc1
s_add_u32 s56, s56, 8192
buffer_load_dword v{SS+2}, v{T+9}, {W}, s56 offen sc1
""")
    stamp(k, 3)
    def lnparams(vsum, vsq, mb, rs):
        e(f"""v_mul_f32 v{mb}, {INV}, v{vsum}
v_mul_f32 v{rs}, {INV}, v{vsq}
v_fma_f32 v{rs}, -v{mb}, v{mb}, v{rs}
v_max_f32 v{rs}, 0, v{rs}
v_cvt_pk_bf16_f32 v{mb}, v{mb}, v{mb}
v_cvt_pk_bf16_f32 v{rs}, v{rs}, v{rs}
v_and_b32 v{mb}, 0xffff0000, v{mb}
v_and_b32 v{rs}, 0xffff0000, v{rs}
v_add_f32 v{rs}, {EPS}, v{rs}
v_cvt_pk_bf16_f32 v{rs}, v{rs}, v{rs}
v_and_b32 v{rs}, 0xffff0000, v{rs}
v_sqrt_f32 v{rs}, v{rs}
s_nop 0
v_cvt_pk_bf16_f32 v{rs}, v{rs}, v{rs}
v_and_b32 v{rs}, 0xffff0000, v{rs}
v_rcp_f32 v{rs}, v{rs}
s_nop 0""")
    D0 = 132
    def ln_chunk(src, n, mb, rs, hf, x2p):
        for i in range(n):
            e(f"""v_lshlrev_b32 v{hf+2*i}, 16, v{src+i}
v_and_b32 v{hf+2*i+1}, 0xffff0000, v{src+i}""")
        for i in range(2 * n):
            e(f"v_sub_f32 v{D0+i}, v{hf+i}, v{mb}")
        for i in range(n):
            e(f"v_cvt_pk_bf16_f32 v{x2p+i}, v{D0+2*i}, v{D0+2*i+1}")
        for i in range(n):
            e(f"""v_lshlrev_b32 v{D0+2*i}, 16, v{x2p+i}
v_and_b32 v{D0+2*i+1}, 0xffff0000, v{x2p+i}""")
        for i in range(2 * n):
            e(f"v_mul_f32 v{D0+i}, v{D0+i}, v{rs}")
        for i in range(n):
            e(f"v_cvt_pk_bf16_f32 v{x2p+i}, v{D0+2*i}, v{D0+2*i+1}")
    MB, RS = 67, 68
    HF, X2P = 16, 32
    def erow(r):
        lnparams(RS_ + r, RS_ + 2 + r, MB, RS)
        ln_chunk(HR + 8 * r, 8, MB, RS, HF, X2P)
        for i in range(8):
            e(f"""v_lshlrev_b32 v{D0+2*i}, 16, v{X2P+i}
v_and_b32 v{D0+2*i+1}, 0xffff0000, v{X2P+i}""")
        for i in range(16):
            e(f"v_add_f32 v{D0+i}, v{D0+i}, v{HF+i}")
        for i in range(8):
            e(f"v_cvt_pk_bf16_f32 v{HR+8*r+i}, v{D0+2*i}, v{D0+2*i+1}")
        e(f"""s_add_u32 s57, s42, {r}
s_add_u32 s58, s43, {1152*r}
s_cmp_eq_u32 s57, s53
s_cselect_b32 s58, {HUGE}, s58
buffer_store_dwordx4 {vr(HR+8*r,4)}, v{T+2}, s[{OUTR}:{OUTR+3}], s58 offen
buffer_store_dwordx4 {vr(HR+8*r+4,4)}, v{T+3}, s[{OUTR}:{OUTR+3}], s58 offen""")
    SMB, SRS = 69, 70
    SHF, SX2 = 116, 124
    e("s_waitcnt vmcnt(0)")
    lnparams(SS, SS + 1, SMB, SRS)
    ln_chunk(HS, 4, SMB, SRS, SHF, SX2)
    e(f"""v_cmp_gt_u32 vcc, 72, v0
s_and_saveexec_b64 s[62:63], vcc
ds_write_b128 v{T+1}, {vr(SX2,4)} offset:{L_X2}
s_mov_b64 exec, s[62:63]""")
    k.label("p2_noam")
    e(f"""s_waitcnt vmcnt(0) lgkmcnt(0)
s_barrier
s_cmp_lt_u32 s22, 2
s_cbranch_scc1 p2_haveidx
ds_read_b128 v[132:135], v{T+9} offset:{L_RED}
s_waitcnt lgkmcnt(0)
v_max_u32 v132, v132, v134
s_nop 0
v_readfirstlane_b32 s53, v132
s_nop 1
s_and_b32 s53, s53, 0x7ff
s_sub_u32 s53, 2047, s53""")
    k.label("p2_haveidx")
    e(f"""s_cmp_lt_u32 s23, {NFFN}
s_cbranch_scc1 p2_ffn""")
    erow(0)
    erow(1)
    e(f"""s_cmp_eq_u32 s23, {NP2-1}
s_cbranch_scc0 {Lend}
s_cmp_lt_u32 s22, 2
s_cbranch_scc1 p2_final
s_endpgm""")
    k.label("p2_ffn")
    G_, A9, A10 = T + 8, T + 11, T + 12
    e(f"""v_lshrrev_b32 v{G_}, 4, v{LANE}
v_bfe_u32 v{A9}, v{LANE}, 2, 2
v_lshl_add_u32 v{A9}, v{G_}, 3, v{A9}
v_and_b32 v{A10}, 3, v{LANE}
v_lshlrev_b32 v{A10}, 3, v{A10}
v_lshl_add_u32 v{A9}, v{A9}, 6, v{A10}
s_and_b32 s61, s22, 1
s_lshl_b32 s61, s61, 5
s_lshr_b32 s64, s22, 1
s_mul_i32 s64, s64, {L_WU-L_WG}
s_add_u32 s61, s61, s64
s_add_u32 s61, s61, {L_WG}
v_add_u32 v{A9}, s61, v{A9}
v_lshlrev_b32 v{A10}, 4, v{G_}
""")
    stamp(k, 4)
    AF, BF, ACC = 16, 72, 128
    def rd(ks):
        sl = ks % 6
        e(f"""ds_read_b128 {vr(AF+4*sl,4)}, v{A10} offset:{L_X2+ks*64}
ds_read_b64_tr_b16 {vr(BF+4*sl,2)}, v{A9} offset:{ks*32*64}
ds_read_b64_tr_b16 {vr(BF+4*sl+2,2)}, v{A9} offset:{ks*32*64+4*64}""")
    for ks in range(5): rd(ks)
    for ks in range(18):
        sl = ks % 6
        nleft = min(4, 17 - ks)
        e(f"s_waitcnt lgkmcnt({3*nleft})")
        c = vr(ACC, 4) if ks else "0"
        e(f"v_mfma_f32_16x16x32_bf16 {vr(ACC,4)}, {vr(AF+4*sl,4)}, {vr(BF+4*sl,4)}, {c}")
        if ks + 5 < 18: rd(ks + 5)
    e(f"""s_lshl_b32 s65, s22, 6
v_and_b32 v{A9}, 15, v{LANE}
v_lshl_add_u32 v{A9}, v{A9}, 2, s65
v_and_b32 v{A10}, 31, v{LANE}
v_lshlrev_b32 v{A10}, 2, v{A10}
v_lshlrev_b32 v{T+7}, 2, v{T+5}
s_nop 3
ds_write_b32 v{A9}, v{ACC} offset:{L_PART}
s_waitcnt lgkmcnt(0)
s_barrier
ds_read_b32 v132, v{A10} offset:{L_PART}
ds_read_b32 v134, v{A10} offset:{L_PART+128}
s_waitcnt lgkmcnt(0)
v_cvt_pk_bf16_f32 v132, v132, v134
v_lshlrev_b32 v133, 16, v132
v_and_b32 v134, 0xffff0000, v132
v_mul_f32 v135, {f32hex(-1.4426950408889634)}, v133
v_exp_f32 v135, v135
s_nop 0
v_add_f32 v135, 1.0, v135
v_rcp_f32 v135, v135
s_nop 0
v_mul_f32 v133, v133, v135
v_cvt_pk_bf16_f32 v133, v133, v133
v_and_b32 v133, 0xffff0000, v133
v_mul_f32 v133, v133, v134
v_cvt_pk_bf16_f32 v133, v133, v133
v_and_b32 v133, 0xffff0000, v133
v_cmp_gt_u32 s[62:63], 32, v{LANE}
v_lshlrev_b32 v{A9}, 2, v{LANE}
s_lshl_b32 s65, s22, 8
v_cndmask_b32 v133, 0, v133, s[62:63]
v_add_u32 v{A9}, s65, v{A9}
v_add_u32 v{T+7}, s65, v{T+7}
ds_write_b32 v{A9}, v133 offset:{L_FLAG+64}
s_waitcnt lgkmcnt(0)
""")
    AV = 16
    for i in range(11):
        e(f"ds_read_b32 v{AV+2*i}, v{T+7} offset:{L_FLAG+64+12*i}")
    YA = 136
    for i in range(11):
        e(f"s_waitcnt lgkmcnt({10-i})")
        av = AV + 2 * i
        for j in range(0, 8, 2):
            if i == 0:
                e(f"v_pk_mul_f32 {vr(YA+j,2)}, {vr(WDF+j,2)}, {vr(av,2)} op_sel_hi:[1,0]")
            else:
                e(f"v_pk_fma_f32 {vr(YA+j,2)}, {vr(WDF+8*i+j,2)}, {vr(av,2)}, {vr(YA+j,2)} op_sel_hi:[1,0,1]")
    e(f"""v_mul_u32_u24 v{A9}, 2304, v{T+5}
v_lshl_add_u32 v{A9}, v{T+6}, 5, v{A9}
v_cmp_gt_u32 vcc, 216, v0
s_and_saveexec_b64 s[62:63], vcc
ds_write_b128 v{A9}, {vr(YA,4)} offset:{L_YP}
ds_write_b128 v{A9}, {vr(YA+4,4)} offset:{L_YP+16}
s_mov_b64 exec, s[62:63]
v_lshlrev_b32 v{A10}, 2, v0
s_and_b32 s68, s23, {YREP-1}
s_mul_i32 s68, s68, 2304
s_add_u32 s68, s68, {WS_Y}
s_waitcnt lgkmcnt(0)
s_barrier
""")
    for c in range(3):
        for g in range(3):
            e(f"ds_read_b32 v{16+3*c+g}, v{A10} offset:{L_YP+g*2304+c*1024}")
    e("s_waitcnt lgkmcnt(0)")
    for c in range(3):
        e(f"v_add_f32 v{16+3*c}, v{16+3*c}, v{17+3*c}\nv_add_f32 v{16+3*c}, v{16+3*c}, v{18+3*c}")
    e(f"""buffer_atomic_add_f32 v16, v{A10}, {W}, s68 offen
buffer_atomic_add_f32 v19, v{A10}, {W}, s68 offen offset:1024
s_cmp_lg_u32 s22, 0
s_cbranch_scc1 p2_at3
buffer_atomic_add_f32 v22, v{A10}, {W}, s68 offen offset:2048""")
    k.label("p2_at3")
    stamp(k, 5)
    erow(0)
    erow(1)
    e(f"""s_waitcnt vmcnt(4)
s_barrier
s_cmp_lg_u32 s22, 0
s_cbranch_scc1 {Lend}
s_lshl_b32 s70, s23, 2
s_add_u32 s70, s70, {WS_FLG}
v_mov_b32 v{A10}, 1
s_mov_b64 exec, 1
buffer_store_dword v{A10}, v{T+9}, {W}, s70 offen sc1""")
    stamp(k, 6)
    dump(k, 7)
    e("s_endpgm")
    k.label("p2_final")
    e(f"""s_mov_b32 s70, {WS_FLG}
s_mov_b32 s71, 0
s_mov_b32 exec_lo, -1
s_mov_b32 exec_hi, 0xf""")
    k.label("p2_fpoll")
    e(f"""buffer_load_dwordx4 v[16:19], v{T+2}, {W}, s70 offen sc1
s_waitcnt vmcnt(0)
v_and_b32 v16, v16, v17
v_and_b32 v18, v18, v19
v_and_b32 v16, v16, v18
v_cmp_ne_u32 vcc, 1, v16
s_add_u32 s71, s71, 1
s_cmp_gt_u32 s71, 0x100000
s_cbranch_vccz p2_fdone
s_cbranch_scc1 p2_fdone
s_sleep 4
s_branch p2_fpoll""")
    k.label("p2_fdone")
    e(f"""s_mov_b64 exec, -1
v_lshlrev_b32 v{A9}, 1, v{T+13}
s_mov_b32 s71, {WS_Y}
""")
    YL = 152
    for r in range(YREP):
        e(f"""buffer_load_dwordx4 {vr(YL+8*r,4)}, v{A9}, {W}, s71 offen sc0 sc1
buffer_load_dwordx4 {vr(YL+8*r+4,4)}, v{A9}, {W}, s71 offen offset:16 sc0 sc1
s_add_u32 s71, s71, 2304""")
    SG = T + 8
    e(f"""v_fma_f32 v{SG}, -v{SMB}, s48, v{SS+2}
v_mul_f32 v{SG}, v{SG}, v{SRS}
v_cvt_pk_bf16_f32 v{SG}, v{SG}, v{SG}
v_and_b32 v{SG}, 0xffff0000, v{SG}
v_mul_f32 v{SG}, {f32hex(-1.4426950408889634)}, v{SG}
v_exp_f32 v{SG}, v{SG}
s_nop 0
v_add_f32 v{SG}, 1.0, v{SG}
v_rcp_f32 v{SG}, v{SG}
s_nop 0
v_cvt_pk_bf16_f32 v{SG}, v{SG}, v{SG}
v_and_b32 v{SG}, 0xffff0000, v{SG}
s_waitcnt vmcnt(0)""")
    for r in range(1, YREP):
        for i in range(8):
            e(f"v_add_f32 v{YL+i}, v{YL+i}, v{YL+8*r+i}")
    PK = 40
    def rnd(base):
        for i in range(4):
            e(f"v_cvt_pk_bf16_f32 v{PK+i}, v{base+2*i}, v{base+2*i+1}")
        for i in range(4):
            e(f"""v_lshlrev_b32 v{base+2*i}, 16, v{PK+i}
v_and_b32 v{base+2*i+1}, 0xffff0000, v{PK+i}""")
    rnd(YL)
    for i in range(8):
        e(f"v_mul_f32 v{YL+i}, v{YL+i}, v{SG}")
    rnd(YL)
    for i in range(4):
        e(f"""v_lshlrev_b32 v{YL+8+2*i}, 16, v{SX2+i}
v_and_b32 v{YL+8+2*i+1}, 0xffff0000, v{SX2+i}""")
    for i in range(8):
        e(f"v_add_f32 v{YL+i}, v{YL+i}, v{YL+8+i}")
    rnd(YL)
    for i in range(8):
        e(f"v_add_f32 v{YL+i}, v{YL+i}, v{SHF+i}")
    for i in range(4):
        e(f"v_cvt_pk_bf16_f32 v{PK+i}, v{YL+2*i}, v{YL+2*i+1}")
    e(f"buffer_store_dwordx4 {vr(PK,4)}, v{T+13}, s[{OUTR}:{OUTR+3}], s54 offen")
    if PROF:
        e("s_waitcnt vmcnt(0)")
        stamp(k, 7)
        dump(k, 8)

def gen_k34():
    k = K("k3_kernel")
    e = k.e
    e(f"""s_cmp_ge_u32 s2, {K34_GRID}
s_cbranch_scc1 k34_end
s_load_dwordx2 s[4:5], s[0:1], 80
v_lshrrev_b32 v5, 6, v0
v_and_b32 v1, 63, v0
v_readfirstlane_b32 s22, v5""")
    stamp(k, 0)
    e("s_waitcnt lgkmcnt(0)")
    srd(k, 8, 4, WS_SIZE)
    e(f"""s_cmp_ge_u32 s2, {NG}
s_cbranch_scc1 k34_p2""")
    gen_gemm(k)
    k.label("k34_p2")
    gen_p2(k)
    k.label("k34_end")
    e("s_endpgm")
    return k, 256, 100
```

```python
import sys
from asmlib import *
from layout import *
import importlib
def build(kernels, path):
    head = "; LN1+QKV | attention | out-proj | LN2+router+FFN   (generated by gen/gen.py)\n"
    body = '.amdgcn_target "amdgcn-amd-amdhsa--gfx950"\n.text\n'
    desc = '.section .rodata,"a"\n'
    for gf, grid, block, lds in kernels:
        k, nv, ns = gf()
        head += f"; @launch kernel={k.name} grid=({grid},1,1) block=({block},1,1) lds={lds}\n"
        body += kernel_text(k)
        desc += kernel_desc(k.name, nv, ns)
    open(path, "w").write(head + body + desc)
if __name__ == "__main__":
    import os
    if os.environ.get('K1NEW'):
        from k1b import gen_k1
    else:
        from k1 import gen_k1
    ks = [(gen_k1, 256, 512, 131072)]
    try:
        from k2 import gen_k2, K2_LDS
        ks.append((gen_k2, 256, 512, K2_LDS))
        import os
        if os.environ.get("SPLIT34"):
            from k3 import gen_k3, K3_LDS
            ks.append((gen_k3, 288, 256, K3_LDS))
            from k4 import gen_k4, K4_LDS
            ks.append((gen_k4, 256, 512, K4_LDS))
        else:
            from k34 import gen_k34, K34_LDS, K34_GRID
            ks.append((gen_k34, K34_GRID, 256, K34_LDS))
    except ImportError as ex:
        print("partial build:", ex)
    out = sys.argv[1] if len(sys.argv) > 1 else "sequential_preLN__mha_block__moe_arch_mod__prompt.s"
    build(ks, out)
```

```python
from asmlib import *
from layout import *
import os
PROF = int(os.environ.get("PROF", "0"))
STATPK = int(os.environ.get("STATPK", "1"))

def gen_k1():
    k = K("k1_kernel")
    e = k.e
    def stamp(i):
        if PROF:
            e(f"s_memtime s[{88+2*i}:{89+2*i}]")
    XA, WA = 16, 20
    WSR, WOR, WRR, ZR = 24, 28, 32, 52
    LANE, M, HALF = 1, 2, 3
    T = 22
    Lend = "k1_end"
    e(f"""s_cmp_ge_u32 s2, 256
s_cbranch_scc1 {Lend}
s_load_dwordx4 s[4:7], s[0:1], 0
s_load_dwordx4 s[12:15], s[0:1], 72
{"s_memtime s[88:89]" if PROF else ""}
{"s_memrealtime s[98:99]" if PROF else ""}
v_lshrrev_b32 v{T}, 6, v0
v_and_b32 v{LANE}, 63, v0
v_readfirstlane_b32 s38, v{T}
v_and_b32 v{M}, 31, v0
v_bfe_u32 v{HALF}, v0, 5, 1
s_and_b32 s36, s2, 7
s_lshl_b32 s36, s36, 1
s_bfe_u32 s46, s2, 0x10003
s_add_u32 s36, s36, s46
s_lshr_b32 s37, s2, 4
s_mov_b32 s47, 0x3f803f80
s_mul_i32 s50, s37, 216
s_sub_u32 s46, s37, 11
s_lshl_b32 s46, s46, 8
s_add_u32 s46, s46, 2304
s_cmp_ge_u32 s37, 11
s_cselect_b32 s50, s46, s50
s_cselect_b32 s48, 1, 0
s_lshr_b32 s67, s38, 2
s_and_b32 s38, s38, 3
s_waitcnt lgkmcnt(0)
""")
    srd(k, XA, 4, S * D * 2)
    srd(k, WA, 6, D * 3 * D * 2)
    srd(k, WSR, 14, WS_SIZE)
    e(f"""s_cmp_eq_u32 s67, 1
s_cbranch_scc1 k1_prod0""")
    XOE, XOO, WOFF = 4, 5, 6
    WOT, WOH = 16, 8
    DBG = 56
    SCR = 32768
    e(f"""s_load_dwordx2 s[8:9], s[0:1], 16
s_load_dwordx2 s[10:11], s[0:1], 32
v_lshrrev_b32 v{T}, 3, v{LANE}
v_lshrrev_b32 v{T+1}, 4, v{LANE}
v_and_b32 v{T+2}, 7, v{LANE}
v_xor_b32 v{T+2}, v{T+2}, v{T+1}
v_mul_u32_u24 v{T}, 1152, v{T}
v_lshl_add_u32 v{XOE}, v{T+2}, 4, v{T}
v_xor_b32 v{XOO}, 64, v{XOE}
v_and_b32 v{T+3}, 15, v{LANE}
v_lshlrev_b32 v{T+4}, 2, v{T+1}
v_xor_b32 v{T+3}, v{T+3}, v{T+4}
v_mul_u32_u24 v{T+4}, 3456, v{T+1}
v_lshl_add_u32 v{WOFF}, v{T+3}, 4, v{T+4}
s_lshl_b32 s46, s48, 1
s_add_u32 s46, s46, 14
v_cmp_gt_u32 s[60:61], s46, v{T+3}
v_mov_b32 v{T+4}, {HUGE}
s_lshl_b32 s41, s36, 7
s_lshl_b32 s46, s38, 5
v_cndmask_b32 v{WOFF}, v{T+4}, v{WOFF}, s[60:61]
s_add_u32 s41, s41, s46
s_mul_i32 s41, s41, 1152
s_mul_i32 s42, s38, {16*3456}
s_add_u32 s42, s42, s50
s_lshl_b32 s43, s38, 12
""")

    def dma_stage():
        for j in range(4):
            e(f"""s_add_u32 m0, s43, {j*1024}
s_add_u32 s46, s41, {j*9216}
buffer_load_dwordx4 v{XOE if j % 2 == 0 else XOO}, s[{XA}:{XA+3}], s46 offen lds
s_add_u32 m0, s43, {16384+j*1024}
s_add_u32 s46, s42, {j*13824}
buffer_load_dwordx4 v{WOFF}, s[{WA}:{WA+3}], s46 offen lds""")
        e(f"""s_add_u32 s41, s41, 128
s_add_u32 s42, s42, {64*3456}
s_add_u32 s43, s43, 32768
s_and_b32 s43, s43, 0x1ffff""")

    HW, HWA, SW, DW, UW = 20, 21, 40, 48, 64
    e(f"""v_and_b32 v{T}, 3, v{LANE}
s_lshl_b32 s46, s38, 2
v_add_u32 v{T}, s46, v{T}
v_lshrrev_b32 v{T+1}, 2, v{LANE}
v_and_b32 v{T+2}, 3, v{T+1}
v_lshlrev_b32 v{T+2}, 2, v{T+2}
v_xor_b32 v{T}, v{T}, v{T+2}
v_lshlrev_b32 v{T+1}, 8, v{T+1}
v_lshl_add_u32 v{HW}, v{T}, 4, v{T+1}
v_add_u32 v{HW}, 16384, v{HW}
s_mov_b32 s45, 0""")
    for r in range(SW, SW + 8):
        e(f"v_mov_b32 v{r}, 0")
    def cs_reads():
        e(f"v_add_u32 v{HWA}, s45, v{HW}")
        for i in range(4):
            e(f"ds_read_b128 {vr(DW+4*i,4)}, v{HWA} offset:{i*4096}")
        e("s_add_u32 s45, s45, 32768\ns_and_b32 s45, s45, 0x1ffff")
    def cs_valu():
        for i in range(16):
            if i % 4 == 0: e(f"s_waitcnt lgkmcnt({3 - i//4})")
            u = UW + 2 * (i % 4); w = SW + 2 * (i % 4)
            e(f"""v_lshlrev_b32 v{u}, 16, v{DW+i}
v_and_b32 v{u+1}, 0xffff0000, v{DW+i}
v_add_f32 v{w}, v{w}, v{u}
v_add_f32 v{w+1}, v{w+1}, v{u+1}""")
    e("s_mov_b32 s44, 0")
    POLL = 12
    LL, LL2, LPROD, LCONT, LSIG = "k1_lloop", "k1_lskip", "k1_prod", "k1_cont", "k1_sig"
    k.label(LL)
    e(f"""s_cmp_lt_u32 s44, 3
s_cbranch_scc1 {LL2}
s_waitcnt vmcnt(16)
s_barrier""")
    cs_reads()
    k.label(LL2)
    dma_stage()
    e(f"""s_cmp_lt_u32 s44, 3
s_cbranch_scc1 k1_ncs""")
    e("s_getpc_b64 s[76:77]")
    k.label("k1_cb1")
    e("s_add_u32 s76, s76, k1_ncs-k1_cb1\ns_addc_u32 s77, s77, 0\ns_branch k1_csv")
    k.label("k1_ncs")
    e(f"""s_add_u32 s44, s44, 1
s_cmp_eq_u32 s44, 1
s_cbranch_scc1 k1_wo
""")
    k.label(LCONT)
    e(f"""s_cmp_lt_u32 s44, 9
s_cbranch_scc1 {LL}
buffer_load_dwordx4 v[36:39], v{POLL}, s[{DBG}:{DBG+3}], 0 offen sc1
s_waitcnt vmcnt(17)
s_barrier""")
    e("s_getpc_b64 s[76:77]")
    k.label("k1_cb6")
    e("s_add_u32 s76, s76, k1_cr6-k1_cb6\ns_addc_u32 s77, s77, 0\ns_branch k1_csr")
    k.label("k1_cr6")
    e(f"""s_waitcnt vmcnt(9)
s_barrier""")
    e("s_getpc_b64 s[76:77]")
    k.label("k1_cb7")
    e("s_add_u32 s76, s76, k1_cr7-k1_cb7\ns_addc_u32 s77, s77, 0\ns_branch k1_csr")
    k.label("k1_cr7")
    e(f"""s_mov_b32 s62, 0
s_mov_b32 s74, 0
s_waitcnt vmcnt(0)
s_branch k1_pchk
""")
    k.label("k1_csr")
    cs_reads()
    k.label("k1_csv")
    cs_valu()
    e("s_setpc_b64 s[76:77]")
    k.label("k1_poll")
    e(f"""s_sleep 8
buffer_load_dwordx4 v[36:39], v{POLL}, s[{DBG}:{DBG+3}], 0 offen sc1
s_waitcnt vmcnt(0)""")
    k.label("k1_pchk")
    e(f"""v_and_b32 v36, v36, v37
v_and_b32 v38, v38, v39
v_and_b32 v36, v36, v38
s_nop 0
v_readfirstlane_b32 s63, v36
s_add_u32 s62, s62, 1
s_cmp_eq_u32 s63, {"0x01010102" if os.environ.get("K1FB") else "0x01010101"}
s_cbranch_scc1 k1_polled
s_cmp_lt_u32 s62, {int(os.environ.get("K1POLL", "64"))}
s_cbranch_scc1 k1_poll
s_mov_b32 s64, 0
s_mov_b32 s73, 1
s_mov_b32 s74, 1
s_branch {LPROD}""")
    k.label("k1_polled")
    e(f"""s_lshl_b32 s46, s36, 10
s_lshl_b32 s62, s38, 8
s_add_u32 s46, s46, s62
s_add_u32 s46, s46, {WS_XST}
v_lshlrev_b32 v{T}, 3, v{M}
buffer_load_dwordx2 v[32:33], v{T}, s[{WSR}:{WSR+3}], s46 offen sc1
s_barrier""")
    e("s_getpc_b64 s[76:77]")
    k.label("k1_cb8")
    e("s_add_u32 s76, s76, k1_cr8-k1_cb8\ns_addc_u32 s77, s77, 0\ns_branch k1_csr")
    k.label("k1_cr8")
    CP = 72
    for sw in ["v_permlane32_swap_b32", "v_permlane16_swap_b32"]:
        for i in range(8): e(f"v_mov_b32 v{CP+i}, v{SW+i}")
        for i in range(8): e(f"{sw} v{SW+i}, v{CP+i}")
        for i in range(8): e(f"v_add_f32 v{SW+i}, v{SW+i}, v{CP+i}")
    for sh in ["row_ror:4", "row_ror:8"]:
        for j in range(8):
            e(f"v_add_f32_dpp v{SW+j}, v{SW+j}, v{SW+j} {sh} row_mask:0xf bank_mask:0xf")
    e(f"""v_and_b32 v{T+6}, 3, v{LANE}
s_lshl_b32 s63, s38, 7
v_lshl_add_u32 v{T+6}, v{T+6}, 5, s63
ds_write_b128 v{T+6}, {vr(SW,4)} offset:{SCR+1024}
ds_write_b128 v{T+6}, {vr(SW+4,4)} offset:{SCR+1024+16}
s_cmp_eq_u32 s74, 0
s_cbranch_scc1 k1_fetched
buffer_load_dwordx2 v[32:33], v{T}, s[{WSR}:{WSR+3}], s46 offen sc1""")
    k.label("k1_fetched")
    e(f"""v_add_u32 v{T}, s62, v{T}
s_waitcnt vmcnt(0)
ds_write_b64 v{T}, v[32:33] offset:{SCR}
s_waitcnt lgkmcnt(0)
s_barrier
s_branch k1_side
""")
    k.label("k1_wo")
    e(f"""s_lshl_b32 s46, s36, 4
v_mov_b32 v{POLL}, s46
s_waitcnt lgkmcnt(0)""")
    srd(k, WOR, 8, D * D * 2)
    srd(k, WRR, 10, D * 2)
    srd(k, DBG, 12, 256)
    e(f"""s_lshl_b32 s51, s38, 8
s_add_u32 s51, s51, s2
s_mul_i32 s68, s51, 1821
s_lshr_b32 s68, s68, 16
s_mul_i32 s69, s68, 36
s_sub_u32 s69, s51, s69
s_mul_i32 s70, s69, {18*1152}
s_sub_u32 s46, s69, 32
s_mul_i32 s46, s46, {144*1152}
s_add_u32 s46, s46, {16*1152}
s_cmp_ge_u32 s69, 32
s_cselect_b32 s70, s46, s70
s_cselect_b32 s71, {72*1152}, {8*1152}
s_cselect_b32 s72, {18*1152}, {2*1152}
s_cmp_ge_u32 s51, 648
s_cselect_b32 s70, {HUGE}, s70
v_and_b32 v{T}, 0x13, v{M}
v_and_b32 v{T+1}, 4, v{M}
v_lshl_or_b32 v{T}, v{T+1}, 1, v{T}
v_and_b32 v{T+1}, 8, v{M}
v_lshrrev_b32 v{T+1}, 1, v{T+1}
v_or_b32 v{T}, v{T}, v{T+1}
s_lshl_b32 s68, s68, 5
v_add_u32 v{T}, s68, v{T}
v_lshlrev_b32 v{T}, 1, v{T}
v_mul_lo_u32 v{T+1}, v{HALF}, s71
v_add_u32 v{T}, v{T}, v{T+1}
""")
    for jj in range(4):
        e(f"""buffer_load_ushort v{WOT+jj}, v{T}, s[{WOR}:{WOR+3}], s70 offen
buffer_load_ushort v{WOH+jj}, v{T}, s[{WOR}:{WOR+3}], s70 offen offset:1152""")
        if jj < 3:
            e("s_add_u32 s70, s70, s72")
    e(f"s_branch {LCONT}")
    k.label("k1_prod0")
    e(f"""s_mov_b32 s64, s37
s_mov_b32 s73, 0""")
    k.label(LPROD)
    DX, SX, SQ, UU = 176, 188, 190, 192
    PX, PX3 = 32, 33
    e(f"""v_mul_u32_u24 v{PX}, 1152, v{HALF}
v_lshl_add_u32 v{PX}, v{M}, 4, v{PX}
v_cmp_gt_u32 s[60:61], 8, v{M}
v_mov_b32 v{T+4}, {HUGE}
s_nop 0
v_cndmask_b32 v{PX3}, v{T+4}, v{PX}, s[60:61]
""")
    k.label("k1_ploop")
    e(f"""s_lshl_b32 s46, s36, 7
s_lshl_b32 s68, s64, 3
s_add_u32 s46, s46, s68
s_lshl_b32 s68, s38, 1
s_add_u32 s68, s46, s68
s_mul_i32 s46, s68, 1152
buffer_load_dwordx4 {vr(DX,4)}, v{PX}, s[{XA}:{XA+3}], s46 offen
buffer_load_dwordx4 {vr(DX+4,4)}, v{PX}, s[{XA}:{XA+3}], s46 offen offset:512
buffer_load_dwordx4 {vr(DX+8,4)}, v{PX3}, s[{XA}:{XA+3}], s46 offen offset:1024
s_cmp_eq_u32 s73, 0
s_cbranch_scc1 k1_compute
""")
    k.label("k1_pfin")
    for r in range(188, 192):
        e(f"v_mov_b32 v{r}, 0")
    for i in range(12):
        u = UU + 2 * (i % 4)
        if i % 4 == 0:
            e(f"s_waitcnt vmcnt({2 - i//4})")
        e(f"""v_lshlrev_b32 v{u}, 16, v{DX+i}
v_and_b32 v{u+1}, 0xffff0000, v{DX+i}
v_add_f32 v{SX}, v{SX}, v{u}
v_add_f32 v{SX+1}, v{SX+1}, v{u+1}
v_fmac_f32 v{SQ}, v{u}, v{u}
v_fmac_f32 v{SQ+1}, v{u+1}, v{u+1}""")
    e(f"""v_add_f32 v{SX}, v{SX}, v{SX+1}
v_add_f32 v{SQ}, v{SQ}, v{SQ+1}
s_lshl_b32 s46, s68, 3
s_add_u32 s46, s46, {WS_XST}""")
    for sh, rm in [("row_shr:1", "0xf"), ("row_shr:2", "0xf"), ("row_shr:4", "0xf"), ("row_shr:8", "0xf"), ("row_bcast:15", "0xa")]:
        e(f"""v_add_f32_dpp v{SX}, v{SX}, v{SX} {sh} row_mask:{rm} bank_mask:0xf
v_add_f32_dpp v{SQ}, v{SQ}, v{SQ} {sh} row_mask:{rm} bank_mask:0xf
s_nop 0""")
    A_T, B_T = 22, 23
    e(f"""v_mul_f32 v{T+2}, {f32hex(1.0/576)}, v{SX}
v_mul_f32 v{T+3}, {f32hex(1.0/576)}, v{SQ}
v_fma_f32 v{T+3}, -v{T+2}, v{T+2}, v{T+3}
v_max_f32 v{T+3}, 0, v{T+3}
v_cvt_pk_bf16_f32 v{T+2}, v{T+2}, v{T+2}
v_cvt_pk_bf16_f32 v{T+3}, v{T+3}, v{T+3}
v_and_b32 v{T+2}, 0xffff0000, v{T+2}
v_and_b32 v{T+3}, 0xffff0000, v{T+3}
v_add_f32 v{T+3}, {f32hex(1e-5)}, v{T+3}
v_cvt_pk_bf16_f32 v{T+3}, v{T+3}, v{T+3}
v_and_b32 v{T+3}, 0xffff0000, v{T+3}
v_sqrt_f32 v{T+3}, v{T+3}
v_sub_f32 v{B_T}, 0, v{T+2}
v_cvt_pk_bf16_f32 v{T+3}, v{T+3}, v{T+3}
v_and_b32 v{T+3}, 0xffff0000, v{T+3}
v_rcp_f32 v{A_T}, v{T+3}
v_lshlrev_b32 v{T+2}, 3, v{HALF}
s_mov_b32 exec_lo, 0x80000000
s_mov_b32 exec_hi, 0x80000000
buffer_store_dwordx2 v[{A_T}:{B_T}], v{T+2}, s[{WSR}:{WSR+3}], s46 offen sc1
s_mov_b64 exec, -1
s_cmp_eq_u32 s73, 0
s_cbranch_scc1 k1_pret
s_add_u32 s64, s64, 1
s_waitcnt vmcnt(0)
s_cmp_lt_u32 s64, 16
s_cbranch_scc1 k1_ploop
s_branch k1_polled
""")
    k.label("k1_side")
    e(f"""s_lshl_b32 s46, s51, 10
s_add_u32 s46, s46, {WS_WOP}
s_cmp_ge_u32 s51, 648
s_cselect_b32 s46, {HUGE}, s46
v_lshlrev_b32 v{T}, 4, v{LANE}
v_lshl_or_b32 v{WOT}, v{WOH}, 16, v{WOT}
v_lshl_or_b32 v{WOT+1}, v{WOH+1}, 16, v{WOT+1}
v_lshl_or_b32 v{WOT+2}, v{WOH+2}, 16, v{WOT+2}
v_lshl_or_b32 v{WOT+3}, v{WOH+3}, 16, v{WOT+3}
buffer_store_dwordx4 {vr(WOT,4)}, v{T}, s[{WSR}:{WSR+3}], s46 offen
s_cmp_lt_u32 s2, 240
s_cbranch_scc1 {Lend}
s_add_u32 s{ZR}, s14, {WS_ST}
s_addc_u32 s{ZR+1}, s15, 0
s_and_b32 s{ZR+1}, s{ZR+1}, 0xffff
s_mov_b32 s{ZR+2}, {ZERO_BYTES}
s_mov_b32 s{ZR+3}, 0x20000
s_sub_u32 s46, s2, 240
s_lshl_b32 s46, s46, 12
v_lshlrev_b32 v{T+1}, 4, v0
v_mov_b32 v32, 0
v_mov_b32 v33, 0
v_mov_b32 v34, 0
v_mov_b32 v35, 0
buffer_store_dwordx4 v[32:35], v{T+1}, s[{ZR}:{ZR+3}], s46 offen
s_cmp_lg_u32 s51, 1023
s_cbranch_scc1 {Lend}
v_lshlrev_b32 v{T+1}, 2, v{LANE}
""")
    for i in range(5):
        e(f"buffer_load_dword v{36+i}, v{T+1}, s[{WRR}:{WRR+3}], 0 offen offset:{256*i}")
    e(f"v_mov_b32 v{T+2}, 0\ns_waitcnt vmcnt(0)")
    for i in range(5):
        e(f"v_dot2_f32_bf16 v{T+2}, v{36+i}, s47, v{T+2}")
    e("s_nop 3")
    for sh in ["row_shr:1", "row_shr:2", "row_shr:4", "row_shr:8"]:
        e(f"""v_mov_b32 v{T+3}, 0
s_nop 1
v_mov_b32_dpp v{T+3}, v{T+2} {sh} row_mask:0xf bank_mask:0xf
v_add_f32 v{T+2}, v{T+2}, v{T+3}""")
    for sh, rm in [("row_bcast:15", "0xa"), ("row_bcast:31", "0xc")]:
        e(f"""v_mov_b32 v{T+3}, 0
s_nop 1
v_mov_b32_dpp v{T+3}, v{T+2} {sh} row_mask:{rm} bank_mask:0xf
v_add_f32 v{T+2}, v{T+2}, v{T+3}""")
    e(f"""v_mov_b32 v{T+1}, {WS_WSUM}
s_mov_b32 exec_lo, 0
s_mov_b32 exec_hi, 0x80000000
buffer_store_dword v{T+2}, v{T+1}, s[{WSR}:{WSR+3}], 0 offen
s_endpgm
""")
    k.label("k1_compute")
    XRD0, XRD1, WRD0, WRD1 = 7, 8, 9, 10
    XA0, XA1, WA0, WA1 = 11, 12, 13, 14
    XSUM, XSQ, WCS = 16, 18, 20
    XAK = [[XA0, 4, 5, 6], [XA1, 15, 16, 17]]
    U = 220
    buf = [dict(X=[32+16*i, 36+16*i], W=[40+16*i, 44+16*i]) for i in range(4)]
    acc = lambda t, f: 96 + 32 * t + 16 * f
    e(f"""s_lshr_b32 s39, s38, 1
s_and_b32 s40, s38, 1
s_mov_b32 s49, 0xffff0000
v_bfe_u32 v{T}, v{M}, 1, 3
v_xor_b32 v{T}, v{T}, v{HALF}
v_lshlrev_b32 v{T+1}, 7, v{M}
v_lshl_add_u32 v{T+1}, v{T}, 4, v{T+1}
s_lshl_b32 s46, s38, 12
v_add_u32 v{XRD0}, s46, v{T+1}
v_xor_b32 v{XRD1}, 4096, v{XRD0}
""")
    R_, CQ, A_, KROW, QUAD, PERM = T, T+1, T+2, T+3, T+4, T+5
    e(f"""v_bfe_u32 v{R_}, v{LANE}, 2, 2
v_and_b32 v{CQ}, 3, v{LANE}
v_bfe_u32 v{A_}, v{LANE}, 4, 1
v_lshl_add_u32 v{KROW}, v{HALF}, 3, v{R_}
v_lshl_add_u32 v{QUAD}, v{A_}, 2, v{CQ}
v_and_b32 v{PERM}, 1, v{CQ}
v_lshlrev_b32 v{PERM}, 1, v{PERM}
v_lshrrev_b32 v{T+6}, 1, v{CQ}
v_or_b32 v{PERM}, v{PERM}, v{T+6}
v_mad_u32_u24 v{PERM}, v{A_}, 5, v{PERM}
s_lshl_b32 s61, s40, 1
s_add_u32 s62, s61, 1
s_add_u32 s61, s61, s39
s_sub_u32 s62, s62, s39
""")
    for f, (sft, dst) in enumerate([(61, WRD0), (62, WRD1)]):
        UB = T + 6
        e(f"""s_mul_i32 s46, s{sft}, 72
v_lshl_add_u32 v{UB}, v{PERM}, 3, s46
v_min_u32 v{T+7}, 2, v{QUAD}
v_mul_u32_u24 v{T+7}, 72, v{T+7}
v_add_u32 v{T+7}, 32, v{T+7}
s_cmp_eq_u32 s{sft}, 3
s_cselect_b64 vcc, -1, 0
s_lshl_b32 s46, s{sft}, 6
v_lshl_add_u32 v{T+8}, v{QUAD}, 3, s46
v_cndmask_b32 v{UB}, v{UB}, v{T+7}, vcc
s_cmp_eq_u32 s48, 1
s_cselect_b64 vcc, -1, 0
s_nop 1
v_cndmask_b32 v{UB}, v{UB}, v{T+8}, vcc
v_lshrrev_b32 v{T+7}, 4, v{UB}
v_lshlrev_b32 v{T+8}, 2, v{R_}
v_xor_b32 v{T+7}, v{T+7}, v{T+8}
v_and_b32 v{UB}, 15, v{UB}
v_lshl_add_u32 v{UB}, v{T+7}, 4, v{UB}
v_lshl_add_u32 v{UB}, v{KROW}, 8, v{UB}
v_add_u32 v{dst}, 16384, v{UB}
""")
    for r in list(range(64, 176)):
        e(f"v_mov_b32 v{r}, 0")
    for r in range(28, 32):
        e(f"v_mov_b32 v{r}, s47")
    e(f"""s_mov_b32 s44, 0
s_mov_b32 s45, 0
s_lshl_b32 s46, s36, 4
s_add_u32 s46, s46, s37
v_mov_b32 v18, s46
v_mov_b32 v19, 1""")
    srd(k, DBG, 12, 256)

    def reads(ks, b):
        if os.environ.get("NOREAD"):
            return
        e(f"""ds_read_b128 {vr(b['X'][0],4)}, v{XAK[0][ks]}
ds_read_b128 {vr(b['X'][1],4)}, v{XAK[1][ks]}
ds_read_b64_tr_b16 {vr(b['W'][0],2)}, v{WA0} offset:{16*ks*256}
ds_read_b64_tr_b16 {vr(b['W'][0]+2,2)}, v{WA0} offset:{(16*ks+4)*256}
ds_read_b64_tr_b16 {vr(b['W'][1],2)}, v{WA1} offset:{16*ks*256}
ds_read_b64_tr_b16 {vr(b['W'][1]+2,2)}, v{WA1} offset:{(16*ks+4)*256}""")

    def mfmas(b, isV):
        i = 0
        for t in range(2):
            for f in range(2):
                a = acc(t, f)
                X, W = vr(b['X'][t], 4), vr(b['W'][f], 4)
                if os.environ.get("NOMFMA"):
                    pass
                elif isV:
                    e(f"v_mfma_f32_32x32x16_bf16 {vr(a,16)}, {X}, {W}, {vr(a,16)}")
                else:
                    e(f"v_mfma_f32_32x32x16_bf16 {vr(a,16)}, {W}, {X}, {vr(a,16)}")
        mfma_cs(b, isV)

    def mfma_cs(b, isV):
        return
        W = vr(b['W'][0], 4)
        if isV:
            e(f"v_mfma_f32_32x32x16_bf16 v[160:175], v[28:31], {W}, v[160:175]")
        else:
            e(f"v_mfma_f32_32x32x16_bf16 v[160:175], {W}, v[28:31], v[160:175]")

    def mainloop(isV):
        L = k.newlabel("loop")
        k.lines.append(".p2align 3")
        k.label(L)
        e(f"""s_barrier
v_add_u32 v{XA0}, s45, v{XRD0}
v_add_u32 v{XA1}, s45, v{XRD1}
v_add_u32 v{WA0}, s45, v{WRD0}
v_add_u32 v{WA1}, s45, v{WRD1}""")
        if PROF:
            e("s_cmp_lg_u32 s44, 0\ns_cbranch_scc1 " + L + "x")
            stamp(1)
            k.label(L + "x")
            e("s_memtime s[76:77]\ns_waitcnt lgkmcnt(0)\ns_sub_u32 s76, s76, s88\ns_mov_b32 m0, s44\ns_nop 0\nv_writelane_b32 v200, s76, m0")
        reads(0, buf[0])
        for t in range(2):
            for ks in range(1, 4):
                e(f"v_xor_b32 v{XAK[t][ks]}, {ks<<5}, v{XAK[t][0]}")
        if int(os.environ.get("K1LATE", "1")):
            e("s_cmp_eq_u32 s44, 0\ns_cbranch_scc1 k1_pfin")
            k.label("k1_retV" if isV else "k1_retQ")
        mfmas(buf[2], isV)
        reads(1, buf[1])
        mfmas(buf[3], isV)
        reads(2, buf[2])
        e(f"""s_cmp_lg_u32 s44, 2
s_cbranch_scc1 {L}z
s_cmp_lg_u32 s38, 0
s_cbranch_scc1 {L}z
s_mov_b64 exec, 1
buffer_store_byte v19, v18, s[{DBG}:{DBG+3}], 0 offen sc1
s_mov_b64 exec, -1""")
        k.label(L + "z")
        e("s_waitcnt lgkmcnt(12)")
        mfmas(buf[0], isV)
        reads(3, buf[3])
        e("s_waitcnt lgkmcnt(12)")
        mfmas(buf[1], isV)
        e(f"""s_add_u32 s45, s45, 32768
s_and_b32 s45, s45, 0x1ffff
s_add_u32 s44, s44, 1
s_cmp_lg_u32 s44, 2
s_cbranch_scc1 {L}y
s_waitcnt vmcnt({2 if int(os.environ.get("K1TOUCH", "0")) else 0})""")
        k.label(L + "y")
        e(f"""s_cmp_lt_u32 s44, 9
s_waitcnt lgkmcnt(0)
s_cbranch_scc1 {L}""")
        mfmas(buf[2], isV)
        mfmas(buf[3], isV)
        stamp(2)

    SCR = 32768
    def stats_final(isV):
        e("s_barrier")

    LV = "k1_vpath"
    LDONE = "k1_done"
    LATE = int(os.environ.get("K1LATE", "1"))
    TOUCH = int(os.environ.get("K1TOUCH", "0"))
    if LATE:
        e("s_branch k1_go")
        k.label("k1_pret")
        if TOUCH:
            e(f"""v_lshlrev_b32 v{T+2}, 18, v{LANE}
buffer_load_dword v{T+3}, v{T+2}, s[{WSR}:{WSR+3}], 0 offen
buffer_load_dword v{T+4}, v18, s[{DBG}:{DBG+3}], 0 offen""")
        e("s_cmp_eq_u32 s48, 1\ns_cbranch_scc1 k1_retV\ns_branch k1_retQ")
    else:
        e("s_branch k1_pfin")
        k.label("k1_pret")
    k.label("k1_go")
    e(f"s_cmp_eq_u32 s48, 1\ns_cbranch_scc1 {LV}")
    mainloop(False)
    stats_final(False)
    AB = [22, 24]
    CS = [160, 176]
    e(f"""s_lshl_b32 s46, s38, 8
v_lshl_add_u32 v{T+4}, v{M}, 3, s46
v_xor_b32 v{T+5}, 256, v{T+4}
ds_read_b64 v[22:23], v{T+4} offset:{SCR}
ds_read_b64 v[24:25], v{T+5} offset:{SCR}
""")
    for f, sft in enumerate([61, 62]):
        e(f"""s_mul_i32 s46, s{sft}, 144
s_cmp_eq_u32 s{sft}, 3
s_cselect_b32 s46, 64, s46
s_cselect_b32 s66, 144, 32
s_cselect_b32 s67, 272, 0
v_mul_lo_u32 v{T+4}, v{HALF}, s66
v_add_u32 v{T+4}, s46, v{T+4}
v_add_u32 v{T+5}, s67, v{T+4}
ds_read_b128 {vr(CS[f],4)}, v{T+4} offset:{SCR+1024}
ds_read_b128 {vr(CS[f]+4,4)}, v{T+5} offset:{SCR+1024+16}
ds_read_b128 {vr(CS[f]+8,4)}, v{T+4} offset:{SCR+1024+80}
ds_read_b128 {vr(CS[f]+12,4)}, v{T+4} offset:{SCR+1024+96}""")
    e(f"v_lshlrev_b32 v{T+7}, 4, v{LANE}")
    L16 = T + 7
    e(f"""s_lshl_b32 s63, s36, 2
s_xor_b32 s64, s38, 1
s_add_u32 s64, s64, s63
s_add_u32 s63, s63, s38
s_mul_i32 s65, s37, 3
s_waitcnt lgkmcnt(0)
""")
    SC = 32
    for f, sft in enumerate([61, 62]):
        Lrem, Lnext = k.newlabel("rem"), k.newlabel("next")
        e(f"""s_cmp_eq_u32 s{sft}, 3
s_cbranch_scc1 {Lrem}
s_add_u32 s66, s65, s{sft}
s_cmp_ge_u32 s66, 32
s_cbranch_scc1 {Lnext}
s_and_b32 s67, s66, 15
s_lshl_b32 s67, s67, 1
s_cmp_lt_u32 s66, 16
s_cselect_b32 s68, {f32hex(QSCALE)}, 1.0
s_cselect_b32 s69, 65536, {KVH}
""")
        for t, stt in enumerate([63, 64]):
            a = acc(t, f)
            e(f"""s_lshr_b32 s70, s{stt}, 1
s_mul_i32 s70, s70, {BLK}
s_and_b32 s71, s{stt}, 1
s_lshl_b32 s71, s71, 10
s_add_u32 s70, s70, s71
s_lshl_b32 s71, s{stt}, 10
s_add_u32 s71, s71, {WS_QM}
s_cmp_lt_u32 s66, 16
s_cselect_b32 s70, s71, s70
s_mul_i32 s71, s67, s69
s_add_u32 s70, s70, s71
s_add_u32 s71, s70, s69
v_mul_f32 v{SC}, s68, v{AB[t]}
""")
            for i in range(8):
                e(f"v_pk_fma_f32 {vr(a+2*i,2)}, {vr(CS[f]+2*i,2)}, v[{AB[t]}:{AB[t]+1}], {vr(a+2*i,2)} op_sel:[0,1,0] op_sel_hi:[1,1,1]")
            for i in range(8):
                e(f"v_pk_mul_f32 {vr(a+2*i,2)}, {vr(a+2*i,2)}, v[{SC}:{SC+1}] op_sel_hi:[1,0]")
            P = 40 + 8 * t
            for i in range(8):
                e(f"v_cvt_pk_bf16_f32 v{P+i}, v{a+2*i}, v{a+2*i+1}")
            e(f"""buffer_store_dwordx4 {vr(P,4)}, v{L16}, s[{WSR}:{WSR+3}], s70 offen
buffer_store_dwordx4 {vr(P+4,4)}, v{L16}, s[{WSR}:{WSR+3}], s71 offen""")
        e(f"""s_cmp_lt_u32 s66, 16
s_cbranch_scc1 {Lnext}""")
        NN = [[56, 58], [60, 62]]
        for t in range(2):
            a = acc(t, f)
            for hb in range(2):
                N = NN[t][hb]
                b = a + 8 * hb
                e(f"v_pk_mul_f32 v[{N}:{N+1}], {vr(b,2)}, {vr(b,2)}")
            for i in range(1, 4):
                for hb in range(2):
                    N = NN[t][hb]
                    b = a + 8 * hb
                    e(f"v_pk_fma_f32 v[{N}:{N+1}], {vr(b+2*i,2)}, {vr(b+2*i,2)}, v[{N}:{N+1}]")
        for t in range(2):
            for hb in range(2):
                N = NN[t][hb]
                e(f"v_add_f32 v{N}, v{N}, v{N+1}")
        e(f"""s_lshl_b32 s70, s67, 8
s_and_b32 s71, s63, 62
s_lshl_b32 s71, s71, 2
v_permlane32_swap_b32 v56, v58
v_permlane32_swap_b32 v60, v62
s_add_u32 s70, s70, s71
s_add_u32 s70, s70, {WS_KNM}
v_add_f32 v56, v56, v58
v_add_f32 v60, v60, v62
v_max_f32 v56, v56, v60
v_lshlrev_b32 v58, 8, v{HALF}
s_nop 0
v_max_f32_dpp v56, v56, v56 row_shr:1 row_mask:0xf bank_mask:0xf
s_nop 1
v_max_f32_dpp v56, v56, v56 row_shr:2 row_mask:0xf bank_mask:0xf
s_nop 1
v_max_f32_dpp v56, v56, v56 row_shr:4 row_mask:0xf bank_mask:0xf
s_nop 1
v_max_f32_dpp v56, v56, v56 row_shr:8 row_mask:0xf bank_mask:0xf
s_nop 1
v_max_f32_dpp v56, v56, v56 row_bcast:15 row_mask:0xa bank_mask:0xf
s_mov_b32 exec_lo, 0x80000000
s_mov_b32 exec_hi, 0x80000000
v_mov_b32 v57, v56
buffer_store_dwordx2 v[56:57], v58, s[{WSR}:{WSR+3}], s70 offen
s_mov_b64 exec, -1
""")
        e(f"s_branch {Lnext}")
        k.label(Lrem)
        for t, stt in enumerate([63, 64]):
            a = acc(t, f)
            e(f"""s_lshr_b32 s70, s{stt}, 1
s_mul_i32 s70, s70, {BLK}
s_and_b32 s71, s{stt}, 1
s_lshl_b32 s71, s71, 7
s_add_u32 s70, s70, s71
s_add_u32 s70, s70, 4480
s_lshl_b32 s71, s{stt}, 7
s_add_u32 s71, s71, {WS_QR}
s_lshl_b32 s73, s{stt}, 2
s_add_u32 s73, s73, {WS_KNR}
""")
            for j in range(3):
                b = 76 + 4 * j
                e(f"""s_add_u32 s66, s65, {j}
s_and_b32 s67, s66, 15
s_lshl_b32 s67, s67, 1
s_lshl_b32 s74, s67, 8
s_add_u32 s74, s74, s73
s_cmp_lt_u32 s66, 16
s_cselect_b32 s{b+1}, 8192, {KVH}
s_cselect_b32 s{b+2}, {f32hex(QSCALE)}, 1.0
s_cselect_b32 s{b}, s71, s70
s_cselect_b32 s{b+3}, {HUGE}, s74
s_mul_i32 s67, s67, s{b+1}
s_add_u32 s{b}, s{b}, s67
s_cmp_ge_u32 s66, 32
s_cselect_b32 s{b}, {HUGE}, s{b}
s_cselect_b32 s{b+3}, {HUGE}, s{b+3}
""")
            V = 32
            e(f"""v_cmp_eq_u32 s[74:75], 1, v{HALF}
v_mov_b32 v{V}, s76
v_mov_b32 v{V+1}, s77
v_mov_b32 v{V+2}, s78
v_mov_b32 v{V+3}, s79
v_mov_b32 v{V+4}, s80
v_mov_b32 v{V+5}, s81
v_mov_b32 v{V+6}, s82
v_mov_b32 v{V+7}, s83
v_cndmask_b32 v{V}, v{V}, v{V+4}, s[74:75]
v_cndmask_b32 v{V+1}, v{V+1}, v{V+5}, s[74:75]
v_cndmask_b32 v{V+2}, v{V+2}, v{V+6}, s[74:75]
v_cndmask_b32 v{V+3}, v{V+3}, v{V+7}, s[74:75]
v_mov_b32 v{V+4}, s84
v_mov_b32 v{V+7}, s87
v_mov_b32 v{V+5}, {HUGE}
v_cndmask_b32 v{V+4}, v{V+4}, v{V+5}, s[74:75]
v_cndmask_b32 v{V+7}, v{V+7}, v{V+5}, s[74:75]
v_lshl_add_u32 v{V}, v{M}, 2, v{V}
v_lshl_add_u32 v{V+4}, v{M}, 2, v{V+4}
v_add_u32 v{V+1}, v{V}, v{V+1}
v_add_u32 v{V+5}, s85, v{V+4}
v_mul_f32 v{V+2}, v{V+2}, v{AB[t]}
v_mul_f32 v{V+6}, s86, v{AB[t]}
""")
            for i in range(8):
                e(f"v_fma_f32 v{a+i}, v{CS[f]+i}, v{AB[t]+1}, v{a+i}")
            for i in range(8):
                e(f"v_mul_f32 v{a+i}, v{a+i}, v{V+2 if i < 4 else V+6}")
            P = 40
            for i in range(4):
                e(f"""v_cvt_pk_bf16_f32 v{P+i}, v{a+2*i}, v{a+2*i+1}
v_mul_f32 v{P+4+i}, v{a+2*i}, v{a+2*i}
v_fma_f32 v{P+4+i}, v{a+2*i+1}, v{a+2*i+1}, v{P+4+i}""")
            for i, ad in enumerate([V, V+1, V+4, V+5]):
                e(f"buffer_store_dword v{P+i}, v{ad}, s[{WSR}:{WSR+3}], 0 offen")
            for sh in ["row_shr:1", "row_shr:2", "row_shr:4", "row_shr:8"]:
                for i in range(4):
                    e(f"v_max_f32_dpp v{P+4+i}, v{P+4+i}, v{P+4+i} {sh} row_mask:0xf bank_mask:0xf")
            for i in range(4):
                e(f"v_max_f32_dpp v{P+4+i}, v{P+4+i}, v{P+4+i} row_bcast:15 row_mask:0xa bank_mask:0xf")
            e(f"""s_mov_b32 exec_lo, 0x80000000
s_mov_b32 exec_hi, 0x80000000
buffer_store_dword v{P+4}, v{V+3}, s[{WSR}:{WSR+3}], 0 offen
buffer_store_dword v{P+5}, v{V+3}, s[{WSR}:{WSR+3}], 0 offen offset:256
buffer_store_dword v{P+6}, v{V+7}, s[{WSR}:{WSR+3}], 0 offen
buffer_store_dword v{P+7}, v{V+7}, s[{WSR}:{WSR+3}], 0 offen offset:256
s_mov_b64 exec, -1
""")
        k.label(Lnext)
    e(f"s_branch {LDONE}")
    k.label(LV)
    mainloop(True)
    stats_final(True)
    RW = 160
    CSL = [21, 26]
    ADR = [(18, 19), (20, 27)]
    e(f"""s_lshl_b32 s46, s61, 7
v_lshl_add_u32 v{T+5}, v{M}, 2, s46
ds_read_b32 v{CSL[0]}, v{T+5} offset:{SCR+1024}
s_lshl_b32 s46, s62, 7
v_lshl_add_u32 v{T+5}, v{M}, 2, s46
ds_read_b32 v{CSL[1]}, v{T+5} offset:{SCR+1024}
s_lshl_b32 s46, s38, 8
v_lshl_add_u32 v{T+8}, v{HALF}, 5, s46
v_xor_b32 v{T+9}, 256, v{T+8}
s_lshl_b32 s63, s36, 2
s_xor_b32 s64, s38, 1
s_add_u32 s64, s64, s63
s_add_u32 s63, s63, s38
s_sub_u32 s65, s37, 11
s_lshl_b32 s65, s65, 7
v_mov_b32 v32, s47
v_mov_b32 v33, s47
v_mov_b32 v34, s47
v_mov_b32 v35, s47
""")
    def rwread(t):
        for a in range(4):
            e(f"""ds_read_b128 {vr(RW+8*a,4)}, v{T+8+t} offset:{SCR+a*64}
ds_read_b128 {vr(RW+8*a+4,4)}, v{T+8+t} offset:{SCR+a*64+16}""")
    rwread(0)
    SLOTC = 0 | (13 << 5) | (9 << 10) | (4 << 15) | (17 << 20)
    for f, sft in enumerate([61, 62]):
        AD, AO = ADR[f]
        e(f"""s_lshl_b32 s66, s{sft}, 5
s_add_u32 s66, s66, s65
v_add_u32 v{T+2}, s66, v{M}
v_mul_u32_u24 v{T+3}, 3641, v{T+2}
v_lshrrev_b32 v{T+3}, 16, v{T+3}
v_mul_u32_u24 v{T+6}, 18, v{T+3}
v_sub_u32 v{T+2}, v{T+2}, v{T+6}
v_lshrrev_b32 v{T+6}, 2, v{T+2}
v_mul_u32_u24 v{T+6}, 5, v{T+6}
s_mov_b32 s46, {SLOTC}
v_bfe_u32 v{T+6}, s46, v{T+6}, 5
v_and_b32 v{T+7}, 3, v{T+2}
v_add_u32 v{T+6}, v{T+6}, v{T+7}
s_mov_b32 s46, {KVH}
v_mul_lo_u32 v{T+3}, v{T+3}, s46
v_mul_u32_u24 v{T+7}, 304, v{HALF}
v_add_u32 v{T+3}, v{T+3}, v{T+7}
s_cmp_ge_u32 s66, 576
s_cselect_b32 s46, {HUGE}, 0
v_add_u32 v{T+3}, s46, v{T+3}
v_lshl_add_u32 v{AD}, v{T+6}, 4, v{T+3}
v_add_u32 v{AO}, 128, v{T+3}
v_cmp_eq_u32 vcc, 0, v{T+2}
v_mov_b32 v{T+7}, {HUGE}
s_nop 0
v_cndmask_b32 v{AO}, v{T+7}, v{AO}, vcc
""")
    for t, stt in enumerate([63, 64]):
        e(f"""s_lshr_b32 s70, s{stt}, 1
s_mul_i32 s70, s70, {BLK}
s_and_b32 s71, s{stt}, 1
s_mul_i32 s71, s71, 1216
s_add_u32 s70, s70, s71
s_add_u32 s70, s70, 2048
s_waitcnt lgkmcnt(0)
""")
        for f in range(2):
            a = acc(t, f)
            for r in range(16):
                e(f"v_fma_f32 v{a+r}, v{CSL[f]}, v{RW+2*r+1}, v{a+r}")
            for r in range(16):
                e(f"v_mul_f32 v{a+r}, v{a+r}, v{RW+2*r}")
        if t == 0:
            rwread(1)
        for f in range(2):
            a = acc(t, f)
            AD, AO = ADR[f]
            P = 40 + 8 * f
            for i in range(8):
                e(f"v_cvt_pk_bf16_f32 v{P+i}, v{a+2*i}, v{a+2*i+1}")
            e(f"""buffer_store_dwordx4 {vr(P,4)}, v{AD}, s[{WSR}:{WSR+3}], s70 offen
buffer_store_dwordx4 {vr(P+4,4)}, v{AD}, s[{WSR}:{WSR+3}], s70 offen offset:608
buffer_store_dwordx4 v[32:35], v{AO}, s[{WSR}:{WSR+3}], s70 offen
buffer_store_dwordx4 v[32:35], v{AO}, s[{WSR}:{WSR+3}], s70 offen offset:608
""")
    k.label(LDONE)
    if PROF:
        e(f"""s_memtime s[94:95]
s_waitcnt vmcnt(0)
s_memtime s[96:97]
s_memrealtime s[78:79]
s_waitcnt lgkmcnt(0)
s_mov_b32 m0, 10
s_nop 0
v_writelane_b32 v200, s98, m0
s_mov_b32 m0, 11
s_nop 0
v_writelane_b32 v200, s78, m0
s_sub_u32 s90, s90, s88
s_sub_u32 s92, s92, s88
s_sub_u32 s94, s94, s88
s_sub_u32 s96, s96, s88
v_mov_b32 v192, s90
v_mov_b32 v193, s92
v_mov_b32 v194, s94
v_mov_b32 v195, s96
s_lshl_b32 s46, s2, 2
s_add_u32 s46, s46, s38
s_lshl_b32 s46, s46, 4
s_add_u32 s46, s46, 0xF10000
v_mov_b32 v196, 0
s_mov_b64 exec, 1
buffer_store_dwordx4 v[192:195], v196, s[{WSR}:{WSR+3}], s46 offen
s_mov_b64 exec, 0xffff
s_lshl_b32 s46, s2, 2
s_add_u32 s46, s46, s38
s_lshl_b32 s46, s46, 6
s_add_u32 s46, s46, 0xF40000
v_lshlrev_b32 v196, 2, v1
buffer_store_dword v200, v196, s[{WSR}:{WSR+3}], s46 offen
s_mov_b64 exec, -1""")
    k.label(Lend)
    e("s_endpgm")
    return k, 208, 102
```

```python
from asmlib import *
from layout import *
import os
K2_LDS = 152 * 1024
PROF = int(os.environ.get("PROF", "0"))
PRIO = int(os.environ.get("K2PRIO", "1"))
ZROW = int(os.environ.get("K2ZROW", "1"))
BARALL = int(os.environ.get("K2BAR", "0"))

def gen_k2():
    k = K("k2_kernel")
    e = k.e
    def stamp(i):
        if PROF:
            e(f"s_memtime s[{40+2*i}:{41+2*i}]")
    WSR = 8
    LANE, M, HALF, L16 = 1, 2, 3, 4
    AKM, AVT, AKR = 5, 6, 7
    BKM, BVT, BKR = 8, 9, 10
    T = 11
    QM = 16
    QR = 20
    KR = 22
    KM = [24, 28]
    VF = [32, 36, 40, 44]
    P = 48
    O = 64
    SA, SB = 80, 112
    Lend = "k2_end"
    e(f"""s_cmp_ge_u32 s2, 256
s_cbranch_scc1 {Lend}
s_load_dwordx2 s[4:5], s[0:1], 80
{"s_memtime s[40:41]" if PROF else ""}
{"s_memrealtime s[48:49]" if PROF else ""}
v_and_b32 v{LANE}, 63, v0
v_lshrrev_b32 v{T}, 6, v0
v_and_b32 v{M}, 31, v0
v_readfirstlane_b32 s14, v{T}
v_bfe_u32 v{HALF}, v0, 5, 1
v_lshlrev_b32 v{L16}, 4, v{LANE}
s_and_b32 s12, s2, 7
s_lshl_b32 s12, s12, 2
s_bfe_u32 s16, s2, 0x20003
s_add_u32 s12, s12, s16
s_lshr_b32 s13, s2, 5
s_lshl_b32 s15, s13, 3
s_add_u32 s15, s15, s14
s_mul_i32 s16, s12, {KVH}
s_lshl_b32 s17, s12, 6
s_add_u32 s17, s17, s15
s_lshl_b32 s18, s17, 10
s_add_u32 s18, s18, {WS_QM}
s_lshl_b32 s19, s17, 7
s_add_u32 s19, s19, {WS_QR}
s_lshl_b32 s20, s12, 8
s_add_u32 s20, s20, {WS_KNM}
v_lshlrev_b32 v{T}, 2, v{M}
v_lshlrev_b32 v{T+1}, 2, v{LANE}
s_lshl_b32 s21, s14, 10
s_add_u32 s22, s16, s21
s_waitcnt lgkmcnt(0)
""")
    srd(k, WSR, 4, WS_SIZE)
    W = f"s[{WSR}:{WSR+3}]"
    def dma():
        return f"""s_mov_b32 m0, s21
s_add_u32 s21, s21, 8192
buffer_load_dwordx4 v{L16}, {W}, s22 offen lds
s_add_u32 s22, s22, 8192"""
    e(dma())
    e(f"""buffer_load_dwordx4 {vr(QM,4)}, v{L16}, {W}, s18 offen
buffer_load_dword v{QR}, v{T}, {W}, s19 offen
buffer_load_dword v{T+2}, v{T+1}, {W}, s20 offen
s_add_u32 s20, s20, {WS_KNR-WS_KNM}
buffer_load_dword v{T+3}, v{T+1}, {W}, s20 offen
""")
    e(dma()); e(dma())
    SLC = 0 | (9 << 5) | (13 << 10) | (4 << 15) | (17 << 20)
    e(f"""v_lshrrev_b32 v{T}, 2, v{M}
v_mul_u32_u24 v{T}, 5, v{T}
s_mov_b32 s23, {SLC}
v_bfe_u32 v{T}, s23, v{T}, 5
v_and_b32 v{T+4}, 3, v{M}
v_add_u32 v{T}, v{T}, v{T+4}
v_cmp_lt_u32 s[28:29], 17, v{M}
v_mov_b32 v{KR+1}, 0x3f803f80
v_mul_u32_u24 v{T+4}, 304, v{HALF}
v_cndmask_b32 v{T}, v{T}, 8, s[28:29]
v_lshl_add_u32 v{BVT}, v{T}, 4, v{T+4}
v_add_u32 v{BVT}, 2048, v{BVT}
""")
    if ZROW:
        e(f"""v_and_b32 v{T+4}, 27, v{M}
v_cmp_lt_u32 s[28:29], 18, v{T+4}
v_cmp_eq_u32 s[30:31], 16, v{T+4}
v_cmp_eq_u32 s[32:33], 17, v{T+4}
v_cmp_lt_u32 s[34:35], 19, v{M}
s_or_b64 s[30:31], s[30:31], s[32:33]
s_and_b64 s[30:31], s[30:31], s[34:35]
s_or_b64 s[28:29], s[28:29], s[30:31]
v_mov_b32 v{T+4}, 0x40000
v_cndmask_b32 v{BVT}, v{BVT}, v{T+4}, s[28:29]
""")
    e(f"""v_mov_b32 v{BKM}, v{L16}
v_add_u32 v{BKR}, 4480, v{T+1}
v_mov_b32 v{T+4}, 0
s_waitcnt vmcnt(2)
v_add_f32 v{T+2}, v{T+2}, v{T+3}
v_dot2_f32_bf16 v{T+4}, v{QM}, v{QM}, v{T+4}
v_dot2_f32_bf16 v{T+4}, v{QM+1}, v{QM+1}, v{T+4}
v_max_f32_dpp v{T+2}, v{T+2}, v{T+2} row_shr:1 row_mask:0xf bank_mask:0xf
v_dot2_f32_bf16 v{T+4}, v{QM+2}, v{QM+2}, v{T+4}
v_dot2_f32_bf16 v{T+4}, v{QM+3}, v{QM+3}, v{T+4}
v_max_f32_dpp v{T+2}, v{T+2}, v{T+2} row_shr:2 row_mask:0xf bank_mask:0xf
s_nop 1
v_max_f32_dpp v{T+2}, v{T+2}, v{T+2} row_shr:4 row_mask:0xf bank_mask:0xf
v_mov_b32 v{T+3}, v{T+4}
s_nop 0
v_max_f32_dpp v{T+2}, v{T+2}, v{T+2} row_shr:8 row_mask:0xf bank_mask:0xf
v_permlane32_swap_b32 v{T+3}, v{T+4}
s_nop 0
v_max_f32_dpp v{T+2}, v{T+2}, v{T+2} row_bcast:15 row_mask:0xa bank_mask:0xf
v_add_f32 v{T+4}, v{T+3}, v{T+4}
v_dot2_f32_bf16 v{T+4}, v{QR}, v{QR}, v{T+4}
v_max_f32_dpp v{T+2}, v{T+2}, v{T+2} row_bcast:31 row_mask:0xc bank_mask:0xf
s_nop 1
v_readlane_b32 s24, v{T+2}, 63
s_nop 1
v_mul_f32 v{T+4}, s24, v{T+4}
v_sqrt_f32 v{T+4}, v{T+4}
s_mov_b32 s26, 0
v_mul_f32 v{T+4}, {f32hex(-1.02)}, v{T+4}
v_cvt_pk_bf16_f32 v{QR+1}, v{T+4}, 0
s_waitcnt vmcnt(0)
s_barrier
s_mov_b32 s27, 0
s_lshr_b32 s36, s14, 2
""")
    if PRIO == 2:
        e("s_cmp_eq_u32 s36, 0\ns_cbranch_scc1 k2_p3\ns_setprio 1")
        k.label("k2_p3")
    LMAIN = "k2_main"
    stamp(1)
    k.label(LMAIN)
    RM = lambda Sn: f"v_mfma_f32_32x32x4_2b_bf16 {vr(Sn,32)}, {vr(KR,2)}, {vr(QR,2)}, 0"
    MM = lambda Sn, t: f"v_mfma_f32_32x32x16_bf16 {vr(Sn+16*t,16)}, {vr(KM[t],4)}, {vr(QM,4)}, {vr(Sn+16*t,16)}"
    PV = lambda i: f"v_mfma_f32_32x32x16_bf16 {vr(O,16)}, {vr(VF[i],4)}, {vr(P+4*i,4)}, {vr(O,16)}"
    rdV = lambda i, blk: f"ds_read_b128 {vr(VF[i],4)}, v{AVT} offset:{blk*BLK+608*i}"
    rdKM = lambda t, blk: f"ds_read_b128 {vr(KM[t],4)}, v{AKM} offset:{blk*BLK+1024*t}"
    rdKR = lambda blk: f"ds_read_b32 v{KR}, v{AKR} offset:{blk*BLK}"
    e(f"""v_mov_b32 v{AKM}, v{BKM}
v_mov_b32 v{AVT}, v{BVT}
v_mov_b32 v{AKR}, v{BKR}
{rdKR(0)}
{rdKM(0,0)}
{rdKM(1,0)}
""")
    for r in list(range(O, O + 16)) + list(range(P + 12, P + 16)) + list(range(VF[3], VF[3] + 4)):
        e(f"v_mov_b32 v{r}, 0")
    e(f"""s_waitcnt lgkmcnt(2)
{RM(SA)}
{rdKR(1)}
{rdV(0,0)}
s_nop 15
s_nop 1
s_waitcnt lgkmcnt(2)
{MM(SA,0)}
{rdKM(0,1)}
{rdV(1,0)}
{MM(SA,1)}
{rdKM(1,1)}
{rdV(2,0)}
s_mov_b32 s25, s26
s_nop 4
""")
    def block(b, Sc, Sn, extra=None):
        E = lambda i: f"v_exp_f32 v{Sc+i}, v{Sc+i}"
        C = lambda i: f"v_cvt_pk_bf16_f32 v{P+i}, v{Sc+2*i}, v{Sc+2*i+1}"
        Wt = "s_waitcnt lgkmcnt(6)"
        seq = [Wt, "NOP", PV(3), rdV(3, b),
               E(0), E(1), E(2), E(3), C(0),
               Wt, RM(Sn), rdKR(b + 2),
               E(4), E(5), C(1), E(6), E(7), C(2), C(3), E(8), E(9),
               Wt, PV(0), rdV(0, b + 1),
               E(10), E(11), C(4), E(12), E(13), C(5), E(14), E(15),
               Wt, MM(Sn, 0), rdKM(0, b + 2),
               C(6), C(7), E(16), E(17), E(18),
               Wt, PV(1), rdV(1, b + 1),
               E(19), C(8), E(20), E(21), C(9),
               Wt, MM(Sn, 1), rdKM(1, b + 2),
               E(22), E(23), C(10), C(11), E(24), E(25),
               Wt, PV(2), rdV(2, b + 1),
               E(26), E(27), C(12), E(28), E(29), C(13), E(30), E(31), C(14), C(15)]
        NO = os.environ.get("K2NO", "")
        for x in seq:
            if ("mfma" in NO and x.startswith("v_mfma")) or ("exp" in NO and x.startswith("v_exp")) or ("lds" in NO and x.startswith("ds_read")) \
               or ("pv" in NO and x.startswith("v_mfma") and f"{vr(O,16)}," in x) or ("rm" in NO and "2b" in x) or ("cvt" in NO and x.startswith("v_cvt")):
                continue
            if x == "NOP":
                e(extra if extra else "s_nop 0")
            else:
                e(x)
    L = "k2_loop"; LB = "k2_body"; LND = "k2_nodma"
    k.lines.append(".p2align 3")
    k.label(L)
    e(f"""s_cmp_eq_u32 s25, 10
s_cbranch_scc1 k2_pf
s_cmp_gt_u32 s25, 9
s_cbranch_scc1 {LB}
s_bitcmp0_b32 s25, 0
s_cbranch_scc1 {LND}
s_waitcnt vmcnt(0)
s_barrier""")
    k.label(LND)
    e(f"""s_cmp_gt_u32 s25, 7
s_cbranch_scc1 {LB}
{dma()}
{dma()}""")
    k.label(LB)
    if PRIO == 1:
        e("s_xor_b32 s36, s36, 1\ns_cmp_eq_u32 s36, 1\ns_cbranch_scc1 k2_p1\ns_setprio 0\ns_branch k2_p2")
        k.label("k2_p1"); e("s_setprio 1"); k.label("k2_p2")
    block(0, SA, SB)
    block(1, SB, SA)
    e(f"""v_add_u32 v{AKM}, {2*BLK}, v{AKM}
v_add_u32 v{AVT}, {2*BLK}, v{AVT}
v_add_u32 v{AKR}, {2*BLK}, v{AKR}
s_add_u32 s25, s25, 1
s_add_u32 s27, s27, 1
s_cmp_lt_u32 s27, 16
s_cbranch_scc1 {L}
s_waitcnt lgkmcnt(0)
{PV(3)}
s_nop 15
""")
    stamp(2)
    LOK = "k2_ok"; LFB = "k2_fbloop"
    MX = T
    e(f"""v_cmp_nle_f32 vcc, {f32hex(2.0**-90)}, v{O+10}
s_cmp_lg_u32 s26, {1 if os.environ.get("K2NO") else 0}
s_cbranch_scc1 {LOK}
s_cbranch_vccz {LOK}
v_mov_b32 v{QR+1}, 0
v_mov_b32 v{MX}, 0xff800000
v_mov_b32 v{AKM}, v{BKM}
v_mov_b32 v{AKR}, v{BKR}
s_mov_b32 s27, 0
""")
    k.label(LFB)
    e(f"""{rdKR(0)}
{rdKM(0,0)}
{rdKM(1,0)}
s_waitcnt lgkmcnt(0)
{RM(SA)}
s_nop 15
s_nop 3
{MM(SA,0)}
{MM(SA,1)}
v_add_u32 v{AKM}, {BLK}, v{AKM}
v_add_u32 v{AKR}, {BLK}, v{AKR}
s_nop 15
""")
    for i in range(16):
        e(f"v_max3_f32 v{MX}, v{SA+2*i}, v{SA+2*i+1}, v{MX}")
    e(f"""s_add_u32 s27, s27, 1
s_cmp_lt_u32 s27, 32
s_cbranch_scc1 {LFB}
v_mov_b32 v{MX+1}, v{MX}
s_nop 1
v_permlane32_swap_b32 v{MX}, v{MX+1}
v_max_f32 v{MX}, v{MX}, v{MX+1}
v_sub_f32 v{MX}, 0, v{MX}
v_cvt_pk_bf16_f32 v{MX+1}, v{MX}, v{MX}
v_and_b32 v{MX+1}, 0xffff0000, v{MX+1}
v_sub_f32 v{MX+2}, v{MX}, v{MX+1}
v_cvt_pk_bf16_f32 v{QR+1}, v{MX+1}, v{MX+2}
s_mov_b32 s26, 11
s_mov_b32 s27, 0
s_branch {LMAIN}
""")
    k.label("k2_pf")
    PF = int(os.environ.get("K2PF", "1"))
    if PF:
        e(f"""s_load_dwordx4 s[28:31], s[0:1], 40
s_load_dwordx2 s[32:33], s[0:1], 56
v_mul_u32_u24 v{T}, 405, v0
v_lshrrev_b32 v{T}, 16, v{T}
v_mul_u32_u24 v{T+1}, 162, v{T}
v_sub_u32 v{T+1}, v0, v{T+1}
v_mul_u32_u24 v{T+2}, 7282, v{T+1}
v_lshrrev_b32 v{T+2}, 16, v{T+2}
v_mul_u32_u24 v{T+3}, 9, v{T+2}
v_sub_u32 v{T+1}, v{T+1}, v{T+3}
s_lshr_b32 s34, s2, 3
s_mul_i32 s34, s34, 18
v_add_u32 v{T+2}, s34, v{T+2}
s_and_b32 s35, s2, 7
s_mul_i32 s34, s35, 1152
s_mul_i32 s35, s35, {576*1152}
v_mul_u32_u24 v{T+3}, 9216, v{T+2}
v_add_u32 v{T+3}, s34, v{T+3}
v_mul_u32_u24 v{T+4}, 1152, v{T+2}
v_add_u32 v{T+4}, s35, v{T+4}
v_lshl_add_u32 v{T+3}, v{T+1}, 7, v{T+3}
v_lshl_add_u32 v{T+4}, v{T+1}, 7, v{T+4}
v_cmp_eq_u32 s[34:35], 0, v{T}
v_cmp_eq_u32 s[36:37], 1, v{T}
v_cmp_eq_u32 s[38:39], 2, v{T}
s_waitcnt lgkmcnt(0)
s_mov_b64 exec, s[34:35]
s_cbranch_execz k2_pf1
global_load_dword v{T+1}, v{T+3}, s[28:29]""")
        k.label("k2_pf1")
        e(f"""s_mov_b64 exec, s[36:37]
s_cbranch_execz k2_pf2
global_load_dword v{T+1}, v{T+3}, s[30:31]""")
        k.label("k2_pf2")
        e(f"""s_mov_b64 exec, s[38:39]
s_cbranch_execz k2_pf3
global_load_dword v{T+1}, v{T+4}, s[32:33]""")
        k.label("k2_pf3")
        if int(os.environ.get("K2PF2", "1")):
            e(f"""s_mov_b64 exec, -1
s_load_dwordx2 s[30:31], s[0:1], 0
s_lshr_b32 s34, s2, 3
s_mul_i32 s35, s34, {162*128}
s_add_u32 s35, s35, {WS_WOP}
v_lshlrev_b32 v{T}, 7, v0
s_movk_i32 s36, 162
v_cmp_gt_u32 s[38:39], s36, v0
v_subrev_u32 v{T+1}, 162, v0
s_mul_i32 s34, s34, 72
v_add_u32 v{T+2}, s34, v{T+1}
v_mul_u32_u24 v{T+3}, 1821, v{T+2}
v_lshrrev_b32 v{T+3}, 20, v{T+3}
v_mul_u32_u24 v{T+4}, 576, v{T+3}
v_sub_u32 v{T+2}, v{T+2}, v{T+4}
s_and_b32 s34, s2, 7
v_lshl_add_u32 v{T+3}, v{T+3}, 3, s34
s_mov_b32 s34, 73728
v_mul_lo_u32 v{T+3}, v{T+3}, s34
v_lshl_add_u32 v{T+3}, v{T+2}, 7, v{T+3}
s_movk_i32 s36, 72
v_cmp_gt_u32 s[36:37], s36, v{T+1}
s_mov_b64 exec, s[38:39]
s_cbranch_execz k2_pf5
buffer_load_dword v{T+4}, v{T}, {W}, s35 offen""")
            k.label("k2_pf5")
            e(f"""s_waitcnt lgkmcnt(0)
s_mov_b64 exec, s[36:37]
s_cbranch_execz k2_pf6
global_load_dword v{T+4}, v{T+3}, s[30:31]""")
            k.label("k2_pf6")
        e(f"""s_mov_b64 exec, -1
s_cmp_lg_u32 s14, 7
s_cbranch_scc1 k2_pf4
s_getpc_b64 s[28:29]
s_add_u32 s28, s28, k3_kernel-.
s_addc_u32 s29, s29, 0
v_lshlrev_b32 v{T}, 7, v{LANE}
global_load_dword v{T+1}, v{T}, s[28:29]
v_add_u32 v{T}, 8192, v{T}
s_bfm_b64 exec, (k34_end-k3_kernel-8192+127)>>7, 0
global_load_dword v{T+2}, v{T}, s[28:29]
s_mov_b64 exec, -1""")
        k.label("k2_pf4")
        e(f"""s_lshr_b32 s36, s14, 2
s_and_b32 s37, s25, 1
s_xor_b32 s36, s36, s37""")
    e(f"s_branch {LB}")
    k.label(LOK)
    e(f"""v_rcp_f32 v{T}, v{O+10}
s_mul_i32 s18, s15, 36
s_add_u32 s19, s18, s12
s_lshl_b32 s19, s19, 10
s_add_u32 s19, s19, {WS_OP}
s_lshr_b32 s20, s12, 3
s_add_u32 s18, s18, s20
s_add_u32 s18, s18, 32
s_lshl_b32 s18, s18, 10
s_bfe_u32 s20, s12, 0x10002
s_lshl_b32 s20, s20, 9
s_add_u32 s18, s18, s20
s_and_b32 s20, s12, 3
s_lshl_b32 s20, s20, 2
s_add_u32 s18, s18, s20
s_add_u32 s18, s18, {WS_OP}
""")
    for i in range(10):
        e(f"v_mul_f32 v{O+i}, v{O+i}, v{T}")
    for i in range(5):
        e(f"v_cvt_pk_bf16_f32 v{P+i}, v{O+2*i}, v{O+2*i+1}")
    e(f"""buffer_store_dwordx4 {vr(P,4)}, v{L16}, {W}, s19 offen
s_mov_b32 exec_hi, 0
buffer_store_dword v{P+4}, v{L16}, {W}, s18 offen
""")
    if PROF:
        e(f"""s_waitcnt vmcnt(0)
s_memtime s[46:47]
s_memrealtime s[50:51]
s_waitcnt lgkmcnt(0)
s_sub_u32 s42, s42, s40
s_sub_u32 s44, s44, s40
s_sub_u32 s46, s46, s40
s_sub_u32 s50, s50, s48
v_mov_b32 v20, s42
v_mov_b32 v21, s44
v_mov_b32 v22, s46
v_mov_b32 v23, s50
s_lshl_b32 s18, s2, 3
s_add_u32 s18, s18, s14
s_lshl_b32 s18, s18, 4
s_add_u32 s18, s18, 0xF00000
v_mov_b32 v24, 0
s_mov_b32 exec_lo, 1
buffer_store_dwordx4 v[20:23], v24, {W}, s18 offen""")
    k.label(Lend)
    e("s_endpgm")
    return k, 144, 56
```

```python
from asmlib import *
from layout import *
import os
PROF = int(os.environ.get("PROF", "0"))
NG = 256
NP2 = 256
NFFN = 144
L_X2 = 0
L_RED = 1152
L_PART = 1280
L_ACT = 1536
L_FLAG = 1792
L_YP = 4096
L_WG, L_WU = 4096, 40960
K34_LDS = 77824
K34_GRID = NG + NP2

def stamp(k, i):
    if PROF:
        k.e(f"s_memrealtime s[{80+2*i}:{81+2*i}]")
def dump(k, n):
    if PROF:
        k.e("s_waitcnt lgkmcnt(0)")
        k.e("s_mov_b64 exec, 1")
        k.e(f"s_lshl_b32 s78, s2, 7\ns_lshl_b32 s79, s22, 5\ns_add_u32 s78, s78, s79\ns_add_u32 s78, s78, 0xF20000\nv_mov_b32 v254, 0")
        for i in range(n):
            k.e(f"v_mov_b32 v255, s{80+2*i}\nbuffer_store_dword v255, v254, s[8:11], s78 offen offset:{4*i}")

def gen_gemm(k):
    e = k.e
    WSR, XR, WRR = 8, 12, 16
    LANE, M, HALF, L16 = 1, 2, 3, 4
    T = 5
    FR = 32
    ACC = 172
    e(f"""s_setprio 2
s_load_dwordx2 s[6:7], s[0:1], 0
s_load_dwordx2 s[20:21], s[0:1], 32
v_and_b32 v{M}, 31, v0
v_bfe_u32 v{HALF}, v0, 5, 1
v_lshlrev_b32 v{L16}, 4, v{LANE}
s_and_b32 s23, s2, 31
s_lshr_b32 s24, s2, 5
s_mul_i32 s25, s23, {2*36*1024}
s_mul_i32 s26, s22, {9*1024}
s_add_u32 s25, s25, s26
s_add_u32 s25, s25, {WS_OP}
s_mul_i32 s27, s24, {2*36*1024}
s_add_u32 s27, s27, s26
s_add_u32 s27, s27, {WS_WOP}
s_add_u32 s28, s25, {36*1024}
s_add_u32 s29, s27, {36*1024}
s_bfe_u32 s40, s24, 0x10001
s_add_u32 s40, s40, 16
s_mul_i32 s41, s40, {36*1024}
s_add_u32 s41, s41, s26
s_add_u32 s41, s41, {WS_WOP}
s_and_b32 s42, s24, 1
s_lshr_b32 s43, s24, 2
""")
    if os.environ.get("GOFF"):
        e("s_branch k3_noextra")
    e("""s_cmp_eq_u32 s42, 1
s_cselect_b32 s44, s28, s25
s_cselect_b32 s28, s25, s28
s_mov_b32 s25, s44""")
    W = f"s[{WSR}:{WSR+3}]"
    def loads(ks):
        b = FR + 20 * (ks % 7)
        off = (ks % 4) * 1024
        if ks and ks % 4 == 0:
            e("s_add_u32 s25, s25, 4096\ns_add_u32 s27, s27, 4096\ns_add_u32 s28, s28, 4096\ns_add_u32 s29, s29, 4096\ns_add_u32 s41, s41, 4096")
        e(f"""buffer_load_dwordx4 {vr(b,4)}, v{L16}, {W}, s25 offen offset:{off}
buffer_load_dwordx4 {vr(b+8,4)}, v{L16}, {W}, s27 offen offset:{off}
buffer_load_dwordx4 {vr(b+4,4)}, v{L16}, {W}, s28 offen offset:{off}
buffer_load_dwordx4 {vr(b+12,4)}, v{L16}, {W}, s29 offen offset:{off}
buffer_load_dwordx4 {vr(b+16,4)}, v{L16}, {W}, s41 offen offset:{off}""")
    for ks in range(7): loads(ks)
    e("s_waitcnt lgkmcnt(0)")
    srd(k, XR, 6, S * D * 2)
    srd(k, WRR, 20, D * 2)
    TK, FQ = 2, 3
    WADR, RADR, GOFF_, WOFF_ = 5, 6, 7, 31
    e(f"""v_and_b32 v{T+2}, 15, v{M}
v_lshlrev_b32 v{WADR}, 1, v{HALF}
v_xor_b32 v{WADR}, v{WADR}, v{T+2}
v_lshlrev_b32 v{WADR}, 4, v{WADR}
v_lshl_add_u32 v{WADR}, v{M}, 8, v{WADR}
s_lshl_b32 s36, s22, 14
v_add_u32 v{WADR}, s36, v{WADR}
v_lshlrev_b32 v30, 6, v{M}
v_lshl_add_u32 v30, v{HALF}, 5, v30
s_lshl_b32 s36, s22, 11
v_add_u32 v30, s36, v30
v_lshrrev_b32 v{TK}, 2, v{LANE}
v_and_b32 v{FQ}, 3, v{LANE}
v_lshlrev_b32 v{RADR}, 2, v{FQ}
v_xor_b32 v{RADR}, v{RADR}, v{TK}
v_lshlrev_b32 v{RADR}, 4, v{RADR}
v_lshl_add_u32 v{RADR}, v{TK}, 8, v{RADR}
s_lshl_b32 s36, s22, 12
v_add_u32 v{RADR}, s36, v{RADR}
v_mul_u32_u24 v{GOFF_}, 1152, v{TK}
v_lshl_add_u32 v29, v{FQ}, 3, v{GOFF_}
v_lshl_add_u32 v{GOFF_}, v{FQ}, 5, v{GOFF_}
v_lshlrev_b32 v{WOFF_}, 5, v{FQ}
v_lshlrev_b32 v28, 3, v{FQ}
s_lshr_b32 s30, s22, 1
s_xor_b32 s31, s30, s42
s_lshl_b32 s32, s23, 1
s_add_u32 s32, s32, s31
s_lshl_b32 s32, s32, 5
s_and_b32 s31, s22, 1
s_lshl_b32 s31, s31, 4
s_add_u32 s32, s32, s31
s_mul_i32 s34, s32, 1152
s_lshl_b32 s35, s24, 7
s_lshl_b32 s47, s40, 6
s_lshl_b32 s46, s43, 5
s_add_u32 s47, s47, s46
s_cmp_eq_u32 s30, 0
s_cselect_b32 s47, s47, {HUGE}
s_add_u32 s46, s34, s47
s_add_u32 s34, s34, s35
""")
    XV, WV, XE, WE = 8, 16, 24, 26
    acc = lambda a, b: ACC + 32 * a + 16 * b
    AE = ACC + 64
    nload = 35
    for ks in range(9):
        b = FR + 20 * (ks % 7)
        e(f"s_waitcnt vmcnt({nload - 5*(ks+1)})")
        for a in range(2):
            for n in range(2):
                c = vr(acc(a, n), 16) if ks else "0"
                e(f"v_mfma_f32_32x32x16_bf16 {vr(acc(a,n),16)}, {vr(b+8+4*n,4)}, {vr(b+4*a,4)}, {c}")
        c = vr(AE, 16) if ks else "0"
        e(f"v_mfma_f32_32x32x16_bf16 {vr(AE,16)}, {vr(b+16,4)}, {vr(b,4)}, {c}")
        if ks < 2:
            loads(ks + 7); nload += 5
        if ks == 1:
            e(f"""buffer_load_dwordx4 {vr(XV,4)}, v{GOFF_}, s[{XR}:{XR+3}], s34 offen
buffer_load_dwordx4 {vr(XV+4,4)}, v{GOFF_}, s[{XR}:{XR+3}], s34 offen offset:16
buffer_load_dwordx4 {vr(WV,4)}, v{WOFF_}, s[{WRR}:{WRR+3}], s35 offen
buffer_load_dwordx4 {vr(WV+4,4)}, v{WOFF_}, s[{WRR}:{WRR+3}], s35 offen offset:16
buffer_load_dwordx2 {vr(XE,2)}, v29, s[{XR}:{XR+3}], s46 offen
buffer_load_dwordx2 {vr(WE,2)}, v28, s[{WRR}:{WRR+3}], s47 offen""")
            nload += 6
    stamp(k, 1)
    WX = 32
    for i, cx in enumerate([1, 4, 5, 8, 9, 12, 13]):
        e(f"v_xor_b32 v{WX+i}, {cx*16}, v{WADR}")
    adr = {0: WADR, 1: WX, 4: WX+1, 5: WX+2, 8: WX+3, 9: WX+4, 12: WX+5, 13: WX+6}
    e("s_nop 4")
    for a in range(2):
        for n in range(2):
            for q in range(4):
                cx = n * 8 + (q >> 1) * 4 + (q & 1)
                e(f"ds_write_b128 v{adr[cx]}, {vr(acc(a,n)+4*q,4)} offset:{a*8192}")
    e(f"""v_add_u32 v30, 0x10000, v30
s_cmp_eq_u32 s43, 0
s_cbranch_scc1 k3_e0
ds_write_b128 v30, {vr(AE+8,4)}
ds_write_b128 v30, {vr(AE+12,4)} offset:16
s_branch k3_e1""")
    k.label("k3_e0")
    e(f"""ds_write_b128 v30, {vr(AE,4)}
ds_write_b128 v30, {vr(AE+4,4)} offset:16""")
    k.label("k3_e1")
    PT = 64
    XF, WF = 160, 180
    e(f"""v_xor_b32 v{WX}, 16, v{RADR}
v_xor_b32 v{WX+1}, 32, v{RADR}
v_xor_b32 v{WX+2}, 48, v{RADR}
s_and_b32 s36, s22, 1
s_lshl_b32 s36, s36, 10
s_add_u32 s36, s36, 0x10000
v_lshlrev_b32 v{WX+3}, 4, v{LANE}
v_add_u32 v{WX+3}, s36, v{WX+3}
s_waitcnt vmcnt(0)""")
    xs = [XV + i for i in range(8)] + [XE, XE + 1]
    ws_ = [WV + i for i in range(8)] + [WE, WE + 1]
    for i in range(10):
        e(f"""v_lshlrev_b32 v{XF+2*i}, 16, v{xs[i]}
v_and_b32 v{XF+2*i+1}, 0xffff0000, v{xs[i]}
v_lshlrev_b32 v{WF+2*i}, 16, v{ws_[i]}
v_and_b32 v{WF+2*i+1}, 0xffff0000, v{ws_[i]}""")
    e("s_waitcnt lgkmcnt(0)\ns_barrier")
    radr = [RADR, WX, WX + 1, WX + 2]
    for src in range(4):
        for i in range(4):
            e(f"ds_read_b128 {vr(PT+20*src+4*i,4)}, v{radr[i]} offset:{src*16384}")
        e(f"ds_read_b128 {vr(PT+20*src+16,4)}, v{WX+3} offset:{src*2048}")
    OWN = PT
    pk = lambda d, a, b: f"v_pk_add_f32 {vr(d,2)}, {vr(a,2)}, {vr(b,2)}"
    e("s_waitcnt lgkmcnt(10)")
    for r in range(0, 20, 2):
        e(pk(PT+r, PT+r, PT+20+r))
    e("s_waitcnt lgkmcnt(0)")
    for r in range(0, 20, 2):
        e(pk(PT+40+r, PT+40+r, PT+60+r))
    for r in range(0, 20, 2):
        e(pk(PT+r, PT+r, PT+40+r))
    HP = 144
    for i in range(10):
        e(f"v_cvt_pk_bf16_f32 v{HP+i}, v{OWN+2*i}, v{OWN+2*i+1}")
    for i in range(10):
        e(f"""v_lshlrev_b32 v{OWN+2*i}, 16, v{HP+i}
v_and_b32 v{OWN+2*i+1}, 0xffff0000, v{HP+i}""")
    for r in range(0, 20, 2):
        e(pk(OWN+r, OWN+r, XF+r))
    for i in range(10):
        e(f"v_cvt_pk_bf16_f32 v{HP+i}, v{OWN+2*i}, v{OWN+2*i+1}")
    e(f"""s_add_u32 s34, s34, {WS_H}
s_add_u32 s46, s46, {WS_H}
buffer_store_dwordx4 {vr(HP,4)}, v{GOFF_}, {W}, s34 offen sc1
buffer_store_dwordx4 {vr(HP+4,4)}, v{GOFF_}, {W}, s34 offen offset:16 sc1
buffer_store_dwordx2 {vr(HP+8,2)}, v29, {W}, s46 offen sc1
s_cmp_eq_u32 s30, 0
s_cselect_b32 s36, -1, 0""")
    for i in range(10):
        e(f"""v_lshlrev_b32 v{OWN+2*i}, 16, v{HP+i}
v_and_b32 v{OWN+2*i+1}, 0xffff0000, v{HP+i}""")
    for r in range(16, 20):
        e(f"v_and_b32 v{OWN+r}, s36, v{OWN+r}")
    S0, S1, S2 = 100, 102, 104
    e(f"""{pk(S0, OWN, OWN+2)}
v_pk_mul_f32 {vr(S1,2)}, {vr(OWN,2)}, {vr(OWN,2)}
v_pk_mul_f32 {vr(S2,2)}, {vr(OWN,2)}, {vr(WF,2)}""")
    for r in range(2, 20, 2):
        if r >= 4:
            e(pk(S0, S0, OWN+r))
        e(f"""v_pk_fma_f32 {vr(S1,2)}, {vr(OWN+r,2)}, {vr(OWN+r,2)}, {vr(S1,2)}
v_pk_fma_f32 {vr(S2,2)}, {vr(OWN+r,2)}, {vr(WF+r,2)}, {vr(S2,2)}""")
    e(f"""v_add_f32 v{S0}, v{S0}, v{S0+1}
v_add_f32 v{S1}, v{S1}, v{S1+1}
v_add_f32 v{S2}, v{S2}, v{S2+1}
s_lshl_b32 s36, s32, 2
s_add_u32 s36, s36, {WS_ST}
v_add_f32_dpp v{S0}, v{S0}, v{S0} quad_perm:[1,0,3,2] row_mask:0xf bank_mask:0xf
v_add_f32_dpp v{S1}, v{S1}, v{S1} quad_perm:[1,0,3,2] row_mask:0xf bank_mask:0xf
v_add_f32_dpp v{S2}, v{S2}, v{S2} quad_perm:[1,0,3,2] row_mask:0xf bank_mask:0xf
v_cmp_eq_u32 s[48:49], 1, v{FQ}
v_add_f32_dpp v{S0}, v{S0}, v{S0} quad_perm:[2,3,0,1] row_mask:0xf bank_mask:0xf
v_add_f32_dpp v{S1}, v{S1}, v{S1} quad_perm:[2,3,0,1] row_mask:0xf bank_mask:0xf
v_add_f32_dpp v{S2}, v{S2}, v{S2} quad_perm:[2,3,0,1] row_mask:0xf bank_mask:0xf
v_cmp_eq_u32 s[50:51], 2, v{FQ}
v_cmp_gt_u32 s[52:53], 3, v{FQ}
v_lshlrev_b32 v{WX}, 2, v{TK}
v_lshl_add_u32 v{WX}, v{FQ}, 13, v{WX}
v_cndmask_b32 v{S0}, v{S0}, v{S1}, s[48:49]
v_cndmask_b32 v{S0}, v{S0}, v{S2}, s[50:51]
s_mov_b64 exec, s[52:53]
buffer_atomic_add_f32 v{S0}, v{WX}, {W}, s36 offen
s_mov_b64 exec, -1""")
    k.label("k3_noextra")
    GFLAG = int(os.environ.get("GFLAG","0"))
    e(f"""{"s_lshl_b32 s36, s2, 2" if GFLAG else "s_bfe_u32 s36, s2, 0x30003"}
{"" if GFLAG else "s_lshl_b32 s36, s36, 7"}
s_add_u32 s36, s36, {WS_CNTG}
v_lshlrev_b32 v{T+2}, 10, v{LANE}
v_mov_b32 v{T+1}, 1""")
    stamp(k, 2)
    e(f"""s_waitcnt vmcnt(0)
s_barrier""")
    stamp(k, 3)
    e(f"""s_cmp_lg_u32 s22, 0
s_cbranch_scc1 k34_end
s_mov_b64 exec, 0xff
{"buffer_store_dword" if GFLAG else "buffer_atomic_add"} v{T+1}, v{T+2}, {W}, s36 offen{" sc1" if GFLAG else ""}""")
    dump(k, 4)
    e("s_endpgm")

def gen_p2(k):
    e = k.e
    WSR, GR, UR, DR, OUTR = 8, 12, 16, 24, 28
    W = f"s[{WSR}:{WSR+3}]"
    LANE, T = 1, 2
    ST = 16
    HR = 40
    RS_ = 56
    HS = 60
    SS = 64
    WD = 72
    WDF = 152
    Lend = "k34_end"
    INV = f32hex(1.0 / 576); EPS = f32hex(1e-5)
    e(f"""s_load_dwordx4 s[32:35], s[0:1], 40
s_load_dwordx4 s[36:39], s[0:1], 56
s_sub_u32 s23, s2, {NG}
v_lshlrev_b32 v{T+1}, 4, v0
v_lshlrev_b32 v{T+2}, 4, v{LANE}
v_cmp_gt_u32 s[40:41], 8, v{LANE}
v_add_u32 v{T+3}, 1024, v{T+2}
v_mov_b32 v{T+4}, {HUGE}
s_add_u32 s46, s4, {WS_WSUM}
s_addc_u32 s47, s5, 0
s_load_dword s48, s[46:47], 0
v_cndmask_b32 v{T+3}, v{T+4}, v{T+3}, s[40:41]
s_mov_b32 s42, 72
v_cmp_gt_u32 s[40:41], s42, v0
s_waitcnt lgkmcnt(0)
s_nop 0
v_cndmask_b32 v{T+13}, v{T+4}, v{T+1}, s[40:41]
""")
    srd(k, GR, 32, D * F * 2)
    srd(k, UR, 34, D * F * 2)
    srd(k, DR, 36, D * F * 2)
    srd(k, OUTR, 38, S * D * 2)
    LNOD = "p2_nodma"
    e(f"""s_cmp_ge_u32 s23, {NFFN}
s_cbranch_scc1 {LNOD}
v_mul_u32_u24 v{T+5}, 911, v0
v_lshrrev_b32 v{T+5}, 16, v{T+5}
v_mul_u32_u24 v{T+6}, 72, v{T+5}
v_sub_u32 v{T+6}, v0, v{T+6}
v_mul_u32_u24 v{T+7}, 1152, v{T+5}
v_lshl_add_u32 v{T+7}, v{T+6}, 4, v{T+7}
s_mov_b32 s42, 216
v_cmp_gt_u32 s[40:41], s42, v0
s_and_b32 s59, s23, 7
s_mul_i32 s59, s59, 18
s_lshr_b32 s52, s23, 3
s_add_u32 s59, s59, s52
s_mul_i32 s52, s59, 36864
s_nop 0
v_cndmask_b32 v{T+7}, v{T+4}, v{T+7}, s[40:41]
""")
    for i in range(11):
        e(f"buffer_load_dwordx4 {vr(WD+4*i,4)}, v{T+7}, s[{DR}:{DR+3}], s52 offen")
        if i < 10: e(f"s_add_u32 s52, s52, {3*1152}")
    e(f"""v_lshrrev_b32 v{T+4}, 2, v{LANE}
v_mul_u32_u24 v{T+4}, 9216, v{T+4}
v_and_b32 v{T+8}, 3, v{LANE}
v_lshl_add_u32 v{T+4}, v{T+8}, 4, v{T+4}
s_sub_u32 s53, s22, 2
s_mul_i32 s50, s53, {16*9216}
s_lshl_b32 s51, s59, 6
s_add_u32 s50, s50, s51
s_lshl_b32 s51, s53, 10
s_mov_b32 s53, 0
""")
    e("s_waitcnt vmcnt(0)")
    for i in range(44):
        e(f"""v_lshlrev_b32 v{WDF+2*i}, 16, v{WD+i}
v_and_b32 v{WDF+2*i+1}, 0xffff0000, v{WD+i}""")
    k.label(LNOD)
    stamp(k, 1)
    GFLAG = int(os.environ.get("GFLAG","0"))
    def poll(tag, thr):
        e(f"""s_cmp_lg_u32 s22, 0
s_cbranch_scc1 p2_polled{tag}
v_lshlrev_b32 v{T+8}, 7, v{LANE}
s_and_b32 s49, s23, 7
s_lshl_b32 s49, s49, 10
s_add_u32 s49, s49, {WS_CNTG}
s_mov_b32 s54, 0
{"" if GFLAG else "s_mov_b64 exec, 0xff"}""")
        k.label(f"p2_poll{tag}")
        if GFLAG:
            e(f"""buffer_load_dwordx4 v[116:119], v{T+2}, {W}, s49 offen sc1
s_waitcnt vmcnt(0)
v_and_b32 v116, v116, v117
v_and_b32 v118, v118, v119
v_and_b32 v116, v116, v118
v_cmp_ne_u32 vcc, 1, v116""")
        else:
            e(f"""buffer_load_dword v{T+9}, v{T+8}, {W}, s49 offen sc1
s_waitcnt vmcnt(0)
v_cmp_gt_u32 vcc, {thr}, v{T+9}""")
        e(f"""s_add_u32 s54, s54, 1
s_cmp_gt_u32 s54, 0x100000
s_cbranch_vccz p2_pdone{tag}
s_cbranch_scc1 p2_pdone{tag}
s_cmp_ge_u32 s23, {NFFN}
s_cbranch_scc1 p2_slow{tag}
v_cmp_lt_u32 vcc, {int(os.environ.get("P2TH","16"))}, v{T+9}
s_sleep {int(os.environ.get("P2FAST","5"))}
s_cbranch_vccnz p2_poll{tag}
s_sleep {int(os.environ.get("P2SLEEP","12"))}
s_branch p2_poll{tag}""")
        k.label(f"p2_slow{tag}")
        e(f"""s_sleep 48
s_branch p2_poll{tag}""")
        k.label(f"p2_pdone{tag}")
        e("s_mov_b64 exec, -1")
        k.label(f"p2_polled{tag}")
    poll("b", NG // 8)
    e(f"""v_mov_b32 v{T+9}, 0
v_mov_b32 v116, 0
v_mov_b32 v117, 0
v_mov_b32 v118, 0
v_mov_b32 v119, 0
ds_write_b128 v{T+9}, v[116:119] offset:{L_RED}
s_waitcnt lgkmcnt(0)
s_barrier""")
    stamp(k, 2)
    ST2 = 72
    e(f"""s_cmp_ge_u32 s22, 2
s_cbranch_scc1 p2_nost
v_lshlrev_b32 v{T+8}, 6, v0
s_mov_b32 s41, {WS_ST}""")
    for st in range(3):
        for q in range(4):
            e(f"buffer_load_dwordx4 {vr(ST2+16*st+4*q,4)}, v{T+8}, {W}, s41 offen offset:{16*q} sc1")
        if st < 2: e("s_add_u32 s41, s41, 8192")
    e("s_branch p2_skipdma")
    k.label("p2_nost")
    e(f"""s_cmp_ge_u32 s23, {NFFN}
s_cbranch_scc1 p2_skipdma""")
    k.label("p2_dma")
    e(f"""s_add_u32 m0, s51, {L_WG}
s_add_u32 s53, s53, 1
buffer_load_dwordx4 v{T+4}, s[{GR}:{GR+3}], s50 offen lds
s_add_u32 m0, s51, {L_WU}
s_add_u32 s51, s51, 2048
buffer_load_dwordx4 v{T+4}, s[{UR}:{UR+3}], s50 offen lds
s_add_u32 s50, s50, {2*16*9216}
s_cmp_lt_u32 s53, 18
s_cbranch_scc1 p2_dma""")
    k.label("p2_skipdma")
    e(f"""s_lshl_b32 s42, s23, 3
s_lshl_b32 s43, s22, 1
s_add_u32 s42, s42, s43
s_mul_i32 s43, s42, 1152
s_add_u32 s44, s43, {WS_H}
s_lshl_b32 s45, s42, 2
s_add_u32 s45, s45, {WS_ST}
buffer_load_dwordx4 {vr(HR,4)}, v{T+2}, {W}, s44 offen sc1
buffer_load_dwordx4 {vr(HR+4,4)}, v{T+3}, {W}, s44 offen sc1
buffer_load_dwordx4 {vr(HR+8,4)}, v{T+2}, {W}, s44 offen offset:1152 sc1
buffer_load_dwordx4 {vr(HR+12,4)}, v{T+3}, {W}, s44 offen offset:1152 sc1
buffer_load_dwordx2 {vr(RS_,2)}, v{T+9}, {W}, s45 offen sc1
s_add_u32 s45, s45, 8192
buffer_load_dwordx2 {vr(RS_+2,2)}, v{T+9}, {W}, s45 offen sc1
s_cmp_ge_u32 s22, 2
s_cbranch_scc1 p2_noam
v_lshlrev_b32 v{T+10}, 4, v0
v_sub_u32 v{T+10}, 2047, v{T+10}
s_waitcnt vmcnt(6)
""")
    KEY = 16
    for i in range(16):
        a_, b_, c_ = 120 + 3 * (i % 4), 121 + 3 * (i % 4), 122 + 3 * (i % 4)
        e(f"""v_mul_f32 v{a_}, {INV}, v{ST2+i}
v_mul_f32 v{b_}, {INV}, v{ST2+16+i}
v_fma_f32 v{b_}, -v{a_}, v{a_}, v{b_}
v_max_f32 v{b_}, 0, v{b_}
v_add_f32 v{b_}, {EPS}, v{b_}
v_rsq_f32 v{b_}, v{b_}
v_fma_f32 v{a_}, -v{a_}, s48, v{ST2+32+i}
v_mul_f32 v{a_}, v{a_}, v{b_}
v_ashrrev_i32 v{c_}, 31, v{a_}
v_or_b32 v{c_}, 0x80000000, v{c_}
v_xor_b32 v{a_}, v{a_}, v{c_}
v_and_b32 v{a_}, 0xfffff800, v{a_}
v_subrev_u32 v{c_}, {i}, v{T+10}
v_or_b32 v{KEY+i}, v{a_}, v{c_}""")
    for i in range(5):
        e(f"v_max3_u32 v{KEY+3*i}, v{KEY+3*i}, v{KEY+3*i+1}, v{KEY+3*i+2}")
    e(f"""v_max3_u32 v{KEY}, v{KEY}, v{KEY+3}, v{KEY+6}
v_max3_u32 v{KEY+9}, v{KEY+9}, v{KEY+12}, v{KEY+15}
v_max_u32 v{KEY}, v{KEY}, v{KEY+9}
s_lshl_b32 s49, s22, 3
v_mov_b32 v{T+11}, s49
v_max_u32_dpp v{KEY}, v{KEY}, v{KEY} row_shr:1 row_mask:0xf bank_mask:0xf
v_xor_b32 v{T+12}, 8, v{T+11}
v_mov_b32 v{KEY+1}, 1
v_max_u32_dpp v{KEY}, v{KEY}, v{KEY} row_shr:2 row_mask:0xf bank_mask:0xf
s_nop 1
v_max_u32_dpp v{KEY}, v{KEY}, v{KEY} row_shr:4 row_mask:0xf bank_mask:0xf
s_nop 1
v_max_u32_dpp v{KEY}, v{KEY}, v{KEY} row_shr:8 row_mask:0xf bank_mask:0xf
s_nop 1
v_max_u32_dpp v{KEY}, v{KEY}, v{KEY} row_bcast:15 row_mask:0xa bank_mask:0xf
s_nop 1
v_max_u32_dpp v{KEY}, v{KEY}, v{KEY} row_bcast:31 row_mask:0xc bank_mask:0xf
s_mov_b32 exec_lo, 0
s_mov_b32 exec_hi, 0x80000000
ds_write_b64 v{T+11}, v[{KEY}:{KEY+1}] offset:{L_RED}
s_mov_b64 exec, -1
v_readlane_b32 s53, v{KEY}, 63""")
    k.label("p2_spin")
    e(f"""ds_read_b64 v[116:117], v{T+12} offset:{L_RED}
s_waitcnt lgkmcnt(0)
v_readfirstlane_b32 s54, v117
v_readfirstlane_b32 s55, v116
s_nop 1
s_cmp_eq_u32 s54, 0
s_cbranch_scc1 p2_spin
s_max_u32 s53, s53, s55
s_and_b32 s53, s53, 0x7ff
s_sub_u32 s53, 2047, s53
s_sub_u32 s55, s23, {NFFN}
s_cmp_lt_u32 s55, {NP2-1-NFFN}
s_cbranch_scc1 p2_noam
s_mul_i32 s54, s53, 1152
s_add_u32 s55, s54, {WS_H}
s_lshl_b32 s56, s53, 2
s_add_u32 s56, s56, {WS_ST}
buffer_load_dwordx4 {vr(HS,4)}, v{T+13}, {W}, s55 offen sc1
buffer_load_dword v{SS}, v{T+9}, {W}, s56 offen sc1
s_add_u32 s56, s56, 8192
buffer_load_dword v{SS+1}, v{T+9}, {W}, s56 offen sc1
s_add_u32 s56, s56, 8192
buffer_load_dword v{SS+2}, v{T+9}, {W}, s56 offen sc1
""")
    stamp(k, 3)
    def lnparams(vsum, vsq, mb, rs):
        e(f"""v_mul_f32 v{mb}, {INV}, v{vsum}
v_mul_f32 v{rs}, {INV}, v{vsq}
v_fma_f32 v{rs}, -v{mb}, v{mb}, v{rs}
v_max_f32 v{rs}, 0, v{rs}
v_cvt_pk_bf16_f32 v{mb}, v{mb}, v{mb}
v_cvt_pk_bf16_f32 v{rs}, v{rs}, v{rs}
v_and_b32 v{mb}, 0xffff0000, v{mb}
v_and_b32 v{rs}, 0xffff0000, v{rs}
v_add_f32 v{rs}, {EPS}, v{rs}
v_cvt_pk_bf16_f32 v{rs}, v{rs}, v{rs}
v_and_b32 v{rs}, 0xffff0000, v{rs}
v_sqrt_f32 v{rs}, v{rs}
s_nop 0
v_cvt_pk_bf16_f32 v{rs}, v{rs}, v{rs}
v_and_b32 v{rs}, 0xffff0000, v{rs}
v_rcp_f32 v{rs}, v{rs}
s_nop 0""")
    D0 = 132
    def ln_chunk(src, n, mb, rs, hf, x2p):
        for i in range(n):
            e(f"""v_lshlrev_b32 v{hf+2*i}, 16, v{src+i}
v_and_b32 v{hf+2*i+1}, 0xffff0000, v{src+i}""")
        for i in range(2 * n):
            e(f"v_sub_f32 v{D0+i}, v{hf+i}, v{mb}")
        for i in range(n):
            e(f"v_cvt_pk_bf16_f32 v{x2p+i}, v{D0+2*i}, v{D0+2*i+1}")
        for i in range(n):
            e(f"""v_lshlrev_b32 v{D0+2*i}, 16, v{x2p+i}
v_and_b32 v{D0+2*i+1}, 0xffff0000, v{x2p+i}""")
        for i in range(2 * n):
            e(f"v_mul_f32 v{D0+i}, v{D0+i}, v{rs}")
        for i in range(n):
            e(f"v_cvt_pk_bf16_f32 v{x2p+i}, v{D0+2*i}, v{D0+2*i+1}")
    MB, RS = 67, 68
    HF, X2P = 16, 32
    def erow(r):
        lnparams(RS_ + r, RS_ + 2 + r, MB, RS)
        ln_chunk(HR + 8 * r, 8, MB, RS, HF, X2P)
        for i in range(8):
            e(f"""v_lshlrev_b32 v{D0+2*i}, 16, v{X2P+i}
v_and_b32 v{D0+2*i+1}, 0xffff0000, v{X2P+i}""")
        for i in range(16):
            e(f"v_add_f32 v{D0+i}, v{D0+i}, v{HF+i}")
        for i in range(8):
            e(f"v_cvt_pk_bf16_f32 v{HR+8*r+i}, v{D0+2*i}, v{D0+2*i+1}")
        e(f"""s_add_u32 s57, s42, {r}
s_add_u32 s58, s43, {1152*r}
s_cmp_eq_u32 s57, s53
s_cselect_b32 s58, {HUGE}, s58
buffer_store_dwordx4 {vr(HR+8*r,4)}, v{T+2}, s[{OUTR}:{OUTR+3}], s58 offen
buffer_store_dwordx4 {vr(HR+8*r+4,4)}, v{T+3}, s[{OUTR}:{OUTR+3}], s58 offen""")
    SMB, SRS = 69, 70
    SHF, SX2 = 116, 124
    e("s_waitcnt vmcnt(0)")
    lnparams(SS, SS + 1, SMB, SRS)
    ln_chunk(HS, 4, SMB, SRS, SHF, SX2)
    e(f"""v_cmp_gt_u32 vcc, 72, v0
s_and_saveexec_b64 s[62:63], vcc
ds_write_b128 v{T+1}, {vr(SX2,4)} offset:{L_X2}
s_mov_b64 exec, s[62:63]""")
    k.label("p2_noam")
    e(f"""s_waitcnt vmcnt(0) lgkmcnt(0)
s_barrier
s_cmp_lt_u32 s22, 2
s_cbranch_scc1 p2_haveidx
ds_read_b128 v[132:135], v{T+9} offset:{L_RED}
s_waitcnt lgkmcnt(0)
v_max_u32 v132, v132, v134
s_nop 0
v_readfirstlane_b32 s53, v132
s_nop 1
s_and_b32 s53, s53, 0x7ff
s_sub_u32 s53, 2047, s53""")
    k.label("p2_haveidx")
    e(f"""s_cmp_lt_u32 s23, {NFFN}
s_cbranch_scc1 p2_ffn""")
    erow(0)
    erow(1)
    e(f"""s_cmp_eq_u32 s23, {NP2-1}
s_cbranch_scc0 {Lend}
s_cmp_lt_u32 s22, 2
s_cbranch_scc1 p2_final
s_endpgm""")
    k.label("p2_ffn")
    G_, A9, A10 = T + 8, T + 11, T + 12
    e(f"""v_lshrrev_b32 v{G_}, 4, v{LANE}
v_bfe_u32 v{A9}, v{LANE}, 2, 2
v_lshl_add_u32 v{A9}, v{G_}, 3, v{A9}
v_and_b32 v{A10}, 3, v{LANE}
v_lshlrev_b32 v{A10}, 3, v{A10}
v_lshl_add_u32 v{A9}, v{A9}, 6, v{A10}
s_and_b32 s61, s22, 1
s_lshl_b32 s61, s61, 5
s_lshr_b32 s64, s22, 1
s_mul_i32 s64, s64, {L_WU-L_WG}
s_add_u32 s61, s61, s64
s_add_u32 s61, s61, {L_WG}
v_add_u32 v{A9}, s61, v{A9}
v_lshlrev_b32 v{A10}, 4, v{G_}
""")
    stamp(k, 4)
    AF, BF, ACC = 16, 72, 128
    def rd(ks):
        sl = ks % 6
        e(f"""ds_read_b128 {vr(AF+4*sl,4)}, v{A10} offset:{L_X2+ks*64}
ds_read_b64_tr_b16 {vr(BF+4*sl,2)}, v{A9} offset:{ks*32*64}
ds_read_b64_tr_b16 {vr(BF+4*sl+2,2)}, v{A9} offset:{ks*32*64+4*64}""")
    for ks in range(5): rd(ks)
    for ks in range(18):
        sl = ks % 6
        nleft = min(4, 17 - ks)
        e(f"s_waitcnt lgkmcnt({3*nleft})")
        c = vr(ACC, 4) if ks else "0"
        e(f"v_mfma_f32_16x16x32_bf16 {vr(ACC,4)}, {vr(AF+4*sl,4)}, {vr(BF+4*sl,4)}, {c}")
        if ks + 5 < 18: rd(ks + 5)
    e(f"""s_lshl_b32 s65, s22, 6
v_and_b32 v{A9}, 15, v{LANE}
v_lshl_add_u32 v{A9}, v{A9}, 2, s65
v_and_b32 v{A10}, 31, v{LANE}
v_lshlrev_b32 v{A10}, 2, v{A10}
v_lshlrev_b32 v{T+7}, 2, v{T+5}
s_nop 3
ds_write_b32 v{A9}, v{ACC} offset:{L_PART}
s_waitcnt lgkmcnt(0)
s_barrier
ds_read_b32 v132, v{A10} offset:{L_PART}
ds_read_b32 v134, v{A10} offset:{L_PART+128}
s_waitcnt lgkmcnt(0)
v_cvt_pk_bf16_f32 v132, v132, v134
v_lshlrev_b32 v133, 16, v132
v_and_b32 v134, 0xffff0000, v132
v_mul_f32 v135, {f32hex(-1.4426950408889634)}, v133
v_exp_f32 v135, v135
s_nop 0
v_add_f32 v135, 1.0, v135
v_rcp_f32 v135, v135
s_nop 0
v_mul_f32 v133, v133, v135
v_cvt_pk_bf16_f32 v133, v133, v133
v_and_b32 v133, 0xffff0000, v133
v_mul_f32 v133, v133, v134
v_cvt_pk_bf16_f32 v133, v133, v133
v_and_b32 v133, 0xffff0000, v133
v_cmp_gt_u32 s[62:63], 32, v{LANE}
v_lshlrev_b32 v{A9}, 2, v{LANE}
s_lshl_b32 s65, s22, 8
v_cndmask_b32 v133, 0, v133, s[62:63]
v_add_u32 v{A9}, s65, v{A9}
v_add_u32 v{T+7}, s65, v{T+7}
ds_write_b32 v{A9}, v133 offset:{L_FLAG+64}
s_waitcnt lgkmcnt(0)
""")
    AV = 16
    for i in range(11):
        e(f"ds_read_b32 v{AV+2*i}, v{T+7} offset:{L_FLAG+64+12*i}")
    YA = 136
    for i in range(11):
        e(f"s_waitcnt lgkmcnt({10-i})")
        av = AV + 2 * i
        for j in range(0, 8, 2):
            if i == 0:
                e(f"v_pk_mul_f32 {vr(YA+j,2)}, {vr(WDF+j,2)}, {vr(av,2)} op_sel_hi:[1,0]")
            else:
                e(f"v_pk_fma_f32 {vr(YA+j,2)}, {vr(WDF+8*i+j,2)}, {vr(av,2)}, {vr(YA+j,2)} op_sel_hi:[1,0,1]")
    e(f"""v_mul_u32_u24 v{A9}, 2304, v{T+5}
v_lshl_add_u32 v{A9}, v{T+6}, 5, v{A9}
v_cmp_gt_u32 vcc, 216, v0
s_and_saveexec_b64 s[62:63], vcc
ds_write_b128 v{A9}, {vr(YA,4)} offset:{L_YP}
ds_write_b128 v{A9}, {vr(YA+4,4)} offset:{L_YP+16}
s_mov_b64 exec, s[62:63]
v_lshlrev_b32 v{A10}, 2, v0
s_and_b32 s68, s23, {YREP-1}
s_mul_i32 s68, s68, 2304
s_add_u32 s68, s68, {WS_Y}
s_waitcnt lgkmcnt(0)
s_barrier
""")
    for c in range(3):
        for g in range(3):
            e(f"ds_read_b32 v{16+3*c+g}, v{A10} offset:{L_YP+g*2304+c*1024}")
    e("s_waitcnt lgkmcnt(0)")
    for c in range(3):
        e(f"v_add_f32 v{16+3*c}, v{16+3*c}, v{17+3*c}\nv_add_f32 v{16+3*c}, v{16+3*c}, v{18+3*c}")
    e(f"""buffer_atomic_add_f32 v16, v{A10}, {W}, s68 offen
buffer_atomic_add_f32 v19, v{A10}, {W}, s68 offen offset:1024
s_cmp_lg_u32 s22, 0
s_cbranch_scc1 p2_at3
buffer_atomic_add_f32 v22, v{A10}, {W}, s68 offen offset:2048""")
    k.label("p2_at3")
    stamp(k, 5)
    erow(0)
    erow(1)
    e(f"""s_waitcnt vmcnt(4)
s_barrier
s_cmp_lg_u32 s22, 0
s_cbranch_scc1 {Lend}
s_lshl_b32 s70, s23, 2
s_add_u32 s70, s70, {WS_FLG}
v_mov_b32 v{A10}, 1
s_mov_b64 exec, 1
buffer_store_dword v{A10}, v{T+9}, {W}, s70 offen sc1""")
    stamp(k, 6)
    dump(k, 7)
    e("s_endpgm")
    k.label("p2_final")
    e(f"""s_mov_b32 s70, {WS_FLG}
s_mov_b32 s71, 0
s_mov_b32 exec_lo, -1
s_mov_b32 exec_hi, 0xf""")
    k.label("p2_fpoll")
    e(f"""buffer_load_dwordx4 v[16:19], v{T+2}, {W}, s70 offen sc1
s_waitcnt vmcnt(0)
v_and_b32 v16, v16, v17
v_and_b32 v18, v18, v19
v_and_b32 v16, v16, v18
v_cmp_ne_u32 vcc, 1, v16
s_add_u32 s71, s71, 1
s_cmp_gt_u32 s71, 0x100000
s_cbranch_vccz p2_fdone
s_cbranch_scc1 p2_fdone
s_sleep 4
s_branch p2_fpoll""")
    k.label("p2_fdone")
    e(f"""s_mov_b64 exec, -1
v_lshlrev_b32 v{A9}, 1, v{T+13}
s_mov_b32 s71, {WS_Y}
""")
    YL = 152
    for r in range(YREP):
        e(f"""buffer_load_dwordx4 {vr(YL+8*r,4)}, v{A9}, {W}, s71 offen sc0 sc1
buffer_load_dwordx4 {vr(YL+8*r+4,4)}, v{A9}, {W}, s71 offen offset:16 sc0 sc1
s_add_u32 s71, s71, 2304""")
    SG = T + 8
    e(f"""v_fma_f32 v{SG}, -v{SMB}, s48, v{SS+2}
v_mul_f32 v{SG}, v{SG}, v{SRS}
v_cvt_pk_bf16_f32 v{SG}, v{SG}, v{SG}
v_and_b32 v{SG}, 0xffff0000, v{SG}
v_mul_f32 v{SG}, {f32hex(-1.4426950408889634)}, v{SG}
v_exp_f32 v{SG}, v{SG}
s_nop 0
v_add_f32 v{SG}, 1.0, v{SG}
v_rcp_f32 v{SG}, v{SG}
s_nop 0
v_cvt_pk_bf16_f32 v{SG}, v{SG}, v{SG}
v_and_b32 v{SG}, 0xffff0000, v{SG}
s_waitcnt vmcnt(0)""")
    for r in range(1, YREP):
        for i in range(8):
            e(f"v_add_f32 v{YL+i}, v{YL+i}, v{YL+8*r+i}")
    PK = 40
    def rnd(base):
        for i in range(4):
            e(f"v_cvt_pk_bf16_f32 v{PK+i}, v{base+2*i}, v{base+2*i+1}")
        for i in range(4):
            e(f"""v_lshlrev_b32 v{base+2*i}, 16, v{PK+i}
v_and_b32 v{base+2*i+1}, 0xffff0000, v{PK+i}""")
    rnd(YL)
    for i in range(8):
        e(f"v_mul_f32 v{YL+i}, v{YL+i}, v{SG}")
    rnd(YL)
    for i in range(4):
        e(f"""v_lshlrev_b32 v{YL+8+2*i}, 16, v{SX2+i}
v_and_b32 v{YL+8+2*i+1}, 0xffff0000, v{SX2+i}""")
    for i in range(8):
        e(f"v_add_f32 v{YL+i}, v{YL+i}, v{YL+8+i}")
    rnd(YL)
    for i in range(8):
        e(f"v_add_f32 v{YL+i}, v{YL+i}, v{SHF+i}")
    for i in range(4):
        e(f"v_cvt_pk_bf16_f32 v{PK+i}, v{YL+2*i}, v{YL+2*i+1}")
    e(f"buffer_store_dwordx4 {vr(PK,4)}, v{T+13}, s[{OUTR}:{OUTR+3}], s54 offen")
    if PROF:
        e("s_waitcnt vmcnt(0)")
        stamp(k, 7)
        dump(k, 8)

def gen_k34():
    k = K("k3_kernel")
    e = k.e
    e(f"""s_cmp_ge_u32 s2, {K34_GRID}
s_cbranch_scc1 k34_end
s_load_dwordx2 s[4:5], s[0:1], 80
v_lshrrev_b32 v5, 6, v0
v_and_b32 v1, 63, v0
v_readfirstlane_b32 s22, v5""")
    stamp(k, 0)
    e("s_waitcnt lgkmcnt(0)")
    srd(k, 8, 4, WS_SIZE)
    e(f"""s_cmp_ge_u32 s2, {NG}
s_cbranch_scc1 k34_p2""")
    gen_gemm(k)
    k.label("k34_p2")
    gen_p2(k)
    k.label("k34_end")
    e("s_endpgm")
    return k, 256, 100
```

```python
from asmlib import *
from layout import *
import os
PROF = int(os.environ.get("PROF", "0"))
STATPK = int(os.environ.get("STATPK", "1"))

def gen_k1():
    k = K("k1_kernel")
    e = k.e
    def stamp(i):
        if PROF:
            e(f"s_memtime s[{88+2*i}:{89+2*i}]")
    XA, WA = 16, 20
    WSR, WOR, WRR, ZR = 24, 28, 32, 52
    LANE, M, HALF = 1, 2, 3
    T = 22
    Lend = "k1_end"
    e(f"""s_cmp_ge_u32 s2, 256
s_cbranch_scc1 {Lend}
s_load_dwordx4 s[4:7], s[0:1], 0
s_load_dwordx4 s[12:15], s[0:1], 72
{"s_memtime s[88:89]" if PROF else ""}
{"s_memrealtime s[98:99]" if PROF else ""}
v_lshrrev_b32 v{T}, 6, v0
v_and_b32 v{LANE}, 63, v0
v_readfirstlane_b32 s38, v{T}
v_and_b32 v{M}, 31, v0
v_bfe_u32 v{HALF}, v0, 5, 1
s_and_b32 s36, s2, 7
s_lshl_b32 s36, s36, 1
s_bfe_u32 s46, s2, 0x10003
s_add_u32 s36, s36, s46
s_lshr_b32 s37, s2, 4
s_mov_b32 s47, 0x3f803f80
s_mul_i32 s50, s37, 216
s_sub_u32 s46, s37, 11
s_lshl_b32 s46, s46, 8
s_add_u32 s46, s46, 2304
s_cmp_ge_u32 s37, 11
s_cselect_b32 s50, s46, s50
s_cselect_b32 s48, 1, 0
s_lshr_b32 s67, s38, 2
s_and_b32 s38, s38, 3
s_waitcnt lgkmcnt(0)
""")
    srd(k, XA, 4, S * D * 2)
    srd(k, WA, 6, D * 3 * D * 2)
    srd(k, WSR, 14, WS_SIZE)
    e(f"""s_cmp_eq_u32 s67, 1
s_cbranch_scc1 k1_prod0""")
    XOE, XOO, WOFF = 4, 5, 6
    WOT, WOH = 16, 8
    DBG = 56
    SCR = 32768
    e(f"""s_load_dwordx2 s[8:9], s[0:1], 16
s_load_dwordx2 s[10:11], s[0:1], 32
v_lshrrev_b32 v{T}, 3, v{LANE}
v_lshrrev_b32 v{T+1}, 4, v{LANE}
v_and_b32 v{T+2}, 7, v{LANE}
v_xor_b32 v{T+2}, v{T+2}, v{T+1}
v_mul_u32_u24 v{T}, 1152, v{T}
v_lshl_add_u32 v{XOE}, v{T+2}, 4, v{T}
v_xor_b32 v{XOO}, 64, v{XOE}
v_and_b32 v{T+3}, 15, v{LANE}
v_lshlrev_b32 v{T+4}, 2, v{T+1}
v_xor_b32 v{T+3}, v{T+3}, v{T+4}
v_mul_u32_u24 v{T+4}, 3456, v{T+1}
v_lshl_add_u32 v{WOFF}, v{T+3}, 4, v{T+4}
s_lshl_b32 s46, s48, 1
s_add_u32 s46, s46, 14
v_cmp_gt_u32 s[60:61], s46, v{T+3}
v_mov_b32 v{T+4}, {HUGE}
s_lshl_b32 s41, s36, 7
s_lshl_b32 s46, s38, 5
v_cndmask_b32 v{WOFF}, v{T+4}, v{WOFF}, s[60:61]
s_add_u32 s41, s41, s46
s_mul_i32 s41, s41, 1152
s_mul_i32 s42, s38, {16*3456}
s_add_u32 s42, s42, s50
s_lshl_b32 s43, s38, 12
""")

    def dma_stage():
        for j in range(4):
            e(f"""s_add_u32 m0, s43, {j*1024}
s_add_u32 s46, s41, {j*9216}
buffer_load_dwordx4 v{XOE if j % 2 == 0 else XOO}, s[{XA}:{XA+3}], s46 offen lds
s_add_u32 m0, s43, {16384+j*1024}
s_add_u32 s46, s42, {j*13824}
buffer_load_dwordx4 v{WOFF}, s[{WA}:{WA+3}], s46 offen lds""")
        e(f"""s_add_u32 s41, s41, 128
s_add_u32 s42, s42, {64*3456}
s_add_u32 s43, s43, 32768
s_and_b32 s43, s43, 0x1ffff""")

    HW, HWA, SW, DW, UW = 20, 21, 40, 48, 64
    e(f"""v_and_b32 v{T}, 3, v{LANE}
s_lshl_b32 s46, s38, 2
v_add_u32 v{T}, s46, v{T}
v_lshrrev_b32 v{T+1}, 2, v{LANE}
v_and_b32 v{T+2}, 3, v{T+1}
v_lshlrev_b32 v{T+2}, 2, v{T+2}
v_xor_b32 v{T}, v{T}, v{T+2}
v_lshlrev_b32 v{T+1}, 8, v{T+1}
v_lshl_add_u32 v{HW}, v{T}, 4, v{T+1}
v_add_u32 v{HW}, 16384, v{HW}
s_mov_b32 s45, 0""")
    for r in range(SW, SW + 8):
        e(f"v_mov_b32 v{r}, 0")
    def cs_reads():
        e(f"v_add_u32 v{HWA}, s45, v{HW}")
        for i in range(4):
            e(f"ds_read_b128 {vr(DW+4*i,4)}, v{HWA} offset:{i*4096}")
        e("s_add_u32 s45, s45, 32768\ns_and_b32 s45, s45, 0x1ffff")
    def cs_valu():
        for i in range(16):
            if i % 4 == 0: e(f"s_waitcnt lgkmcnt({3 - i//4})")
            u = UW + 2 * (i % 4); w = SW + 2 * (i % 4)
            e(f"""v_lshlrev_b32 v{u}, 16, v{DW+i}
v_and_b32 v{u+1}, 0xffff0000, v{DW+i}
v_add_f32 v{w}, v{w}, v{u}
v_add_f32 v{w+1}, v{w+1}, v{u+1}""")
    e("s_mov_b32 s44, 0")
    POLL = 12
    LL, LL2, LPROD, LCONT, LSIG = "k1_lloop", "k1_lskip", "k1_prod", "k1_cont", "k1_sig"
    k.label(LL)
    e(f"""s_cmp_lt_u32 s44, 3
s_cbranch_scc1 {LL2}
s_waitcnt vmcnt(16)
s_barrier""")
    cs_reads()
    k.label(LL2)
    dma_stage()
    e(f"""s_cmp_lt_u32 s44, 3
s_cbranch_scc1 k1_ncs""")
    e("s_getpc_b64 s[76:77]")
    k.label("k1_cb1")
    e("s_add_u32 s76, s76, k1_ncs-k1_cb1\ns_addc_u32 s77, s77, 0\ns_branch k1_csv")
    k.label("k1_ncs")
    e(f"""s_add_u32 s44, s44, 1
s_cmp_eq_u32 s44, 1
s_cbranch_scc1 k1_wo
""")
    k.label(LCONT)
    e(f"""s_cmp_lt_u32 s44, 9
s_cbranch_scc1 {LL}
buffer_load_dwordx4 v[36:39], v{POLL}, s[{DBG}:{DBG+3}], 0 offen sc1
s_waitcnt vmcnt(17)
s_barrier""")
    e("s_getpc_b64 s[76:77]")
    k.label("k1_cb6")
    e("s_add_u32 s76, s76, k1_cr6-k1_cb6\ns_addc_u32 s77, s77, 0\ns_branch k1_csr")
    k.label("k1_cr6")
    e(f"""s_waitcnt vmcnt(9)
s_barrier""")
    e("s_getpc_b64 s[76:77]")
    k.label("k1_cb7")
    e("s_add_u32 s76, s76, k1_cr7-k1_cb7\ns_addc_u32 s77, s77, 0\ns_branch k1_csr")
    k.label("k1_cr7")
    e(f"""s_mov_b32 s62, 0
s_mov_b32 s74, 0
s_waitcnt vmcnt(0)
s_branch k1_pchk
""")
    k.label("k1_csr")
    cs_reads()
    k.label("k1_csv")
    cs_valu()
    e("s_setpc_b64 s[76:77]")
    k.label("k1_poll")
    e(f"""s_sleep 8
buffer_load_dwordx4 v[36:39], v{POLL}, s[{DBG}:{DBG+3}], 0 offen sc1
s_waitcnt vmcnt(0)""")
    k.label("k1_pchk")
    e(f"""v_and_b32 v36, v36, v37
v_and_b32 v38, v38, v39
v_and_b32 v36, v36, v38
s_nop 0
v_readfirstlane_b32 s63, v36
s_add_u32 s62, s62, 1
s_cmp_eq_u32 s63, {"0x01010102" if os.environ.get("K1FB") else "0x01010101"}
s_cbranch_scc1 k1_polled
s_cmp_lt_u32 s62, {int(os.environ.get("K1POLL", "64"))}
s_cbranch_scc1 k1_poll
s_mov_b32 s64, 0
s_mov_b32 s73, 1
s_mov_b32 s74, 1
s_branch {LPROD}""")
    k.label("k1_polled")
    e(f"""s_lshl_b32 s46, s36, 10
s_lshl_b32 s62, s38, 8
s_add_u32 s46, s46, s62
s_add_u32 s46, s46, {WS_XST}
v_lshlrev_b32 v{T}, 3, v{M}
buffer_load_dwordx2 v[32:33], v{T}, s[{WSR}:{WSR+3}], s46 offen sc1
s_barrier""")
    e("s_getpc_b64 s[76:77]")
    k.label("k1_cb8")
    e("s_add_u32 s76, s76, k1_cr8-k1_cb8\ns_addc_u32 s77, s77, 0\ns_branch k1_csr")
    k.label("k1_cr8")
    CP = 72
    for sw in ["v_permlane32_swap_b32", "v_permlane16_swap_b32"]:
        for i in range(8): e(f"v_mov_b32 v{CP+i}, v{SW+i}")
        for i in range(8): e(f"{sw} v{SW+i}, v{CP+i}")
        for i in range(8): e(f"v_add_f32 v{SW+i}, v{SW+i}, v{CP+i}")
    for sh in ["row_ror:4", "row_ror:8"]:
        for j in range(8):
            e(f"v_add_f32_dpp v{SW+j}, v{SW+j}, v{SW+j} {sh} row_mask:0xf bank_mask:0xf")
    e(f"""v_and_b32 v{T+6}, 3, v{LANE}
s_lshl_b32 s63, s38, 7
v_lshl_add_u32 v{T+6}, v{T+6}, 5, s63
ds_write_b128 v{T+6}, {vr(SW,4)} offset:{SCR+1024}
ds_write_b128 v{T+6}, {vr(SW+4,4)} offset:{SCR+1024+16}
s_cmp_eq_u32 s74, 0
s_cbranch_scc1 k1_fetched
buffer_load_dwordx2 v[32:33], v{T}, s[{WSR}:{WSR+3}], s46 offen sc1""")
    k.label("k1_fetched")
    e(f"""v_add_u32 v{T}, s62, v{T}
s_waitcnt vmcnt(0)
ds_write_b64 v{T}, v[32:33] offset:{SCR}
s_waitcnt lgkmcnt(0)
s_barrier
s_branch k1_side
""")
    k.label("k1_wo")
    e(f"""s_lshl_b32 s46, s36, 4
v_mov_b32 v{POLL}, s46
s_waitcnt lgkmcnt(0)""")
    srd(k, WOR, 8, D * D * 2)
    srd(k, WRR, 10, D * 2)
    srd(k, DBG, 12, 256)
    e(f"""s_lshl_b32 s51, s38, 8
s_add_u32 s51, s51, s2
s_mul_i32 s68, s51, 1821
s_lshr_b32 s68, s68, 16
s_mul_i32 s69, s68, 36
s_sub_u32 s69, s51, s69
s_mul_i32 s70, s69, {18*1152}
s_sub_u32 s46, s69, 32
s_mul_i32 s46, s46, {144*1152}
s_add_u32 s46, s46, {16*1152}
s_cmp_ge_u32 s69, 32
s_cselect_b32 s70, s46, s70
s_cselect_b32 s71, {72*1152}, {8*1152}
s_cselect_b32 s72, {18*1152}, {2*1152}
s_cmp_ge_u32 s51, 648
s_cselect_b32 s70, {HUGE}, s70
v_and_b32 v{T}, 0x13, v{M}
v_and_b32 v{T+1}, 4, v{M}
v_lshl_or_b32 v{T}, v{T+1}, 1, v{T}
v_and_b32 v{T+1}, 8, v{M}
v_lshrrev_b32 v{T+1}, 1, v{T+1}
v_or_b32 v{T}, v{T}, v{T+1}
s_lshl_b32 s68, s68, 5
v_add_u32 v{T}, s68, v{T}
v_lshlrev_b32 v{T}, 1, v{T}
v_mul_lo_u32 v{T+1}, v{HALF}, s71
v_add_u32 v{T}, v{T}, v{T+1}
""")
    for jj in range(4):
        e(f"""buffer_load_ushort v{WOT+jj}, v{T}, s[{WOR}:{WOR+3}], s70 offen
buffer_load_ushort v{WOH+jj}, v{T}, s[{WOR}:{WOR+3}], s70 offen offset:1152""")
        if jj < 3:
            e("s_add_u32 s70, s70, s72")
    e(f"s_branch {LCONT}")
    k.label("k1_prod0")
    e(f"""s_mov_b32 s64, s37
s_mov_b32 s73, 0""")
    k.label(LPROD)
    DX, SX, SQ, UU = 176, 188, 190, 192
    PX, PX3 = 32, 33
    e(f"""v_mul_u32_u24 v{PX}, 1152, v{HALF}
v_lshl_add_u32 v{PX}, v{M}, 4, v{PX}
v_cmp_gt_u32 s[60:61], 8, v{M}
v_mov_b32 v{T+4}, {HUGE}
s_nop 0
v_cndmask_b32 v{PX3}, v{T+4}, v{PX}, s[60:61]
""")
    k.label("k1_ploop")
    e(f"""s_lshl_b32 s46, s36, 7
s_lshl_b32 s68, s64, 3
s_add_u32 s46, s46, s68
s_lshl_b32 s68, s38, 1
s_add_u32 s68, s46, s68
s_mul_i32 s46, s68, 1152
buffer_load_dwordx4 {vr(DX,4)}, v{PX}, s[{XA}:{XA+3}], s46 offen
buffer_load_dwordx4 {vr(DX+4,4)}, v{PX}, s[{XA}:{XA+3}], s46 offen offset:512
buffer_load_dwordx4 {vr(DX+8,4)}, v{PX3}, s[{XA}:{XA+3}], s46 offen offset:1024
s_cmp_eq_u32 s73, 0
s_cbranch_scc1 k1_compute
""")
    k.label("k1_pfin")
    for r in range(188, 192):
        e(f"v_mov_b32 v{r}, 0")
    for i in range(12):
        u = UU + 2 * (i % 4)
        if i % 4 == 0:
            e(f"s_waitcnt vmcnt({2 - i//4})")
        e(f"""v_lshlrev_b32 v{u}, 16, v{DX+i}
v_and_b32 v{u+1}, 0xffff0000, v{DX+i}
v_add_f32 v{SX}, v{SX}, v{u}
v_add_f32 v{SX+1}, v{SX+1}, v{u+1}
v_fmac_f32 v{SQ}, v{u}, v{u}
v_fmac_f32 v{SQ+1}, v{u+1}, v{u+1}""")
    e(f"""v_add_f32 v{SX}, v{SX}, v{SX+1}
v_add_f32 v{SQ}, v{SQ}, v{SQ+1}
s_lshl_b32 s46, s68, 3
s_add_u32 s46, s46, {WS_XST}""")
    for sh, rm in [("row_shr:1", "0xf"), ("row_shr:2", "0xf"), ("row_shr:4", "0xf"), ("row_shr:8", "0xf"), ("row_bcast:15", "0xa")]:
        e(f"""v_add_f32_dpp v{SX}, v{SX}, v{SX} {sh} row_mask:{rm} bank_mask:0xf
v_add_f32_dpp v{SQ}, v{SQ}, v{SQ} {sh} row_mask:{rm} bank_mask:0xf
s_nop 0""")
    A_T, B_T = 22, 23
    e(f"""v_mul_f32 v{T+2}, {f32hex(1.0/576)}, v{SX}
v_mul_f32 v{T+3}, {f32hex(1.0/576)}, v{SQ}
v_fma_f32 v{T+3}, -v{T+2}, v{T+2}, v{T+3}
v_max_f32 v{T+3}, 0, v{T+3}
v_cvt_pk_bf16_f32 v{T+2}, v{T+2}, v{T+2}
v_cvt_pk_bf16_f32 v{T+3}, v{T+3}, v{T+3}
v_and_b32 v{T+2}, 0xffff0000, v{T+2}
v_and_b32 v{T+3}, 0xffff0000, v{T+3}
v_add_f32 v{T+3}, {f32hex(1e-5)}, v{T+3}
v_cvt_pk_bf16_f32 v{T+3}, v{T+3}, v{T+3}
v_and_b32 v{T+3}, 0xffff0000, v{T+3}
v_sqrt_f32 v{T+3}, v{T+3}
v_sub_f32 v{B_T}, 0, v{T+2}
v_cvt_pk_bf16_f32 v{T+3}, v{T+3}, v{T+3}
v_and_b32 v{T+3}, 0xffff0000, v{T+3}
v_rcp_f32 v{A_T}, v{T+3}
v_lshlrev_b32 v{T+2}, 3, v{HALF}
s_mov_b32 exec_lo, 0x80000000
s_mov_b32 exec_hi, 0x80000000
buffer_store_dwordx2 v[{A_T}:{B_T}], v{T+2}, s[{WSR}:{WSR+3}], s46 offen sc1
s_mov_b64 exec, -1
s_cmp_eq_u32 s73, 0
s_cbranch_scc1 k1_pret
s_add_u32 s64, s64, 1
s_waitcnt vmcnt(0)
s_cmp_lt_u32 s64, 16
s_cbranch_scc1 k1_ploop
s_branch k1_polled
""")
    k.label("k1_side")
    e(f"""s_lshl_b32 s46, s51, 10
s_add_u32 s46, s46, {WS_WOP}
s_cmp_ge_u32 s51, 648
s_cselect_b32 s46, {HUGE}, s46
v_lshlrev_b32 v{T}, 4, v{LANE}
v_lshl_or_b32 v{WOT}, v{WOH}, 16, v{WOT}
v_lshl_or_b32 v{WOT+1}, v{WOH+1}, 16, v{WOT+1}
v_lshl_or_b32 v{WOT+2}, v{WOH+2}, 16, v{WOT+2}
v_lshl_or_b32 v{WOT+3}, v{WOH+3}, 16, v{WOT+3}
buffer_store_dwordx4 {vr(WOT,4)}, v{T}, s[{WSR}:{WSR+3}], s46 offen
s_cmp_lt_u32 s2, 240
s_cbranch_scc1 {Lend}
s_add_u32 s{ZR}, s14, {WS_ST}
s_addc_u32 s{ZR+1}, s15, 0
s_and_b32 s{ZR+1}, s{ZR+1}, 0xffff
s_mov_b32 s{ZR+2}, {ZERO_BYTES}
s_mov_b32 s{ZR+3}, 0x20000
s_sub_u32 s46, s2, 240
s_lshl_b32 s46, s46, 12
v_lshlrev_b32 v{T+1}, 4, v0
v_mov_b32 v32, 0
v_mov_b32 v33, 0
v_mov_b32 v34, 0
v_mov_b32 v35, 0
buffer_store_dwordx4 v[32:35], v{T+1}, s[{ZR}:{ZR+3}], s46 offen
s_cmp_lg_u32 s51, 1023
s_cbranch_scc1 {Lend}
v_lshlrev_b32 v{T+1}, 2, v{LANE}
""")
    for i in range(5):
        e(f"buffer_load_dword v{36+i}, v{T+1}, s[{WRR}:{WRR+3}], 0 offen offset:{256*i}")
    e(f"v_mov_b32 v{T+2}, 0\ns_waitcnt vmcnt(0)")
    for i in range(5):
        e(f"v_dot2_f32_bf16 v{T+2}, v{36+i}, s47, v{T+2}")
    e("s_nop 3")
    for sh in ["row_shr:1", "row_shr:2", "row_shr:4", "row_shr:8"]:
        e(f"""v_mov_b32 v{T+3}, 0
s_nop 1
v_mov_b32_dpp v{T+3}, v{T+2} {sh} row_mask:0xf bank_mask:0xf
v_add_f32 v{T+2}, v{T+2}, v{T+3}""")
    for sh, rm in [("row_bcast:15", "0xa"), ("row_bcast:31", "0xc")]:
        e(f"""v_mov_b32 v{T+3}, 0
s_nop 1
v_mov_b32_dpp v{T+3}, v{T+2} {sh} row_mask:{rm} bank_mask:0xf
v_add_f32 v{T+2}, v{T+2}, v{T+3}""")
    e(f"""v_mov_b32 v{T+1}, {WS_WSUM}
s_mov_b32 exec_lo, 0
s_mov_b32 exec_hi, 0x80000000
buffer_store_dword v{T+2}, v{T+1}, s[{WSR}:{WSR+3}], 0 offen
s_endpgm
""")
    k.label("k1_compute")
    XRD0, XRD1, WRD0, WRD1 = 7, 8, 9, 10
    XA0, XA1, WA0, WA1 = 11, 12, 13, 14
    XSUM, XSQ, WCS = 16, 18, 20
    XAK = [[XA0, 4, 5, 6], [XA1, 15, 16, 17]]
    U = 220
    buf = [dict(X=[32+16*i, 36+16*i], W=[40+16*i, 44+16*i]) for i in range(4)]
    acc = lambda t, f: 96 + 32 * t + 16 * f
    e(f"""s_lshr_b32 s39, s38, 1
s_and_b32 s40, s38, 1
s_mov_b32 s49, 0xffff0000
v_bfe_u32 v{T}, v{M}, 1, 3
v_xor_b32 v{T}, v{T}, v{HALF}
v_lshlrev_b32 v{T+1}, 7, v{M}
v_lshl_add_u32 v{T+1}, v{T}, 4, v{T+1}
s_lshl_b32 s46, s38, 12
v_add_u32 v{XRD0}, s46, v{T+1}
v_xor_b32 v{XRD1}, 4096, v{XRD0}
""")
    R_, CQ, A_, KROW, QUAD, PERM = T, T+1, T+2, T+3, T+4, T+5
    e(f"""v_bfe_u32 v{R_}, v{LANE}, 2, 2
v_and_b32 v{CQ}, 3, v{LANE}
v_bfe_u32 v{A_}, v{LANE}, 4, 1
v_lshl_add_u32 v{KROW}, v{HALF}, 3, v{R_}
v_lshl_add_u32 v{QUAD}, v{A_}, 2, v{CQ}
v_and_b32 v{PERM}, 1, v{CQ}
v_lshlrev_b32 v{PERM}, 1, v{PERM}
v_lshrrev_b32 v{T+6}, 1, v{CQ}
v_or_b32 v{PERM}, v{PERM}, v{T+6}
v_mad_u32_u24 v{PERM}, v{A_}, 5, v{PERM}
s_lshl_b32 s61, s40, 1
s_add_u32 s62, s61, 1
s_add_u32 s61, s61, s39
s_sub_u32 s62, s62, s39
""")
    for f, (sft, dst) in enumerate([(61, WRD0), (62, WRD1)]):
        UB = T + 6
        e(f"""s_mul_i32 s46, s{sft}, 72
v_lshl_add_u32 v{UB}, v{PERM}, 3, s46
v_min_u32 v{T+7}, 2, v{QUAD}
v_mul_u32_u24 v{T+7}, 72, v{T+7}
v_add_u32 v{T+7}, 32, v{T+7}
s_cmp_eq_u32 s{sft}, 3
s_cselect_b64 vcc, -1, 0
s_lshl_b32 s46, s{sft}, 6
v_lshl_add_u32 v{T+8}, v{QUAD}, 3, s46
v_cndmask_b32 v{UB}, v{UB}, v{T+7}, vcc
s_cmp_eq_u32 s48, 1
s_cselect_b64 vcc, -1, 0
s_nop 1
v_cndmask_b32 v{UB}, v{UB}, v{T+8}, vcc
v_lshrrev_b32 v{T+7}, 4, v{UB}
v_lshlrev_b32 v{T+8}, 2, v{R_}
v_xor_b32 v{T+7}, v{T+7}, v{T+8}
v_and_b32 v{UB}, 15, v{UB}
v_lshl_add_u32 v{UB}, v{T+7}, 4, v{UB}
v_lshl_add_u32 v{UB}, v{KROW}, 8, v{UB}
v_add_u32 v{dst}, 16384, v{UB}
""")
    for r in list(range(64, 176)):
        e(f"v_mov_b32 v{r}, 0")
    for r in range(28, 32):
        e(f"v_mov_b32 v{r}, s47")
    e(f"""s_mov_b32 s44, 0
s_mov_b32 s45, 0
s_lshl_b32 s46, s36, 4
s_add_u32 s46, s46, s37
v_mov_b32 v18, s46
v_mov_b32 v19, 1""")
    srd(k, DBG, 12, 256)

    def reads(ks, b):
        if os.environ.get("NOREAD"):
            return
        e(f"""ds_read_b128 {vr(b['X'][0],4)}, v{XAK[0][ks]}
ds_read_b128 {vr(b['X'][1],4)}, v{XAK[1][ks]}
ds_read_b64_tr_b16 {vr(b['W'][0],2)}, v{WA0} offset:{16*ks*256}
ds_read_b64_tr_b16 {vr(b['W'][0]+2,2)}, v{WA0} offset:{(16*ks+4)*256}
ds_read_b64_tr_b16 {vr(b['W'][1],2)}, v{WA1} offset:{16*ks*256}
ds_read_b64_tr_b16 {vr(b['W'][1]+2,2)}, v{WA1} offset:{(16*ks+4)*256}""")

    def mfmas(b, isV):
        i = 0
        for t in range(2):
            for f in range(2):
                a = acc(t, f)
                X, W = vr(b['X'][t], 4), vr(b['W'][f], 4)
                if os.environ.get("NOMFMA"):
                    pass
                elif isV:
                    e(f"v_mfma_f32_32x32x16_bf16 {vr(a,16)}, {X}, {W}, {vr(a,16)}")
                else:
                    e(f"v_mfma_f32_32x32x16_bf16 {vr(a,16)}, {W}, {X}, {vr(a,16)}")
        mfma_cs(b, isV)

    def mfma_cs(b, isV):
        return
        W = vr(b['W'][0], 4)
        if isV:
            e(f"v_mfma_f32_32x32x16_bf16 v[160:175], v[28:31], {W}, v[160:175]")
        else:
            e(f"v_mfma_f32_32x32x16_bf16 v[160:175], {W}, v[28:31], v[160:175]")

    def mainloop(isV):
        L = k.newlabel("loop")
        k.lines.append(".p2align 3")
        k.label(L)
        e(f"""s_barrier
v_add_u32 v{XA0}, s45, v{XRD0}
v_add_u32 v{XA1}, s45, v{XRD1}
v_add_u32 v{WA0}, s45, v{WRD0}
v_add_u32 v{WA1}, s45, v{WRD1}""")
        if PROF:
            e("s_cmp_lg_u32 s44, 0\ns_cbranch_scc1 " + L + "x")
            stamp(1)
            k.label(L + "x")
            e("s_memtime s[76:77]\ns_waitcnt lgkmcnt(0)\ns_sub_u32 s76, s76, s88\ns_mov_b32 m0, s44\ns_nop 0\nv_writelane_b32 v200, s76, m0")
        reads(0, buf[0])
        for t in range(2):
            for ks in range(1, 4):
                e(f"v_xor_b32 v{XAK[t][ks]}, {ks<<5}, v{XAK[t][0]}")
        if int(os.environ.get("K1LATE", "1")):
            e("s_cmp_eq_u32 s44, 0\ns_cbranch_scc1 k1_pfin")
            k.label("k1_retV" if isV else "k1_retQ")
        mfmas(buf[2], isV)
        reads(1, buf[1])
        mfmas(buf[3], isV)
        reads(2, buf[2])
        e(f"""s_cmp_lg_u32 s44, 2
s_cbranch_scc1 {L}z
s_cmp_lg_u32 s38, 0
s_cbranch_scc1 {L}z
s_mov_b64 exec, 1
buffer_store_byte v19, v18, s[{DBG}:{DBG+3}], 0 offen sc1
s_mov_b64 exec, -1""")
        k.label(L + "z")
        e("s_waitcnt lgkmcnt(12)")
        mfmas(buf[0], isV)
        reads(3, buf[3])
        e("s_waitcnt lgkmcnt(12)")
        mfmas(buf[1], isV)
        e(f"""s_add_u32 s45, s45, 32768
s_and_b32 s45, s45, 0x1ffff
s_add_u32 s44, s44, 1
s_cmp_lg_u32 s44, 2
s_cbranch_scc1 {L}y
s_waitcnt vmcnt({6 if int(os.environ.get("K1TOUCH", "0")) else 0})""")
        k.label(L + "y")
        e(f"""s_cmp_lt_u32 s44, 9
s_waitcnt lgkmcnt(0)
s_cbranch_scc1 {L}""")
        mfmas(buf[2], isV)
        mfmas(buf[3], isV)
        stamp(2)

    SCR = 32768
    def stats_final(isV):
        e("s_barrier")

    LV = "k1_vpath"
    LDONE = "k1_done"
    LATE = int(os.environ.get("K1LATE", "1"))
    TOUCH = int(os.environ.get("K1TOUCH", "0"))
    if LATE:
        e("s_branch k1_go")
        k.label("k1_pret")
        if TOUCH:
            e(f"""s_load_dwordx4 s[76:79], s[0:1], 40
s_load_dwordx4 s[80:83], s[0:1], 56
v_lshlrev_b32 v{T+2}, 18, v{LANE}
buffer_load_dword v207, v{T+2}, s[{WSR}:{WSR+3}], 0 offen
s_waitcnt lgkmcnt(0)
s_mov_b64 exec, 0xfffff
global_load_dword v207, v{T+2}, s[76:77]
global_load_dword v207, v{T+2}, s[78:79]
global_load_dword v207, v{T+2}, s[80:81]
s_mov_b64 exec, 0x1ff
global_load_dword v207, v{T+2}, s[82:83]
s_mov_b64 exec, -1
s_getpc_b64 s[76:77]""")
            k.label("k1_tpc")
            e(f"""s_add_u32 s76, s76, k2_kernel-k1_tpc
s_addc_u32 s77, s77, 0
v_lshlrev_b32 v{T+2}, 7, v{LANE}
s_bfm_b64 exec, (k2_end-k2_kernel+127)>>7, 0
global_load_dword v207, v{T+2}, s[76:77]
s_mov_b64 exec, -1""")
        e("s_cmp_eq_u32 s48, 1\ns_cbranch_scc1 k1_retV\ns_branch k1_retQ")
    else:
        e("s_branch k1_pfin")
        k.label("k1_pret")
    k.label("k1_go")
    e(f"s_cmp_eq_u32 s48, 1\ns_cbranch_scc1 {LV}")
    mainloop(False)
    stats_final(False)
    AB = [22, 24]
    CS = [160, 176]
    e(f"""s_lshl_b32 s46, s38, 8
v_lshl_add_u32 v{T+4}, v{M}, 3, s46
v_xor_b32 v{T+5}, 256, v{T+4}
ds_read_b64 v[22:23], v{T+4} offset:{SCR}
ds_read_b64 v[24:25], v{T+5} offset:{SCR}
""")
    for f, sft in enumerate([61, 62]):
        e(f"""s_mul_i32 s46, s{sft}, 144
s_cmp_eq_u32 s{sft}, 3
s_cselect_b32 s46, 64, s46
s_cselect_b32 s66, 144, 32
s_cselect_b32 s67, 272, 0
v_mul_lo_u32 v{T+4}, v{HALF}, s66
v_add_u32 v{T+4}, s46, v{T+4}
v_add_u32 v{T+5}, s67, v{T+4}
ds_read_b128 {vr(CS[f],4)}, v{T+4} offset:{SCR+1024}
ds_read_b128 {vr(CS[f]+4,4)}, v{T+5} offset:{SCR+1024+16}
ds_read_b128 {vr(CS[f]+8,4)}, v{T+4} offset:{SCR+1024+80}
ds_read_b128 {vr(CS[f]+12,4)}, v{T+4} offset:{SCR+1024+96}""")
    e(f"v_lshlrev_b32 v{T+7}, 4, v{LANE}")
    L16 = T + 7
    e(f"""s_lshl_b32 s63, s36, 2
s_xor_b32 s64, s38, 1
s_add_u32 s64, s64, s63
s_add_u32 s63, s63, s38
s_mul_i32 s65, s37, 3
s_waitcnt lgkmcnt(0)
""")
    SC = 32
    for f, sft in enumerate([61, 62]):
        Lrem, Lnext = k.newlabel("rem"), k.newlabel("next")
        e(f"""s_cmp_eq_u32 s{sft}, 3
s_cbranch_scc1 {Lrem}
s_add_u32 s66, s65, s{sft}
s_cmp_ge_u32 s66, 32
s_cbranch_scc1 {Lnext}
s_and_b32 s67, s66, 15
s_lshl_b32 s67, s67, 1
s_cmp_lt_u32 s66, 16
s_cselect_b32 s68, {f32hex(QSCALE)}, 1.0
s_cselect_b32 s69, 65536, {KVH}
""")
        for t, stt in enumerate([63, 64]):
            a = acc(t, f)
            e(f"""s_lshr_b32 s70, s{stt}, 1
s_mul_i32 s70, s70, {BLK}
s_and_b32 s71, s{stt}, 1
s_lshl_b32 s71, s71, 10
s_add_u32 s70, s70, s71
s_lshl_b32 s71, s{stt}, 10
s_add_u32 s71, s71, {WS_QM}
s_cmp_lt_u32 s66, 16
s_cselect_b32 s70, s71, s70
s_mul_i32 s71, s67, s69
s_add_u32 s70, s70, s71
s_add_u32 s71, s70, s69
v_mul_f32 v{SC}, s68, v{AB[t]}
""")
            for i in range(8):
                e(f"v_pk_fma_f32 {vr(a+2*i,2)}, {vr(CS[f]+2*i,2)}, v[{AB[t]}:{AB[t]+1}], {vr(a+2*i,2)} op_sel:[0,1,0] op_sel_hi:[1,1,1]")
            for i in range(8):
                e(f"v_pk_mul_f32 {vr(a+2*i,2)}, {vr(a+2*i,2)}, v[{SC}:{SC+1}] op_sel_hi:[1,0]")
            P = 40 + 8 * t
            for i in range(8):
                e(f"v_cvt_pk_bf16_f32 v{P+i}, v{a+2*i}, v{a+2*i+1}")
            e(f"""buffer_store_dwordx4 {vr(P,4)}, v{L16}, s[{WSR}:{WSR+3}], s70 offen
buffer_store_dwordx4 {vr(P+4,4)}, v{L16}, s[{WSR}:{WSR+3}], s71 offen""")
        e(f"""s_cmp_lt_u32 s66, 16
s_cbranch_scc1 {Lnext}""")
        NN = [[56, 58], [60, 62]]
        for t in range(2):
            a = acc(t, f)
            for hb in range(2):
                N = NN[t][hb]
                b = a + 8 * hb
                e(f"v_pk_mul_f32 v[{N}:{N+1}], {vr(b,2)}, {vr(b,2)}")
            for i in range(1, 4):
                for hb in range(2):
                    N = NN[t][hb]
                    b = a + 8 * hb
                    e(f"v_pk_fma_f32 v[{N}:{N+1}], {vr(b+2*i,2)}, {vr(b+2*i,2)}, v[{N}:{N+1}]")
        for t in range(2):
            for hb in range(2):
                N = NN[t][hb]
                e(f"v_add_f32 v{N}, v{N}, v{N+1}")
        e(f"""s_lshl_b32 s70, s67, 8
s_and_b32 s71, s63, 62
s_lshl_b32 s71, s71, 2
v_permlane32_swap_b32 v56, v58
v_permlane32_swap_b32 v60, v62
s_add_u32 s70, s70, s71
s_add_u32 s70, s70, {WS_KNM}
v_add_f32 v56, v56, v58
v_add_f32 v60, v60, v62
v_max_f32 v56, v56, v60
v_lshlrev_b32 v58, 8, v{HALF}
s_nop 0
v_max_f32_dpp v56, v56, v56 row_shr:1 row_mask:0xf bank_mask:0xf
s_nop 1
v_max_f32_dpp v56, v56, v56 row_shr:2 row_mask:0xf bank_mask:0xf
s_nop 1
v_max_f32_dpp v56, v56, v56 row_shr:4 row_mask:0xf bank_mask:0xf
s_nop 1
v_max_f32_dpp v56, v56, v56 row_shr:8 row_mask:0xf bank_mask:0xf
s_nop 1
v_max_f32_dpp v56, v56, v56 row_bcast:15 row_mask:0xa bank_mask:0xf
s_mov_b32 exec_lo, 0x80000000
s_mov_b32 exec_hi, 0x80000000
v_mov_b32 v57, v56
buffer_store_dwordx2 v[56:57], v58, s[{WSR}:{WSR+3}], s70 offen
s_mov_b64 exec, -1
""")
        e(f"s_branch {Lnext}")
        k.label(Lrem)
        for t, stt in enumerate([63, 64]):
            a = acc(t, f)
            e(f"""s_lshr_b32 s70, s{stt}, 1
s_mul_i32 s70, s70, {BLK}
s_and_b32 s71, s{stt}, 1
s_lshl_b32 s71, s71, 7
s_add_u32 s70, s70, s71
s_add_u32 s70, s70, 4480
s_lshl_b32 s71, s{stt}, 7
s_add_u32 s71, s71, {WS_QR}
s_lshl_b32 s73, s{stt}, 2
s_add_u32 s73, s73, {WS_KNR}
""")
            for j in range(3):
                b = 76 + 4 * j
                e(f"""s_add_u32 s66, s65, {j}
s_and_b32 s67, s66, 15
s_lshl_b32 s67, s67, 1
s_lshl_b32 s74, s67, 8
s_add_u32 s74, s74, s73
s_cmp_lt_u32 s66, 16
s_cselect_b32 s{b+1}, 8192, {KVH}
s_cselect_b32 s{b+2}, {f32hex(QSCALE)}, 1.0
s_cselect_b32 s{b}, s71, s70
s_cselect_b32 s{b+3}, {HUGE}, s74
s_mul_i32 s67, s67, s{b+1}
s_add_u32 s{b}, s{b}, s67
s_cmp_ge_u32 s66, 32
s_cselect_b32 s{b}, {HUGE}, s{b}
s_cselect_b32 s{b+3}, {HUGE}, s{b+3}
""")
            V = 32
            e(f"""v_cmp_eq_u32 s[74:75], 1, v{HALF}
v_mov_b32 v{V}, s76
v_mov_b32 v{V+1}, s77
v_mov_b32 v{V+2}, s78
v_mov_b32 v{V+3}, s79
v_mov_b32 v{V+4}, s80
v_mov_b32 v{V+5}, s81
v_mov_b32 v{V+6}, s82
v_mov_b32 v{V+7}, s83
v_cndmask_b32 v{V}, v{V}, v{V+4}, s[74:75]
v_cndmask_b32 v{V+1}, v{V+1}, v{V+5}, s[74:75]
v_cndmask_b32 v{V+2}, v{V+2}, v{V+6}, s[74:75]
v_cndmask_b32 v{V+3}, v{V+3}, v{V+7}, s[74:75]
v_mov_b32 v{V+4}, s84
v_mov_b32 v{V+7}, s87
v_mov_b32 v{V+5}, {HUGE}
v_cndmask_b32 v{V+4}, v{V+4}, v{V+5}, s[74:75]
v_cndmask_b32 v{V+7}, v{V+7}, v{V+5}, s[74:75]
v_lshl_add_u32 v{V}, v{M}, 2, v{V}
v_lshl_add_u32 v{V+4}, v{M}, 2, v{V+4}
v_add_u32 v{V+1}, v{V}, v{V+1}
v_add_u32 v{V+5}, s85, v{V+4}
v_mul_f32 v{V+2}, v{V+2}, v{AB[t]}
v_mul_f32 v{V+6}, s86, v{AB[t]}
""")
            for i in range(8):
                e(f"v_fma_f32 v{a+i}, v{CS[f]+i}, v{AB[t]+1}, v{a+i}")
            for i in range(8):
                e(f"v_mul_f32 v{a+i}, v{a+i}, v{V+2 if i < 4 else V+6}")
            P = 40
            for i in range(4):
                e(f"""v_cvt_pk_bf16_f32 v{P+i}, v{a+2*i}, v{a+2*i+1}
v_mul_f32 v{P+4+i}, v{a+2*i}, v{a+2*i}
v_fma_f32 v{P+4+i}, v{a+2*i+1}, v{a+2*i+1}, v{P+4+i}""")
            for i, ad in enumerate([V, V+1, V+4, V+5]):
                e(f"buffer_store_dword v{P+i}, v{ad}, s[{WSR}:{WSR+3}], 0 offen")
            for sh in ["row_shr:1", "row_shr:2", "row_shr:4", "row_shr:8"]:
                for i in range(4):
                    e(f"v_max_f32_dpp v{P+4+i}, v{P+4+i}, v{P+4+i} {sh} row_mask:0xf bank_mask:0xf")
            for i in range(4):
                e(f"v_max_f32_dpp v{P+4+i}, v{P+4+i}, v{P+4+i} row_bcast:15 row_mask:0xa bank_mask:0xf")
            e(f"""s_mov_b32 exec_lo, 0x80000000
s_mov_b32 exec_hi, 0x80000000
buffer_store_dword v{P+4}, v{V+3}, s[{WSR}:{WSR+3}], 0 offen
buffer_store_dword v{P+5}, v{V+3}, s[{WSR}:{WSR+3}], 0 offen offset:256
buffer_store_dword v{P+6}, v{V+7}, s[{WSR}:{WSR+3}], 0 offen
buffer_store_dword v{P+7}, v{V+7}, s[{WSR}:{WSR+3}], 0 offen offset:256
s_mov_b64 exec, -1
""")
        k.label(Lnext)
    e(f"s_branch {LDONE}")
    k.label(LV)
    mainloop(True)
    stats_final(True)
    RW = 160
    CSL = [21, 26]
    ADR = [(18, 19), (20, 27)]
    e(f"""s_lshl_b32 s46, s61, 7
v_lshl_add_u32 v{T+5}, v{M}, 2, s46
ds_read_b32 v{CSL[0]}, v{T+5} offset:{SCR+1024}
s_lshl_b32 s46, s62, 7
v_lshl_add_u32 v{T+5}, v{M}, 2, s46
ds_read_b32 v{CSL[1]}, v{T+5} offset:{SCR+1024}
s_lshl_b32 s46, s38, 8
v_lshl_add_u32 v{T+8}, v{HALF}, 5, s46
v_xor_b32 v{T+9}, 256, v{T+8}
s_lshl_b32 s63, s36, 2
s_xor_b32 s64, s38, 1
s_add_u32 s64, s64, s63
s_add_u32 s63, s63, s38
s_sub_u32 s65, s37, 11
s_lshl_b32 s65, s65, 7
v_mov_b32 v32, s47
v_mov_b32 v33, s47
v_mov_b32 v34, s47
v_mov_b32 v35, s47
""")
    def rwread(t):
        for a in range(4):
            e(f"""ds_read_b128 {vr(RW+8*a,4)}, v{T+8+t} offset:{SCR+a*64}
ds_read_b128 {vr(RW+8*a+4,4)}, v{T+8+t} offset:{SCR+a*64+16}""")
    rwread(0)
    SLOTC = 0 | (13 << 5) | (9 << 10) | (4 << 15) | (17 << 20)
    for f, sft in enumerate([61, 62]):
        AD, AO = ADR[f]
        e(f"""s_lshl_b32 s66, s{sft}, 5
s_add_u32 s66, s66, s65
v_add_u32 v{T+2}, s66, v{M}
v_mul_u32_u24 v{T+3}, 3641, v{T+2}
v_lshrrev_b32 v{T+3}, 16, v{T+3}
v_mul_u32_u24 v{T+6}, 18, v{T+3}
v_sub_u32 v{T+2}, v{T+2}, v{T+6}
v_lshrrev_b32 v{T+6}, 2, v{T+2}
v_mul_u32_u24 v{T+6}, 5, v{T+6}
s_mov_b32 s46, {SLOTC}
v_bfe_u32 v{T+6}, s46, v{T+6}, 5
v_and_b32 v{T+7}, 3, v{T+2}
v_add_u32 v{T+6}, v{T+6}, v{T+7}
s_mov_b32 s46, {KVH}
v_mul_lo_u32 v{T+3}, v{T+3}, s46
v_mul_u32_u24 v{T+7}, 304, v{HALF}
v_add_u32 v{T+3}, v{T+3}, v{T+7}
s_cmp_ge_u32 s66, 576
s_cselect_b32 s46, {HUGE}, 0
v_add_u32 v{T+3}, s46, v{T+3}
v_lshl_add_u32 v{AD}, v{T+6}, 4, v{T+3}
v_add_u32 v{AO}, 128, v{T+3}
v_cmp_eq_u32 vcc, 0, v{T+2}
v_mov_b32 v{T+7}, {HUGE}
s_nop 0
v_cndmask_b32 v{AO}, v{T+7}, v{AO}, vcc
""")
    for t, stt in enumerate([63, 64]):
        e(f"""s_lshr_b32 s70, s{stt}, 1
s_mul_i32 s70, s70, {BLK}
s_and_b32 s71, s{stt}, 1
s_mul_i32 s71, s71, 1216
s_add_u32 s70, s70, s71
s_add_u32 s70, s70, 2048
s_waitcnt lgkmcnt(0)
""")
        for f in range(2):
            a = acc(t, f)
            for r in range(16):
                e(f"v_fma_f32 v{a+r}, v{CSL[f]}, v{RW+2*r+1}, v{a+r}")
            for r in range(16):
                e(f"v_mul_f32 v{a+r}, v{a+r}, v{RW+2*r}")
        if t == 0:
            rwread(1)
        for f in range(2):
            a = acc(t, f)
            AD, AO = ADR[f]
            P = 40 + 8 * f
            for i in range(8):
                e(f"v_cvt_pk_bf16_f32 v{P+i}, v{a+2*i}, v{a+2*i+1}")
            e(f"""buffer_store_dwordx4 {vr(P,4)}, v{AD}, s[{WSR}:{WSR+3}], s70 offen
buffer_store_dwordx4 {vr(P+4,4)}, v{AD}, s[{WSR}:{WSR+3}], s70 offen offset:608
buffer_store_dwordx4 v[32:35], v{AO}, s[{WSR}:{WSR+3}], s70 offen
buffer_store_dwordx4 v[32:35], v{AO}, s[{WSR}:{WSR+3}], s70 offen offset:608
""")
    k.label(LDONE)
    if PROF:
        e(f"""s_memtime s[94:95]
s_waitcnt vmcnt(0)
s_memtime s[96:97]
s_memrealtime s[78:79]
s_waitcnt lgkmcnt(0)
s_mov_b32 m0, 10
s_nop 0
v_writelane_b32 v200, s98, m0
s_mov_b32 m0, 11
s_nop 0
v_writelane_b32 v200, s78, m0
s_sub_u32 s90, s90, s88
s_sub_u32 s92, s92, s88
s_sub_u32 s94, s94, s88
s_sub_u32 s96, s96, s88
v_mov_b32 v192, s90
v_mov_b32 v193, s92
v_mov_b32 v194, s94
v_mov_b32 v195, s96
s_lshl_b32 s46, s2, 2
s_add_u32 s46, s46, s38
s_lshl_b32 s46, s46, 4
s_add_u32 s46, s46, 0xF10000
v_mov_b32 v196, 0
s_mov_b64 exec, 1
buffer_store_dwordx4 v[192:195], v196, s[{WSR}:{WSR+3}], s46 offen
s_mov_b64 exec, 0xffff
s_lshl_b32 s46, s2, 2
s_add_u32 s46, s46, s38
s_lshl_b32 s46, s46, 6
s_add_u32 s46, s46, 0xF40000
v_lshlrev_b32 v196, 2, v1
buffer_store_dword v200, v196, s[{WSR}:{WSR+3}], s46 offen
s_mov_b64 exec, -1""")
    k.label(Lend)
    e("s_endpgm")
    return k, 208, 102
```

```python
from asmlib import *
from layout import *
import os
K2_LDS = 152 * 1024
PROF = int(os.environ.get("PROF", "0"))
PRIO = int(os.environ.get("K2PRIO", "1"))
ZROW = int(os.environ.get("K2ZROW", "1"))
BARALL = int(os.environ.get("K2BAR", "0"))

def gen_k2():
    k = K("k2_kernel")
    e = k.e
    def stamp(i):
        if PROF:
            e(f"s_memtime s[{40+2*i}:{41+2*i}]")
    WSR = 8
    LANE, M, HALF, L16 = 1, 2, 3, 4
    AKM, AVT, AKR = 5, 6, 7
    BKM, BVT, BKR = 8, 9, 10
    T = 11
    QM = 16
    QR = 20
    KR = 22
    KM = [24, 28]
    VF = [32, 36, 40, 44]
    P = 48
    O = 64
    SA, SB = 80, 112
    Lend = "k2_end"
    e(f"""s_cmp_ge_u32 s2, 256
s_cbranch_scc1 {Lend}
s_load_dwordx2 s[4:5], s[0:1], 80
{"s_memtime s[40:41]" if PROF else ""}
{"s_memrealtime s[48:49]" if PROF else ""}
v_and_b32 v{LANE}, 63, v0
v_lshrrev_b32 v{T}, 6, v0
v_and_b32 v{M}, 31, v0
v_readfirstlane_b32 s14, v{T}
v_bfe_u32 v{HALF}, v0, 5, 1
v_lshlrev_b32 v{L16}, 4, v{LANE}
s_and_b32 s12, s2, 7
s_lshl_b32 s12, s12, 2
s_bfe_u32 s16, s2, 0x20003
s_add_u32 s12, s12, s16
s_lshr_b32 s13, s2, 5
s_lshl_b32 s15, s13, 3
s_add_u32 s15, s15, s14
s_mul_i32 s16, s12, {KVH}
s_lshl_b32 s17, s12, 6
s_add_u32 s17, s17, s15
s_lshl_b32 s18, s17, 10
s_add_u32 s18, s18, {WS_QM}
s_lshl_b32 s19, s17, 7
s_add_u32 s19, s19, {WS_QR}
s_lshl_b32 s20, s12, 8
s_add_u32 s20, s20, {WS_KNM}
v_lshlrev_b32 v{T}, 2, v{M}
v_lshlrev_b32 v{T+1}, 2, v{LANE}
s_lshl_b32 s21, s14, 10
s_add_u32 s22, s16, s21
s_waitcnt lgkmcnt(0)
""")
    srd(k, WSR, 4, WS_SIZE)
    W = f"s[{WSR}:{WSR+3}]"
    def dma():
        return f"""s_mov_b32 m0, s21
s_add_u32 s21, s21, 8192
buffer_load_dwordx4 v{L16}, {W}, s22 offen lds
s_add_u32 s22, s22, 8192"""
    e(dma())
    e(f"""buffer_load_dwordx4 {vr(QM,4)}, v{L16}, {W}, s18 offen
buffer_load_dword v{QR}, v{T}, {W}, s19 offen
buffer_load_dword v{T+2}, v{T+1}, {W}, s20 offen
s_add_u32 s20, s20, {WS_KNR-WS_KNM}
buffer_load_dword v{T+3}, v{T+1}, {W}, s20 offen
""")
    e(dma()); e(dma())
    SLC = 0 | (9 << 5) | (13 << 10) | (4 << 15) | (17 << 20)
    e(f"""v_lshrrev_b32 v{T}, 2, v{M}
v_mul_u32_u24 v{T}, 5, v{T}
s_mov_b32 s23, {SLC}
v_bfe_u32 v{T}, s23, v{T}, 5
v_and_b32 v{T+4}, 3, v{M}
v_add_u32 v{T}, v{T}, v{T+4}
v_cmp_lt_u32 s[28:29], 17, v{M}
v_mov_b32 v{KR+1}, 0x3f803f80
v_mul_u32_u24 v{T+4}, 304, v{HALF}
v_cndmask_b32 v{T}, v{T}, 8, s[28:29]
v_lshl_add_u32 v{BVT}, v{T}, 4, v{T+4}
v_add_u32 v{BVT}, 2048, v{BVT}
""")
    if ZROW:
        e(f"""v_and_b32 v{T+4}, 27, v{M}
v_cmp_lt_u32 s[28:29], 18, v{T+4}
v_cmp_eq_u32 s[30:31], 16, v{T+4}
v_cmp_eq_u32 s[32:33], 17, v{T+4}
v_cmp_lt_u32 s[34:35], 19, v{M}
s_or_b64 s[30:31], s[30:31], s[32:33]
s_and_b64 s[30:31], s[30:31], s[34:35]
s_or_b64 s[28:29], s[28:29], s[30:31]
v_mov_b32 v{T+4}, 0x40000
v_cndmask_b32 v{BVT}, v{BVT}, v{T+4}, s[28:29]
""")
    e(f"""v_mov_b32 v{BKM}, v{L16}
v_add_u32 v{BKR}, 4480, v{T+1}
v_mov_b32 v{T+4}, 0
s_waitcnt vmcnt(2)
v_add_f32 v{T+2}, v{T+2}, v{T+3}
v_dot2_f32_bf16 v{T+4}, v{QM}, v{QM}, v{T+4}
v_dot2_f32_bf16 v{T+4}, v{QM+1}, v{QM+1}, v{T+4}
v_max_f32_dpp v{T+2}, v{T+2}, v{T+2} row_shr:1 row_mask:0xf bank_mask:0xf
v_dot2_f32_bf16 v{T+4}, v{QM+2}, v{QM+2}, v{T+4}
v_dot2_f32_bf16 v{T+4}, v{QM+3}, v{QM+3}, v{T+4}
v_max_f32_dpp v{T+2}, v{T+2}, v{T+2} row_shr:2 row_mask:0xf bank_mask:0xf
s_nop 1
v_max_f32_dpp v{T+2}, v{T+2}, v{T+2} row_shr:4 row_mask:0xf bank_mask:0xf
v_mov_b32 v{T+3}, v{T+4}
s_nop 0
v_max_f32_dpp v{T+2}, v{T+2}, v{T+2} row_shr:8 row_mask:0xf bank_mask:0xf
v_permlane32_swap_b32 v{T+3}, v{T+4}
s_nop 0
v_max_f32_dpp v{T+2}, v{T+2}, v{T+2} row_bcast:15 row_mask:0xa bank_mask:0xf
v_add_f32 v{T+4}, v{T+3}, v{T+4}
v_dot2_f32_bf16 v{T+4}, v{QR}, v{QR}, v{T+4}
v_max_f32_dpp v{T+2}, v{T+2}, v{T+2} row_bcast:31 row_mask:0xc bank_mask:0xf
s_nop 1
v_readlane_b32 s24, v{T+2}, 63
s_nop 1
v_mul_f32 v{T+4}, s24, v{T+4}
v_sqrt_f32 v{T+4}, v{T+4}
s_mov_b32 s26, 0
v_mul_f32 v{T+4}, {f32hex(-1.02)}, v{T+4}
v_cvt_pk_bf16_f32 v{QR+1}, v{T+4}, 0
s_waitcnt vmcnt(0)
s_barrier
s_mov_b32 s27, 0
s_lshr_b32 s36, s14, 2
""")
    if PRIO == 2:
        e("s_cmp_eq_u32 s36, 0\ns_cbranch_scc1 k2_p3\ns_setprio 1")
        k.label("k2_p3")
    LMAIN = "k2_main"
    stamp(1)
    k.label(LMAIN)
    RM = lambda Sn: f"v_mfma_f32_32x32x4_2b_bf16 {vr(Sn,32)}, {vr(KR,2)}, {vr(QR,2)}, 0"
    MM = lambda Sn, t: f"v_mfma_f32_32x32x16_bf16 {vr(Sn+16*t,16)}, {vr(KM[t],4)}, {vr(QM,4)}, {vr(Sn+16*t,16)}"
    PV = lambda i: f"v_mfma_f32_32x32x16_bf16 {vr(O,16)}, {vr(VF[i],4)}, {vr(P+4*i,4)}, {vr(O,16)}"
    rdV = lambda i, blk: f"ds_read_b128 {vr(VF[i],4)}, v{AVT} offset:{blk*BLK+608*i}"
    rdKM = lambda t, blk: f"ds_read_b128 {vr(KM[t],4)}, v{AKM} offset:{blk*BLK+1024*t}"
    rdKR = lambda blk: f"ds_read_b32 v{KR}, v{AKR} offset:{blk*BLK}"
    e(f"""v_mov_b32 v{AKM}, v{BKM}
v_mov_b32 v{AVT}, v{BVT}
v_mov_b32 v{AKR}, v{BKR}
{rdKR(0)}
{rdKM(0,0)}
{rdKM(1,0)}
""")
    for r in list(range(O, O + 16)) + list(range(P + 12, P + 16)) + list(range(VF[3], VF[3] + 4)):
        e(f"v_mov_b32 v{r}, 0")
    e(f"""s_waitcnt lgkmcnt(2)
{RM(SA)}
{rdKR(1)}
{rdV(0,0)}
s_nop 15
s_nop 1
s_waitcnt lgkmcnt(2)
{MM(SA,0)}
{rdKM(0,1)}
{rdV(1,0)}
{MM(SA,1)}
{rdKM(1,1)}
{rdV(2,0)}
s_mov_b32 s25, s26
s_nop 4
""")
    def block(b, Sc, Sn, extra=None):
        E = lambda i: f"v_exp_f32 v{Sc+i}, v{Sc+i}"
        C = lambda i: f"v_cvt_pk_bf16_f32 v{P+i}, v{Sc+2*i}, v{Sc+2*i+1}"
        Wt = "s_waitcnt lgkmcnt(6)"
        seq = [Wt, "NOP", PV(3), rdV(3, b),
               E(0), E(1), E(2), E(3), C(0),
               Wt, RM(Sn), rdKR(b + 2),
               E(4), E(5), C(1), E(6), E(7), C(2), C(3), E(8), E(9),
               Wt, PV(0), rdV(0, b + 1),
               E(10), E(11), C(4), E(12), E(13), C(5), E(14), E(15),
               Wt, MM(Sn, 0), rdKM(0, b + 2),
               C(6), C(7), E(16), E(17), E(18),
               Wt, PV(1), rdV(1, b + 1),
               E(19), C(8), E(20), E(21), C(9),
               Wt, MM(Sn, 1), rdKM(1, b + 2),
               E(22), E(23), C(10), C(11), E(24), E(25),
               Wt, PV(2), rdV(2, b + 1),
               E(26), E(27), C(12), E(28), E(29), C(13), E(30), E(31), C(14), C(15)]
        NO = os.environ.get("K2NO", "")
        for x in seq:
            if ("mfma" in NO and x.startswith("v_mfma")) or ("exp" in NO and x.startswith("v_exp")) or ("lds" in NO and x.startswith("ds_read")) \
               or ("pv" in NO and x.startswith("v_mfma") and f"{vr(O,16)}," in x) or ("rm" in NO and "2b" in x) or ("cvt" in NO and x.startswith("v_cvt")):
                continue
            if x == "NOP":
                e(extra if extra else "s_nop 0")
            else:
                e(x)
    L = "k2_loop"; LB = "k2_body"; LND = "k2_nodma"
    k.lines.append(".p2align 3")
    k.label(L)
    e(f"""s_cmp_eq_u32 s25, 10
s_cbranch_scc1 k2_pf
s_cmp_gt_u32 s25, 9
s_cbranch_scc1 {LB}
s_bitcmp0_b32 s25, 0
s_cbranch_scc1 {LND}
s_waitcnt vmcnt(0)
s_barrier""")
    k.label(LND)
    e(f"""s_cmp_gt_u32 s25, 7
s_cbranch_scc1 {LB}
{dma()}
{dma()}""")
    k.label(LB)
    if PRIO == 1:
        e("s_xor_b32 s36, s36, 1\ns_cmp_eq_u32 s36, 1\ns_cbranch_scc1 k2_p1\ns_setprio 0\ns_branch k2_p2")
        k.label("k2_p1"); e("s_setprio 1"); k.label("k2_p2")
    block(0, SA, SB)
    block(1, SB, SA)
    e(f"""v_add_u32 v{AKM}, {2*BLK}, v{AKM}
v_add_u32 v{AVT}, {2*BLK}, v{AVT}
v_add_u32 v{AKR}, {2*BLK}, v{AKR}
s_add_u32 s25, s25, 1
s_add_u32 s27, s27, 1
s_cmp_lt_u32 s27, 16
s_cbranch_scc1 {L}
s_waitcnt lgkmcnt(0)
{PV(3)}
s_nop 15
""")
    stamp(2)
    LOK = "k2_ok"; LFB = "k2_fbloop"
    MX = T
    e(f"""v_cmp_nle_f32 vcc, {f32hex(2.0**-90)}, v{O+10}
s_cmp_lg_u32 s26, {1 if os.environ.get("K2NO") else 0}
s_cbranch_scc1 {LOK}
s_cbranch_vccz {LOK}
v_mov_b32 v{QR+1}, 0
v_mov_b32 v{MX}, 0xff800000
v_mov_b32 v{AKM}, v{BKM}
v_mov_b32 v{AKR}, v{BKR}
s_mov_b32 s27, 0
""")
    k.label(LFB)
    e(f"""{rdKR(0)}
{rdKM(0,0)}
{rdKM(1,0)}
s_waitcnt lgkmcnt(0)
{RM(SA)}
s_nop 15
s_nop 3
{MM(SA,0)}
{MM(SA,1)}
v_add_u32 v{AKM}, {BLK}, v{AKM}
v_add_u32 v{AKR}, {BLK}, v{AKR}
s_nop 15
""")
    for i in range(16):
        e(f"v_max3_f32 v{MX}, v{SA+2*i}, v{SA+2*i+1}, v{MX}")
    e(f"""s_add_u32 s27, s27, 1
s_cmp_lt_u32 s27, 32
s_cbranch_scc1 {LFB}
v_mov_b32 v{MX+1}, v{MX}
s_nop 1
v_permlane32_swap_b32 v{MX}, v{MX+1}
v_max_f32 v{MX}, v{MX}, v{MX+1}
v_sub_f32 v{MX}, 0, v{MX}
v_cvt_pk_bf16_f32 v{MX+1}, v{MX}, v{MX}
v_and_b32 v{MX+1}, 0xffff0000, v{MX+1}
v_sub_f32 v{MX+2}, v{MX}, v{MX+1}
v_cvt_pk_bf16_f32 v{QR+1}, v{MX+1}, v{MX+2}
s_mov_b32 s26, 11
s_mov_b32 s27, 0
s_branch {LMAIN}
""")
    k.label("k2_pf")
    PF = int(os.environ.get("K2PF", "1"))
    if PF:
        e(f"""s_load_dwordx4 s[28:31], s[0:1], 40
s_load_dwordx2 s[32:33], s[0:1], 56
v_mul_u32_u24 v{T}, 405, v0
v_lshrrev_b32 v{T}, 16, v{T}
v_mul_u32_u24 v{T+1}, 162, v{T}
v_sub_u32 v{T+1}, v0, v{T+1}
v_mul_u32_u24 v{T+2}, 7282, v{T+1}
v_lshrrev_b32 v{T+2}, 16, v{T+2}
v_mul_u32_u24 v{T+3}, 9, v{T+2}
v_sub_u32 v{T+1}, v{T+1}, v{T+3}
s_lshr_b32 s34, s2, 3
s_mul_i32 s34, s34, 18
v_add_u32 v{T+2}, s34, v{T+2}
s_and_b32 s35, s2, 7
s_mul_i32 s34, s35, 1152
s_mul_i32 s35, s35, {576*1152}
v_mul_u32_u24 v{T+3}, 9216, v{T+2}
v_add_u32 v{T+3}, s34, v{T+3}
v_mul_u32_u24 v{T+4}, 1152, v{T+2}
v_add_u32 v{T+4}, s35, v{T+4}
v_lshl_add_u32 v{T+3}, v{T+1}, 7, v{T+3}
v_lshl_add_u32 v{T+4}, v{T+1}, 7, v{T+4}
v_cmp_eq_u32 s[34:35], 0, v{T}
v_cmp_eq_u32 s[36:37], 1, v{T}
v_cmp_eq_u32 s[38:39], 2, v{T}
s_waitcnt lgkmcnt(0)
s_mov_b64 exec, s[34:35]
s_cbranch_execz k2_pf1
global_load_dword v144, v{T+3}, s[28:29]""")
        k.label("k2_pf1")
        e(f"""s_mov_b64 exec, s[36:37]
s_cbranch_execz k2_pf2
global_load_dword v144, v{T+3}, s[30:31]""")
        k.label("k2_pf2")
        e(f"""s_mov_b64 exec, s[38:39]
s_cbranch_execz k2_pf3
global_load_dword v144, v{T+4}, s[32:33]""")
        k.label("k2_pf3")
        if int(os.environ.get("K2PF2", "1")):
            e(f"""s_mov_b64 exec, -1
s_load_dwordx2 s[30:31], s[0:1], 0
s_lshr_b32 s34, s2, 3
s_mul_i32 s35, s34, {162*128}
s_add_u32 s35, s35, {WS_WOP}
v_lshlrev_b32 v{T}, 7, v0
s_movk_i32 s36, 162
v_cmp_gt_u32 s[38:39], s36, v0
v_subrev_u32 v{T+1}, 162, v0
s_mul_i32 s34, s34, 72
v_add_u32 v{T+2}, s34, v{T+1}
v_mul_u32_u24 v{T+3}, 1821, v{T+2}
v_lshrrev_b32 v{T+3}, 20, v{T+3}
v_mul_u32_u24 v{T+4}, 576, v{T+3}
v_sub_u32 v{T+2}, v{T+2}, v{T+4}
s_and_b32 s34, s2, 7
v_lshl_add_u32 v{T+3}, v{T+3}, 3, s34
s_mov_b32 s34, 73728
v_mul_lo_u32 v{T+3}, v{T+3}, s34
v_lshl_add_u32 v{T+3}, v{T+2}, 7, v{T+3}
s_movk_i32 s36, 72
v_cmp_gt_u32 s[36:37], s36, v{T+1}
s_mov_b64 exec, s[38:39]
s_cbranch_execz k2_pf5
buffer_load_dword v144, v{T}, {W}, s35 offen""")
            k.label("k2_pf5")
            e(f"""s_waitcnt lgkmcnt(0)
s_mov_b64 exec, s[36:37]
s_cbranch_execz k2_pf6
global_load_dword v144, v{T+3}, s[30:31]""")
            k.label("k2_pf6")
        e(f"""s_mov_b64 exec, -1
s_cmp_lg_u32 s14, 7
s_cbranch_scc1 k2_pf4
s_getpc_b64 s[28:29]
s_add_u32 s28, s28, k3_kernel-.
s_addc_u32 s29, s29, 0
v_lshlrev_b32 v{T}, 7, v{LANE}
global_load_dword v144, v{T}, s[28:29]
v_add_u32 v{T}, 8192, v{T}
s_bfm_b64 exec, (k34_end-k3_kernel-8192+127)>>7, 0
global_load_dword v144, v{T}, s[28:29]
s_mov_b64 exec, -1""")
        k.label("k2_pf4")
        e(f"""s_lshr_b32 s36, s14, 2
s_and_b32 s37, s25, 1
s_xor_b32 s36, s36, s37""")
    e(f"s_branch {LB}")
    k.label(LOK)
    e(f"""v_rcp_f32 v{T}, v{O+10}
s_mul_i32 s18, s15, 36
s_add_u32 s19, s18, s12
s_lshl_b32 s19, s19, 10
s_add_u32 s19, s19, {WS_OP}
s_lshr_b32 s20, s12, 3
s_add_u32 s18, s18, s20
s_add_u32 s18, s18, 32
s_lshl_b32 s18, s18, 10
s_bfe_u32 s20, s12, 0x10002
s_lshl_b32 s20, s20, 9
s_add_u32 s18, s18, s20
s_and_b32 s20, s12, 3
s_lshl_b32 s20, s20, 2
s_add_u32 s18, s18, s20
s_add_u32 s18, s18, {WS_OP}
""")
    for i in range(10):
        e(f"v_mul_f32 v{O+i}, v{O+i}, v{T}")
    for i in range(5):
        e(f"v_cvt_pk_bf16_f32 v{P+i}, v{O+2*i}, v{O+2*i+1}")
    e(f"""buffer_store_dwordx4 {vr(P,4)}, v{L16}, {W}, s19 offen
s_mov_b32 exec_hi, 0
buffer_store_dword v{P+4}, v{L16}, {W}, s18 offen
""")
    if PROF:
        e(f"""s_waitcnt vmcnt(0)
s_memtime s[46:47]
s_memrealtime s[50:51]
s_waitcnt lgkmcnt(0)
s_sub_u32 s42, s42, s40
s_sub_u32 s44, s44, s40
s_sub_u32 s46, s46, s40
s_sub_u32 s50, s50, s48
v_mov_b32 v20, s42
v_mov_b32 v21, s44
v_mov_b32 v22, s46
v_mov_b32 v23, s50
s_lshl_b32 s18, s2, 3
s_add_u32 s18, s18, s14
s_lshl_b32 s18, s18, 4
s_add_u32 s18, s18, 0xF00000
v_mov_b32 v24, 0
s_mov_b32 exec_lo, 1
buffer_store_dwordx4 v[20:23], v24, {W}, s18 offen""")
    k.label(Lend)
    e("s_endpgm")
    return k, 145, 56
```

```python
from asmlib import *
from layout import *
import os
PROF = int(os.environ.get("PROF", "0"))
NG = 256
NP2 = 256
NFFN = 144
L_X2 = 0
L_RED = 1152
L_PART = 1280
L_ACT = 1536
L_FLAG = 1792
L_YP = 4096
L_WG, L_WU = 4096, 40960
K34_LDS = 78080
L_SYNC = 77824
K34_GRID = 256
K34_BLOCK = 512

def stamp(k, i):
    if PROF:
        k.e(f"s_memrealtime s[{80+2*i}:{81+2*i}]")
def dump(k, n):
    if PROF:
        k.e("s_waitcnt lgkmcnt(0)")
        k.e("s_mov_b64 exec, 1")
        k.e(f"s_lshl_b32 s78, s77, 7\ns_lshl_b32 s79, s22, 5\ns_add_u32 s78, s78, s79\ns_add_u32 s78, s78, 0xF20000\nv_mov_b32 v254, 0")
        for i in range(n):
            k.e(f"v_mov_b32 v255, s{80+2*i}\nbuffer_store_dword v255, v254, s[8:11], s78 offen offset:{4*i}")

def gen_gemm(k):
    e = k.e
    WSR, XR, WRR = 8, 12, 16
    LANE, M, HALF, L16 = 1, 2, 3, 4
    T = 5
    FR = 32
    ACC = 172
    e(f"""s_setprio 2
s_load_dwordx2 s[6:7], s[0:1], 0
s_load_dwordx2 s[20:21], s[0:1], 32
v_and_b32 v{M}, 31, v0
v_bfe_u32 v{HALF}, v0, 5, 1
v_lshlrev_b32 v{L16}, 4, v{LANE}
s_and_b32 s23, s2, 31
s_lshr_b32 s24, s2, 5
s_mul_i32 s25, s23, {2*36*1024}
s_mul_i32 s26, s22, {9*1024}
s_add_u32 s25, s25, s26
s_add_u32 s25, s25, {WS_OP}
s_mul_i32 s27, s24, {2*36*1024}
s_add_u32 s27, s27, s26
s_add_u32 s27, s27, {WS_WOP}
s_add_u32 s28, s25, {36*1024}
s_add_u32 s29, s27, {36*1024}
s_bfe_u32 s40, s24, 0x10001
s_add_u32 s40, s40, 16
s_mul_i32 s41, s40, {36*1024}
s_add_u32 s41, s41, s26
s_add_u32 s41, s41, {WS_WOP}
s_and_b32 s42, s24, 1
s_lshr_b32 s43, s24, 2
""")
    if os.environ.get("GOFF"):
        e("s_branch k3_noextra")
    e("""s_cmp_eq_u32 s42, 1
s_cselect_b32 s44, s28, s25
s_cselect_b32 s28, s25, s28
s_mov_b32 s25, s44""")
    W = f"s[{WSR}:{WSR+3}]"
    def loads(ks):
        b = FR + 20 * (ks % 7)
        off = (ks % 4) * 1024
        if ks and ks % 4 == 0:
            e("s_add_u32 s25, s25, 4096\ns_add_u32 s27, s27, 4096\ns_add_u32 s28, s28, 4096\ns_add_u32 s29, s29, 4096\ns_add_u32 s41, s41, 4096")
        e(f"""buffer_load_dwordx4 {vr(b,4)}, v{L16}, {W}, s25 offen offset:{off}
buffer_load_dwordx4 {vr(b+8,4)}, v{L16}, {W}, s27 offen offset:{off}
buffer_load_dwordx4 {vr(b+4,4)}, v{L16}, {W}, s28 offen offset:{off}
buffer_load_dwordx4 {vr(b+12,4)}, v{L16}, {W}, s29 offen offset:{off}
buffer_load_dwordx4 {vr(b+16,4)}, v{L16}, {W}, s41 offen offset:{off}""")
    for ks in range(7): loads(ks)
    e("s_waitcnt lgkmcnt(0)")
    srd(k, XR, 6, S * D * 2)
    srd(k, WRR, 20, D * 2)
    TK, FQ = 2, 3
    WADR, RADR, GOFF_, WOFF_ = 5, 6, 7, 31
    e(f"""v_and_b32 v{T+2}, 15, v{M}
v_lshlrev_b32 v{WADR}, 1, v{HALF}
v_xor_b32 v{WADR}, v{WADR}, v{T+2}
v_lshlrev_b32 v{WADR}, 4, v{WADR}
v_lshl_add_u32 v{WADR}, v{M}, 8, v{WADR}
s_lshl_b32 s36, s22, 14
v_add_u32 v{WADR}, s36, v{WADR}
v_lshlrev_b32 v30, 6, v{M}
v_lshl_add_u32 v30, v{HALF}, 5, v30
s_lshl_b32 s36, s22, 11
v_add_u32 v30, s36, v30
v_lshrrev_b32 v{TK}, 2, v{LANE}
v_and_b32 v{FQ}, 3, v{LANE}
v_lshlrev_b32 v{RADR}, 2, v{FQ}
v_xor_b32 v{RADR}, v{RADR}, v{TK}
v_lshlrev_b32 v{RADR}, 4, v{RADR}
v_lshl_add_u32 v{RADR}, v{TK}, 8, v{RADR}
s_lshl_b32 s36, s22, 12
v_add_u32 v{RADR}, s36, v{RADR}
v_mul_u32_u24 v{GOFF_}, 1152, v{TK}
v_lshl_add_u32 v29, v{FQ}, 3, v{GOFF_}
v_lshl_add_u32 v{GOFF_}, v{FQ}, 5, v{GOFF_}
v_lshlrev_b32 v{WOFF_}, 5, v{FQ}
v_lshlrev_b32 v28, 3, v{FQ}
s_lshr_b32 s30, s22, 1
s_xor_b32 s31, s30, s42
s_lshl_b32 s32, s23, 1
s_add_u32 s32, s32, s31
s_lshl_b32 s32, s32, 5
s_and_b32 s31, s22, 1
s_lshl_b32 s31, s31, 4
s_add_u32 s32, s32, s31
s_mul_i32 s34, s32, 1152
s_lshl_b32 s35, s24, 7
s_lshl_b32 s47, s40, 6
s_lshl_b32 s46, s43, 5
s_add_u32 s47, s47, s46
s_cmp_eq_u32 s30, 0
s_cselect_b32 s47, s47, {HUGE}
s_add_u32 s46, s34, s47
s_add_u32 s34, s34, s35
""")
    XV, WV, XE, WE = 8, 16, 24, 26
    acc = lambda a, b: ACC + 32 * a + 16 * b
    AE = ACC + 64
    nload = 35
    for ks in range(9):
        b = FR + 20 * (ks % 7)
        e(f"s_waitcnt vmcnt({nload - 5*(ks+1)})")
        for a in range(2):
            for n in range(2):
                c = vr(acc(a, n), 16) if ks else "0"
                e(f"v_mfma_f32_32x32x16_bf16 {vr(acc(a,n),16)}, {vr(b+8+4*n,4)}, {vr(b+4*a,4)}, {c}")
        c = vr(AE, 16) if ks else "0"
        e(f"v_mfma_f32_32x32x16_bf16 {vr(AE,16)}, {vr(b+16,4)}, {vr(b,4)}, {c}")
        if ks < 2:
            loads(ks + 7); nload += 5
        if ks == 1:
            e(f"""buffer_load_dwordx4 {vr(XV,4)}, v{GOFF_}, s[{XR}:{XR+3}], s34 offen
buffer_load_dwordx4 {vr(XV+4,4)}, v{GOFF_}, s[{XR}:{XR+3}], s34 offen offset:16
buffer_load_dwordx4 {vr(WV,4)}, v{WOFF_}, s[{WRR}:{WRR+3}], s35 offen
buffer_load_dwordx4 {vr(WV+4,4)}, v{WOFF_}, s[{WRR}:{WRR+3}], s35 offen offset:16
buffer_load_dwordx2 {vr(XE,2)}, v29, s[{XR}:{XR+3}], s46 offen
buffer_load_dwordx2 {vr(WE,2)}, v28, s[{WRR}:{WRR+3}], s47 offen""")
            nload += 6
    stamp(k, 1)
    WX = 32
    for i, cx in enumerate([1, 4, 5, 8, 9, 12, 13]):
        e(f"v_xor_b32 v{WX+i}, {cx*16}, v{WADR}")
    adr = {0: WADR, 1: WX, 4: WX+1, 5: WX+2, 8: WX+3, 9: WX+4, 12: WX+5, 13: WX+6}
    e("s_nop 4")
    for a in range(2):
        for n in range(2):
            for q in range(4):
                cx = n * 8 + (q >> 1) * 4 + (q & 1)
                e(f"ds_write_b128 v{adr[cx]}, {vr(acc(a,n)+4*q,4)} offset:{a*8192}")
    e(f"""v_add_u32 v30, 0x10000, v30
s_cmp_eq_u32 s43, 0
s_cbranch_scc1 k3_e0
ds_write_b128 v30, {vr(AE+8,4)}
ds_write_b128 v30, {vr(AE+12,4)} offset:16
s_branch k3_e1""")
    k.label("k3_e0")
    e(f"""ds_write_b128 v30, {vr(AE,4)}
ds_write_b128 v30, {vr(AE+4,4)} offset:16""")
    k.label("k3_e1")
    PT = 64
    XF, WF = 160, 180
    e(f"""v_xor_b32 v{WX}, 16, v{RADR}
v_xor_b32 v{WX+1}, 32, v{RADR}
v_xor_b32 v{WX+2}, 48, v{RADR}
s_and_b32 s36, s22, 1
s_lshl_b32 s36, s36, 10
s_add_u32 s36, s36, 0x10000
v_lshlrev_b32 v{WX+3}, 4, v{LANE}
v_add_u32 v{WX+3}, s36, v{WX+3}
s_waitcnt vmcnt(0)""")
    xs = [XV + i for i in range(8)] + [XE, XE + 1]
    ws_ = [WV + i for i in range(8)] + [WE, WE + 1]
    for i in range(10):
        e(f"""v_lshlrev_b32 v{XF+2*i}, 16, v{xs[i]}
v_and_b32 v{XF+2*i+1}, 0xffff0000, v{xs[i]}
v_lshlrev_b32 v{WF+2*i}, 16, v{ws_[i]}
v_and_b32 v{WF+2*i+1}, 0xffff0000, v{ws_[i]}""")
    e("s_waitcnt lgkmcnt(0)\ns_barrier")
    radr = [RADR, WX, WX + 1, WX + 2]
    for src in range(4):
        for i in range(4):
            e(f"ds_read_b128 {vr(PT+20*src+4*i,4)}, v{radr[i]} offset:{src*16384}")
        e(f"ds_read_b128 {vr(PT+20*src+16,4)}, v{WX+3} offset:{src*2048}")
    OWN = PT
    pk = lambda d, a, b: f"v_pk_add_f32 {vr(d,2)}, {vr(a,2)}, {vr(b,2)}"
    e("s_waitcnt lgkmcnt(10)")
    for r in range(0, 20, 2):
        e(pk(PT+r, PT+r, PT+20+r))
    e("s_waitcnt lgkmcnt(0)")
    for r in range(0, 20, 2):
        e(pk(PT+40+r, PT+40+r, PT+60+r))
    for r in range(0, 20, 2):
        e(pk(PT+r, PT+r, PT+40+r))
    HP = 144
    for i in range(10):
        e(f"v_cvt_pk_bf16_f32 v{HP+i}, v{OWN+2*i}, v{OWN+2*i+1}")
    for i in range(10):
        e(f"""v_lshlrev_b32 v{OWN+2*i}, 16, v{HP+i}
v_and_b32 v{OWN+2*i+1}, 0xffff0000, v{HP+i}""")
    for r in range(0, 20, 2):
        e(pk(OWN+r, OWN+r, XF+r))
    for i in range(10):
        e(f"v_cvt_pk_bf16_f32 v{HP+i}, v{OWN+2*i}, v{OWN+2*i+1}")
    e(f"""s_add_u32 s34, s34, {WS_H}
s_add_u32 s46, s46, {WS_H}
buffer_store_dwordx4 {vr(HP,4)}, v{GOFF_}, {W}, s34 offen sc1
buffer_store_dwordx4 {vr(HP+4,4)}, v{GOFF_}, {W}, s34 offen offset:16 sc1
buffer_store_dwordx2 {vr(HP+8,2)}, v29, {W}, s46 offen sc1
s_cmp_eq_u32 s30, 0
s_cselect_b32 s36, -1, 0""")
    for i in range(10):
        e(f"""v_lshlrev_b32 v{OWN+2*i}, 16, v{HP+i}
v_and_b32 v{OWN+2*i+1}, 0xffff0000, v{HP+i}""")
    for r in range(16, 20):
        e(f"v_and_b32 v{OWN+r}, s36, v{OWN+r}")
    S0, S1, S2 = 100, 102, 104
    e(f"""{pk(S0, OWN, OWN+2)}
v_pk_mul_f32 {vr(S1,2)}, {vr(OWN,2)}, {vr(OWN,2)}
v_pk_mul_f32 {vr(S2,2)}, {vr(OWN,2)}, {vr(WF,2)}""")
    for r in range(2, 20, 2):
        if r >= 4:
            e(pk(S0, S0, OWN+r))
        e(f"""v_pk_fma_f32 {vr(S1,2)}, {vr(OWN+r,2)}, {vr(OWN+r,2)}, {vr(S1,2)}
v_pk_fma_f32 {vr(S2,2)}, {vr(OWN+r,2)}, {vr(WF+r,2)}, {vr(S2,2)}""")
    e(f"""v_add_f32 v{S0}, v{S0}, v{S0+1}
v_add_f32 v{S1}, v{S1}, v{S1+1}
v_add_f32 v{S2}, v{S2}, v{S2+1}
s_lshl_b32 s36, s32, 2
s_add_u32 s36, s36, {WS_ST}
v_add_f32_dpp v{S0}, v{S0}, v{S0} quad_perm:[1,0,3,2] row_mask:0xf bank_mask:0xf
v_add_f32_dpp v{S1}, v{S1}, v{S1} quad_perm:[1,0,3,2] row_mask:0xf bank_mask:0xf
v_add_f32_dpp v{S2}, v{S2}, v{S2} quad_perm:[1,0,3,2] row_mask:0xf bank_mask:0xf
v_cmp_eq_u32 s[48:49], 1, v{FQ}
v_add_f32_dpp v{S0}, v{S0}, v{S0} quad_perm:[2,3,0,1] row_mask:0xf bank_mask:0xf
v_add_f32_dpp v{S1}, v{S1}, v{S1} quad_perm:[2,3,0,1] row_mask:0xf bank_mask:0xf
v_add_f32_dpp v{S2}, v{S2}, v{S2} quad_perm:[2,3,0,1] row_mask:0xf bank_mask:0xf
v_cmp_eq_u32 s[50:51], 2, v{FQ}
v_cmp_gt_u32 s[52:53], 3, v{FQ}
v_lshlrev_b32 v{WX}, 2, v{TK}
v_lshl_add_u32 v{WX}, v{FQ}, 13, v{WX}
v_cndmask_b32 v{S0}, v{S0}, v{S1}, s[48:49]
v_cndmask_b32 v{S0}, v{S0}, v{S2}, s[50:51]
s_mov_b64 exec, s[52:53]
buffer_atomic_add_f32 v{S0}, v{WX}, {W}, s36 offen
s_mov_b64 exec, -1""")
    k.label("k3_noextra")
    GFLAG = int(os.environ.get("GFLAG","0"))
    e(f"""{"s_lshl_b32 s36, s2, 2" if GFLAG else "s_bfe_u32 s36, s2, 0x30003"}
{"" if GFLAG else "s_lshl_b32 s36, s36, 7"}
s_add_u32 s36, s36, {WS_CNTG}
v_lshlrev_b32 v{T+2}, 10, v{LANE}
v_mov_b32 v{T+1}, 1""")
    stamp(k, 2)
    e(f"""s_waitcnt vmcnt(0)
s_barrier""")
    stamp(k, 3)
    e(f"""s_cmp_lg_u32 s22, 0
s_cbranch_scc1 k34_end
s_mov_b64 exec, 0xff
{"buffer_store_dword" if GFLAG else "buffer_atomic_add"} v{T+1}, v{T+2}, {W}, s36 offen{" sc1" if GFLAG else ""}""")
    dump(k, 4)
    e("s_endpgm")

def gen_p2(k):
    e = k.e
    WSR, GR, UR, DR, OUTR = 8, 12, 16, 24, 28
    W = f"s[{WSR}:{WSR+3}]"
    LANE, T = 1, 2
    ST = 16
    HR = 40
    RS_ = 56
    HS = 60
    SS = 64
    WD = 72
    WDF = 152
    Lend = "k34_end"
    INV = f32hex(1.0 / 576); EPS = f32hex(1e-5)
    e(f"""s_load_dwordx4 s[32:35], s[0:1], 40
s_load_dwordx4 s[36:39], s[0:1], 56
s_mov_b32 s23, s2
s_add_u32 s77, s2, 256
v_lshlrev_b32 v{T+1}, 4, v0
v_lshlrev_b32 v{T+2}, 4, v{LANE}
v_cmp_gt_u32 s[40:41], 8, v{LANE}
v_add_u32 v{T+3}, 1024, v{T+2}
v_mov_b32 v{T+4}, {HUGE}
s_add_u32 s46, s4, {WS_WSUM}
s_addc_u32 s47, s5, 0
s_load_dword s48, s[46:47], 0
v_cndmask_b32 v{T+3}, v{T+4}, v{T+3}, s[40:41]
s_mov_b32 s42, 72
v_cmp_gt_u32 s[40:41], s42, v0
s_waitcnt lgkmcnt(0)
s_nop 0
v_cndmask_b32 v{T+13}, v{T+4}, v{T+1}, s[40:41]
""")
    srd(k, GR, 32, D * F * 2)
    srd(k, UR, 34, D * F * 2)
    srd(k, DR, 36, D * F * 2)
    srd(k, OUTR, 38, S * D * 2)
    LNOD = "p2_nodma"
    e(f"""s_cmp_ge_u32 s23, {NFFN}
s_cbranch_scc1 {LNOD}
v_mul_u32_u24 v{T+5}, 911, v0
v_lshrrev_b32 v{T+5}, 16, v{T+5}
v_mul_u32_u24 v{T+6}, 72, v{T+5}
v_sub_u32 v{T+6}, v0, v{T+6}
v_mul_u32_u24 v{T+7}, 1152, v{T+5}
v_lshl_add_u32 v{T+7}, v{T+6}, 4, v{T+7}
s_mov_b32 s42, 216
v_cmp_gt_u32 s[40:41], s42, v0
s_and_b32 s59, s23, 7
s_mul_i32 s59, s59, 18
s_lshr_b32 s52, s23, 3
s_add_u32 s59, s59, s52
s_mul_i32 s52, s59, 36864
s_nop 0
v_cndmask_b32 v{T+7}, v{T+4}, v{T+7}, s[40:41]
""")
    for i in range(11):
        e(f"buffer_load_dwordx4 {vr(WD+4*i,4)}, v{T+7}, s[{DR}:{DR+3}], s52 offen")
        if i < 10: e(f"s_add_u32 s52, s52, {3*1152}")
    e(f"""v_lshrrev_b32 v{T+4}, 2, v{LANE}
v_mul_u32_u24 v{T+4}, 9216, v{T+4}
v_and_b32 v{T+8}, 3, v{LANE}
v_lshl_add_u32 v{T+4}, v{T+8}, 4, v{T+4}
s_sub_u32 s53, s22, 2
s_mul_i32 s50, s53, {16*9216}
s_lshl_b32 s51, s59, 6
s_add_u32 s50, s50, s51
s_lshl_b32 s51, s53, 10
s_mov_b32 s53, 0
""")
    k.label(LNOD)
    stamp(k, 1)
    GFLAG = int(os.environ.get("GFLAG","0"))
    def poll(tag, thr):
        e(f"""s_cmp_lg_u32 s22, 0
s_cbranch_scc1 p2_polled{tag}
v_lshlrev_b32 v{T+8}, 7, v{LANE}
s_and_b32 s49, s23, 7
s_lshl_b32 s49, s49, 10
s_add_u32 s49, s49, {WS_CNTG}
s_mov_b32 s54, 0
{"" if GFLAG else "s_mov_b64 exec, 0xff"}""")
        k.label(f"p2_poll{tag}")
        if GFLAG:
            e(f"""buffer_load_dwordx4 v[116:119], v{T+2}, {W}, s49 offen sc1
s_waitcnt vmcnt(0)
v_and_b32 v116, v116, v117
v_and_b32 v118, v118, v119
v_and_b32 v116, v116, v118
v_cmp_ne_u32 vcc, 1, v116""")
        else:
            e(f"""buffer_load_dword v{T+9}, v{T+8}, {W}, s49 offen sc1
s_waitcnt vmcnt(0)
v_cmp_gt_u32 vcc, {thr}, v{T+9}""")
        e(f"""s_add_u32 s54, s54, 1
s_cmp_gt_u32 s54, 0x100000
s_cbranch_vccz p2_pdone{tag}
s_cbranch_scc1 p2_pdone{tag}
s_cmp_ge_u32 s23, {NFFN}
s_cbranch_scc1 p2_slow{tag}
v_cmp_lt_u32 vcc, {int(os.environ.get("P2TH","16"))}, v{T+9}
s_sleep {int(os.environ.get("P2FAST","5"))}
s_cbranch_vccnz p2_poll{tag}
s_sleep {int(os.environ.get("P2SLEEP","12"))}
s_branch p2_poll{tag}""")
        k.label(f"p2_slow{tag}")
        e(f"""s_sleep 48
s_branch p2_poll{tag}""")
        k.label(f"p2_pdone{tag}")
        e("s_mov_b64 exec, -1")
        k.label(f"p2_polled{tag}")
    e(f"""v_mov_b32 v71, {L_SYNC}
v_mov_b32 v116, 0
v_mov_b32 v117, 0
v_mov_b32 v118, 0
v_mov_b32 v119, 0
ds_write_b128 v71, v[116:119]
ds_write_b32 v71, v116 offset:16
s_waitcnt lgkmcnt(0)
s_barrier
s_barrier
s_cmp_ge_u32 s23, {NFFN}
s_cbranch_scc1 p2_skipdma
s_waitcnt vmcnt(0)
s_cmp_lt_u32 s22, 2
s_cbranch_scc1 p2_unp""")
    k.label("p2_dma")
    e(f"""s_add_u32 m0, s51, {L_WG}
s_add_u32 s53, s53, 1
buffer_load_dwordx4 v{T+4}, s[{GR}:{GR+3}], s50 offen lds
s_add_u32 m0, s51, {L_WU}
s_add_u32 s51, s51, 2048
buffer_load_dwordx4 v{T+4}, s[{UR}:{UR+3}], s50 offen lds
s_add_u32 s50, s50, {2*16*9216}
s_cmp_lt_u32 s53, 18
s_cbranch_scc1 p2_dma""")
    k.label("p2_unp")
    for i in range(44):
        e(f"""v_lshlrev_b32 v{WDF+2*i}, 16, v{WD+i}
v_and_b32 v{WDF+2*i+1}, 0xffff0000, v{WD+i}""")
    k.label("p2_skipdma")
    e(f"""s_cmp_ge_u32 s22, 2
s_cbranch_scc1 p2_noam0""")
    poll("b", NG // 8)
    e(f"""s_cmp_eq_u32 s22, 1
s_cbranch_scc1 p2_gow
v_mov_b32 v116, 1
ds_write_b32 v71, v116 offset:16
s_branch p2_go""")
    k.label("p2_gow")
    e(f"""ds_read_b32 v116, v71 offset:16
s_waitcnt lgkmcnt(0)
v_readfirstlane_b32 s54, v116
s_nop 1
s_cmp_eq_u32 s54, 0
s_cbranch_scc0 p2_go
s_sleep 1
s_branch p2_gow""")
    k.label("p2_go")
    stamp(k, 2)
    ST2 = 72
    e(f"""v_mov_b32 v{T+9}, 0
v_lshlrev_b32 v{T+8}, 6, v0
s_mov_b32 s41, {WS_ST}""")
    for st in range(3):
        for q in range(4):
            e(f"buffer_load_dwordx4 {vr(ST2+16*st+4*q,4)}, v{T+8}, {W}, s41 offen offset:{16*q} sc1")
        if st < 2: e("s_add_u32 s41, s41, 8192")
    e(f"""s_lshl_b32 s42, s23, 3
s_lshl_b32 s43, s22, 1
s_add_u32 s42, s42, s43
s_mul_i32 s43, s42, 1152
s_add_u32 s44, s43, {WS_H}
s_lshl_b32 s45, s42, 2
s_add_u32 s45, s45, {WS_ST}
buffer_load_dwordx4 {vr(HR,4)}, v{T+2}, {W}, s44 offen sc1
buffer_load_dwordx4 {vr(HR+4,4)}, v{T+3}, {W}, s44 offen sc1
buffer_load_dwordx4 {vr(HR+8,4)}, v{T+2}, {W}, s44 offen offset:1152 sc1
buffer_load_dwordx4 {vr(HR+12,4)}, v{T+3}, {W}, s44 offen offset:1152 sc1
buffer_load_dwordx2 {vr(RS_,2)}, v{T+9}, {W}, s45 offen sc1
s_add_u32 s45, s45, 8192
buffer_load_dwordx2 {vr(RS_+2,2)}, v{T+9}, {W}, s45 offen sc1
v_lshlrev_b32 v{T+10}, 4, v0
v_sub_u32 v{T+10}, 2047, v{T+10}
s_waitcnt vmcnt(6)
""")
    KEY = 16
    for i in range(16):
        a_, b_, c_ = 120 + 3 * (i % 4), 121 + 3 * (i % 4), 122 + 3 * (i % 4)
        e(f"""v_mul_f32 v{a_}, {INV}, v{ST2+i}
v_mul_f32 v{b_}, {INV}, v{ST2+16+i}
v_fma_f32 v{b_}, -v{a_}, v{a_}, v{b_}
v_max_f32 v{b_}, 0, v{b_}
v_add_f32 v{b_}, {EPS}, v{b_}
v_rsq_f32 v{b_}, v{b_}
v_fma_f32 v{a_}, -v{a_}, s48, v{ST2+32+i}
v_mul_f32 v{a_}, v{a_}, v{b_}
v_ashrrev_i32 v{c_}, 31, v{a_}
v_or_b32 v{c_}, 0x80000000, v{c_}
v_xor_b32 v{a_}, v{a_}, v{c_}
v_and_b32 v{a_}, 0xfffff800, v{a_}
v_subrev_u32 v{c_}, {i}, v{T+10}
v_or_b32 v{KEY+i}, v{a_}, v{c_}""")
    for i in range(5):
        e(f"v_max3_u32 v{KEY+3*i}, v{KEY+3*i}, v{KEY+3*i+1}, v{KEY+3*i+2}")
    e(f"""v_max3_u32 v{KEY}, v{KEY}, v{KEY+3}, v{KEY+6}
v_max3_u32 v{KEY+9}, v{KEY+9}, v{KEY+12}, v{KEY+15}
v_max_u32 v{KEY}, v{KEY}, v{KEY+9}
s_lshl_b32 s49, s22, 3
v_add_u32 v{T+11}, s49, v71
v_max_u32_dpp v{KEY}, v{KEY}, v{KEY} row_shr:1 row_mask:0xf bank_mask:0xf
v_xor_b32 v{T+12}, 8, v{T+11}
v_mov_b32 v{KEY+1}, 1
v_max_u32_dpp v{KEY}, v{KEY}, v{KEY} row_shr:2 row_mask:0xf bank_mask:0xf
s_nop 1
v_max_u32_dpp v{KEY}, v{KEY}, v{KEY} row_shr:4 row_mask:0xf bank_mask:0xf
s_nop 1
v_max_u32_dpp v{KEY}, v{KEY}, v{KEY} row_shr:8 row_mask:0xf bank_mask:0xf
s_nop 1
v_max_u32_dpp v{KEY}, v{KEY}, v{KEY} row_bcast:15 row_mask:0xa bank_mask:0xf
s_nop 1
v_max_u32_dpp v{KEY}, v{KEY}, v{KEY} row_bcast:31 row_mask:0xc bank_mask:0xf
s_mov_b32 exec_lo, 0
s_mov_b32 exec_hi, 0x80000000
ds_write_b64 v{T+11}, v[{KEY}:{KEY+1}]
s_mov_b64 exec, -1
v_readlane_b32 s53, v{KEY}, 63""")
    k.label("p2_spin")
    e(f"""ds_read_b64 v[116:117], v{T+12}
s_waitcnt lgkmcnt(0)
v_readfirstlane_b32 s54, v117
v_readfirstlane_b32 s55, v116
s_nop 1
s_cmp_eq_u32 s54, 0
s_cbranch_scc1 p2_spin
s_max_u32 s53, s53, s55
s_and_b32 s53, s53, 0x7ff
s_sub_u32 s53, 2047, s53
s_sub_u32 s55, s23, {NFFN}
s_cmp_lt_u32 s55, {NP2-1-NFFN}
s_cbranch_scc1 p2_noam
s_mul_i32 s54, s53, 1152
s_add_u32 s55, s54, {WS_H}
s_lshl_b32 s56, s53, 2
s_add_u32 s56, s56, {WS_ST}
buffer_load_dwordx4 {vr(HS,4)}, v{T+13}, {W}, s55 offen sc1
buffer_load_dword v{SS}, v{T+9}, {W}, s56 offen sc1
s_add_u32 s56, s56, 8192
buffer_load_dword v{SS+1}, v{T+9}, {W}, s56 offen sc1
s_add_u32 s56, s56, 8192
buffer_load_dword v{SS+2}, v{T+9}, {W}, s56 offen sc1
""")
    stamp(k, 3)
    def lnparams(vsum, vsq, mb, rs):
        e(f"""v_mul_f32 v{mb}, {INV}, v{vsum}
v_mul_f32 v{rs}, {INV}, v{vsq}
v_fma_f32 v{rs}, -v{mb}, v{mb}, v{rs}
v_max_f32 v{rs}, 0, v{rs}
v_cvt_pk_bf16_f32 v{mb}, v{mb}, v{mb}
v_cvt_pk_bf16_f32 v{rs}, v{rs}, v{rs}
v_and_b32 v{mb}, 0xffff0000, v{mb}
v_and_b32 v{rs}, 0xffff0000, v{rs}
v_add_f32 v{rs}, {EPS}, v{rs}
v_cvt_pk_bf16_f32 v{rs}, v{rs}, v{rs}
v_and_b32 v{rs}, 0xffff0000, v{rs}
v_sqrt_f32 v{rs}, v{rs}
s_nop 0
v_cvt_pk_bf16_f32 v{rs}, v{rs}, v{rs}
v_and_b32 v{rs}, 0xffff0000, v{rs}
v_rcp_f32 v{rs}, v{rs}
s_nop 0""")
    D0 = 132
    def ln_chunk(src, n, mb, rs, hf, x2p):
        for i in range(n):
            e(f"""v_lshlrev_b32 v{hf+2*i}, 16, v{src+i}
v_and_b32 v{hf+2*i+1}, 0xffff0000, v{src+i}""")
        for i in range(2 * n):
            e(f"v_sub_f32 v{D0+i}, v{hf+i}, v{mb}")
        for i in range(n):
            e(f"v_cvt_pk_bf16_f32 v{x2p+i}, v{D0+2*i}, v{D0+2*i+1}")
        for i in range(n):
            e(f"""v_lshlrev_b32 v{D0+2*i}, 16, v{x2p+i}
v_and_b32 v{D0+2*i+1}, 0xffff0000, v{x2p+i}""")
        for i in range(2 * n):
            e(f"v_mul_f32 v{D0+i}, v{D0+i}, v{rs}")
        for i in range(n):
            e(f"v_cvt_pk_bf16_f32 v{x2p+i}, v{D0+2*i}, v{D0+2*i+1}")
    MB, RS = 67, 68
    HF, X2P = 16, 32
    def erow(r):
        lnparams(RS_ + r, RS_ + 2 + r, MB, RS)
        ln_chunk(HR + 8 * r, 8, MB, RS, HF, X2P)
        for i in range(8):
            e(f"""v_lshlrev_b32 v{D0+2*i}, 16, v{X2P+i}
v_and_b32 v{D0+2*i+1}, 0xffff0000, v{X2P+i}""")
        for i in range(16):
            e(f"v_add_f32 v{D0+i}, v{D0+i}, v{HF+i}")
        for i in range(8):
            e(f"v_cvt_pk_bf16_f32 v{HR+8*r+i}, v{D0+2*i}, v{D0+2*i+1}")
        e(f"""s_add_u32 s57, s42, {r}
s_add_u32 s58, s43, {1152*r}
s_cmp_eq_u32 s57, s53
s_cselect_b32 s58, {HUGE}, s58
buffer_store_dwordx4 {vr(HR+8*r,4)}, v{T+2}, s[{OUTR}:{OUTR+3}], s58 offen
buffer_store_dwordx4 {vr(HR+8*r+4,4)}, v{T+3}, s[{OUTR}:{OUTR+3}], s58 offen""")
    SMB, SRS = 69, 70
    SHF, SX2 = 116, 124
    e("s_waitcnt vmcnt(0)")
    lnparams(SS, SS + 1, SMB, SRS)
    ln_chunk(HS, 4, SMB, SRS, SHF, SX2)
    e(f"""v_cmp_gt_u32 vcc, 72, v0
s_and_saveexec_b64 s[62:63], vcc
ds_write_b128 v{T+1}, {vr(SX2,4)} offset:{L_X2}
s_mov_b64 exec, s[62:63]""")
    e("s_branch p2_noam")
    k.label("p2_noam0")
    e(f"v_mov_b32 v{T+9}, 0")
    k.label("p2_noam")
    e(f"""s_waitcnt vmcnt(0) lgkmcnt(0)
s_barrier
s_cmp_lt_u32 s22, 2
s_cbranch_scc1 p2_haveidx
ds_read_b128 v[132:135], v71
s_lshl_b32 s42, s23, 3
s_lshl_b32 s43, s22, 1
s_add_u32 s42, s42, s43
s_mul_i32 s43, s42, 1152
s_add_u32 s44, s43, {WS_H}
s_lshl_b32 s45, s42, 2
s_add_u32 s45, s45, {WS_ST}
buffer_load_dwordx4 {vr(HR,4)}, v{T+2}, {W}, s44 offen sc1
buffer_load_dwordx4 {vr(HR+4,4)}, v{T+3}, {W}, s44 offen sc1
buffer_load_dwordx4 {vr(HR+8,4)}, v{T+2}, {W}, s44 offen offset:1152 sc1
buffer_load_dwordx4 {vr(HR+12,4)}, v{T+3}, {W}, s44 offen offset:1152 sc1
buffer_load_dwordx2 {vr(RS_,2)}, v{T+9}, {W}, s45 offen sc1
s_add_u32 s45, s45, 8192
buffer_load_dwordx2 {vr(RS_+2,2)}, v{T+9}, {W}, s45 offen sc1
s_waitcnt lgkmcnt(0)
v_max_u32 v132, v132, v134
s_nop 0
v_readfirstlane_b32 s53, v132
s_nop 1
s_and_b32 s53, s53, 0x7ff
s_sub_u32 s53, 2047, s53""")
    k.label("p2_haveidx")
    e(f"""s_cmp_lt_u32 s23, {NFFN}
s_cbranch_scc1 p2_ffn
s_waitcnt vmcnt(0)""")
    erow(0)
    erow(1)
    e(f"""s_cmp_eq_u32 s23, {NP2-1}
s_cbranch_scc0 {Lend}
s_cmp_lt_u32 s22, 2
s_cbranch_scc1 p2_final
s_endpgm""")
    k.label("p2_ffn")
    G_, A9, A10 = T + 8, T + 11, T + 12
    e(f"""v_lshrrev_b32 v{G_}, 4, v{LANE}
v_bfe_u32 v{A9}, v{LANE}, 2, 2
v_lshl_add_u32 v{A9}, v{G_}, 3, v{A9}
v_and_b32 v{A10}, 3, v{LANE}
v_lshlrev_b32 v{A10}, 3, v{A10}
v_lshl_add_u32 v{A9}, v{A9}, 6, v{A10}
s_and_b32 s61, s22, 1
s_lshl_b32 s61, s61, 5
s_lshr_b32 s64, s22, 1
s_mul_i32 s64, s64, {L_WU-L_WG}
s_add_u32 s61, s61, s64
s_add_u32 s61, s61, {L_WG}
v_add_u32 v{A9}, s61, v{A9}
v_lshlrev_b32 v{A10}, 4, v{G_}
""")
    stamp(k, 4)
    AF, BF, ACC = 16, 72, 128
    def rd(ks):
        sl = ks % 6
        e(f"""ds_read_b128 {vr(AF+4*sl,4)}, v{A10} offset:{L_X2+ks*64}
ds_read_b64_tr_b16 {vr(BF+4*sl,2)}, v{A9} offset:{ks*32*64}
ds_read_b64_tr_b16 {vr(BF+4*sl+2,2)}, v{A9} offset:{ks*32*64+4*64}""")
    for ks in range(5): rd(ks)
    for ks in range(18):
        sl = ks % 6
        nleft = min(4, 17 - ks)
        e(f"s_waitcnt lgkmcnt({3*nleft})")
        c = vr(ACC, 4) if ks else "0"
        e(f"v_mfma_f32_16x16x32_bf16 {vr(ACC,4)}, {vr(AF+4*sl,4)}, {vr(BF+4*sl,4)}, {c}")
        if ks + 5 < 18: rd(ks + 5)
    e(f"""s_lshl_b32 s65, s22, 6
v_and_b32 v{A9}, 15, v{LANE}
v_lshl_add_u32 v{A9}, v{A9}, 2, s65
v_and_b32 v{A10}, 31, v{LANE}
v_lshlrev_b32 v{A10}, 2, v{A10}
v_lshlrev_b32 v{T+7}, 2, v{T+5}
s_nop 3
ds_write_b32 v{A9}, v{ACC} offset:{L_PART}
s_waitcnt lgkmcnt(0)
s_barrier
ds_read_b32 v132, v{A10} offset:{L_PART}
ds_read_b32 v134, v{A10} offset:{L_PART+128}
s_waitcnt lgkmcnt(0)
v_cvt_pk_bf16_f32 v132, v132, v134
v_lshlrev_b32 v133, 16, v132
v_and_b32 v134, 0xffff0000, v132
v_mul_f32 v135, {f32hex(-1.4426950408889634)}, v133
v_exp_f32 v135, v135
s_nop 0
v_add_f32 v135, 1.0, v135
v_rcp_f32 v135, v135
s_nop 0
v_mul_f32 v133, v133, v135
v_cvt_pk_bf16_f32 v133, v133, v133
v_and_b32 v133, 0xffff0000, v133
v_mul_f32 v133, v133, v134
v_cvt_pk_bf16_f32 v133, v133, v133
v_and_b32 v133, 0xffff0000, v133
v_cmp_gt_u32 s[62:63], 32, v{LANE}
v_lshlrev_b32 v{A9}, 2, v{LANE}
s_lshl_b32 s65, s22, 8
v_cndmask_b32 v133, 0, v133, s[62:63]
v_add_u32 v{A9}, s65, v{A9}
v_add_u32 v{T+7}, s65, v{T+7}
ds_write_b32 v{A9}, v133 offset:{L_FLAG+64}
s_waitcnt lgkmcnt(0)
""")
    AV = 16
    for i in range(11):
        e(f"ds_read_b32 v{AV+2*i}, v{T+7} offset:{L_FLAG+64+12*i}")
    YA = 136
    for i in range(11):
        e(f"s_waitcnt lgkmcnt({10-i})")
        av = AV + 2 * i
        for j in range(0, 8, 2):
            if i == 0:
                e(f"v_pk_mul_f32 {vr(YA+j,2)}, {vr(WDF+j,2)}, {vr(av,2)} op_sel_hi:[1,0]")
            else:
                e(f"v_pk_fma_f32 {vr(YA+j,2)}, {vr(WDF+8*i+j,2)}, {vr(av,2)}, {vr(YA+j,2)} op_sel_hi:[1,0,1]")
    e(f"""v_mul_u32_u24 v{A9}, 2304, v{T+5}
v_lshl_add_u32 v{A9}, v{T+6}, 5, v{A9}
v_cmp_gt_u32 vcc, 216, v0
s_and_saveexec_b64 s[62:63], vcc
ds_write_b128 v{A9}, {vr(YA,4)} offset:{L_YP}
ds_write_b128 v{A9}, {vr(YA+4,4)} offset:{L_YP+16}
s_mov_b64 exec, s[62:63]
v_lshlrev_b32 v{A10}, 2, v0
s_and_b32 s68, s23, {YREP-1}
s_mul_i32 s68, s68, 2304
s_add_u32 s68, s68, {WS_Y}
s_waitcnt lgkmcnt(0)
s_barrier
""")
    for c in range(3):
        for g in range(3):
            e(f"ds_read_b32 v{16+3*c+g}, v{A10} offset:{L_YP+g*2304+c*1024}")
    e("s_waitcnt lgkmcnt(0)")
    for c in range(3):
        e(f"v_add_f32 v{16+3*c}, v{16+3*c}, v{17+3*c}\nv_add_f32 v{16+3*c}, v{16+3*c}, v{18+3*c}")
    e(f"""buffer_atomic_add_f32 v16, v{A10}, {W}, s68 offen
buffer_atomic_add_f32 v19, v{A10}, {W}, s68 offen offset:1024
s_cmp_lg_u32 s22, 0
s_cbranch_scc1 p2_at3
buffer_atomic_add_f32 v22, v{A10}, {W}, s68 offen offset:2048""")
    k.label("p2_at3")
    stamp(k, 5)
    e("s_waitcnt vmcnt(2)")
    erow(0)
    erow(1)
    e(f"""s_waitcnt vmcnt(4)
s_barrier
s_cmp_lg_u32 s22, 0
s_cbranch_scc1 {Lend}
s_lshl_b32 s70, s23, 2
s_add_u32 s70, s70, {WS_FLG}
v_mov_b32 v{A10}, 1
s_mov_b64 exec, 1
buffer_store_dword v{A10}, v{T+9}, {W}, s70 offen sc1""")
    stamp(k, 6)
    dump(k, 7)
    e("s_endpgm")
    k.label("p2_final")
    e(f"""s_mov_b32 s70, {WS_FLG}
s_mov_b32 s71, 0
s_mov_b32 exec_lo, -1
s_mov_b32 exec_hi, 0xf""")
    k.label("p2_fpoll")
    e(f"""buffer_load_dwordx4 v[16:19], v{T+2}, {W}, s70 offen sc1
s_waitcnt vmcnt(0)
v_and_b32 v16, v16, v17
v_and_b32 v18, v18, v19
v_and_b32 v16, v16, v18
v_cmp_ne_u32 vcc, 1, v16
s_add_u32 s71, s71, 1
s_cmp_gt_u32 s71, 0x100000
s_cbranch_vccz p2_fdone
s_cbranch_scc1 p2_fdone
s_sleep 4
s_branch p2_fpoll""")
    k.label("p2_fdone")
    e(f"""s_mov_b64 exec, -1
v_lshlrev_b32 v{A9}, 1, v{T+13}
s_mov_b32 s71, {WS_Y}
""")
    YL = 152
    for r in range(YREP):
        e(f"""buffer_load_dwordx4 {vr(YL+8*r,4)}, v{A9}, {W}, s71 offen sc0 sc1
buffer_load_dwordx4 {vr(YL+8*r+4,4)}, v{A9}, {W}, s71 offen offset:16 sc0 sc1
s_add_u32 s71, s71, 2304""")
    SG = T + 8
    e(f"""v_fma_f32 v{SG}, -v{SMB}, s48, v{SS+2}
v_mul_f32 v{SG}, v{SG}, v{SRS}
v_cvt_pk_bf16_f32 v{SG}, v{SG}, v{SG}
v_and_b32 v{SG}, 0xffff0000, v{SG}
v_mul_f32 v{SG}, {f32hex(-1.4426950408889634)}, v{SG}
v_exp_f32 v{SG}, v{SG}
s_nop 0
v_add_f32 v{SG}, 1.0, v{SG}
v_rcp_f32 v{SG}, v{SG}
s_nop 0
v_cvt_pk_bf16_f32 v{SG}, v{SG}, v{SG}
v_and_b32 v{SG}, 0xffff0000, v{SG}
s_waitcnt vmcnt(0)""")
    for r in range(1, YREP):
        for i in range(8):
            e(f"v_add_f32 v{YL+i}, v{YL+i}, v{YL+8*r+i}")
    PK = 40
    def rnd(base):
        for i in range(4):
            e(f"v_cvt_pk_bf16_f32 v{PK+i}, v{base+2*i}, v{base+2*i+1}")
        for i in range(4):
            e(f"""v_lshlrev_b32 v{base+2*i}, 16, v{PK+i}
v_and_b32 v{base+2*i+1}, 0xffff0000, v{PK+i}""")
    rnd(YL)
    for i in range(8):
        e(f"v_mul_f32 v{YL+i}, v{YL+i}, v{SG}")
    rnd(YL)
    for i in range(4):
        e(f"""v_lshlrev_b32 v{YL+8+2*i}, 16, v{SX2+i}
v_and_b32 v{YL+8+2*i+1}, 0xffff0000, v{SX2+i}""")
    for i in range(8):
        e(f"v_add_f32 v{YL+i}, v{YL+i}, v{YL+8+i}")
    rnd(YL)
    for i in range(8):
        e(f"v_add_f32 v{YL+i}, v{YL+i}, v{SHF+i}")
    for i in range(4):
        e(f"v_cvt_pk_bf16_f32 v{PK+i}, v{YL+2*i}, v{YL+2*i+1}")
    e(f"buffer_store_dwordx4 {vr(PK,4)}, v{T+13}, s[{OUTR}:{OUTR+3}], s54 offen")
    if PROF:
        e("s_waitcnt vmcnt(0)")
        stamp(k, 7)
        dump(k, 8)

def gen_k34():
    k = K("k3_kernel")
    e = k.e
    e(f"""s_cmp_ge_u32 s2, {K34_GRID}
s_cbranch_scc1 k34_end
s_load_dwordx2 s[4:5], s[0:1], 80
v_lshrrev_b32 v5, 6, v0
v_and_b32 v1, 63, v0
v_readfirstlane_b32 s21, v5
v_and_b32 v0, 0xff, v0
s_mov_b32 s77, s2""")
    stamp(k, 0)
    e("s_and_b32 s22, s21, 3\ns_waitcnt lgkmcnt(0)")
    srd(k, 8, 4, WS_SIZE)
    e(f"""s_cmp_ge_u32 s21, 4
s_cbranch_scc1 k34_p2""")
    gen_gemm(k)
    k.label("k34_p2")
    gen_p2(k)
    k.label("k34_end")
    e("s_endpgm")
    return k, 256, 100
```

```python
import sys
from asmlib import *
from layout import *
import importlib
def build(kernels, path):
    head = "; LN1+QKV | attention | out-proj | LN2+router+FFN   (generated by gen/gen.py)\n"
    body = '.amdgcn_target "amdgcn-amd-amdhsa--gfx950"\n.text\n'
    desc = '.section .rodata,"a"\n'
    for gf, grid, block, lds in kernels:
        k, nv, ns = gf()
        head += f"; @launch kernel={k.name} grid=({grid},1,1) block=({block},1,1) lds={lds}\n"
        body += kernel_text(k)
        desc += kernel_desc(k.name, nv, ns)
    open(path, "w").write(head + body + desc)
if __name__ == "__main__":
    import os
    if os.environ.get('K1NEW'):
        from k1b import gen_k1
    else:
        from k1 import gen_k1
    ks = [(gen_k1, 256, 512, 131072)]
    try:
        from k2 import gen_k2, K2_LDS
        ks.append((gen_k2, 256, 512, K2_LDS))
        import os
        if os.environ.get("SPLIT34"):
            from k3 import gen_k3, K3_LDS
            ks.append((gen_k3, 288, 256, K3_LDS))
            from k4 import gen_k4, K4_LDS
            ks.append((gen_k4, 256, 512, K4_LDS))
        else:
            if not os.environ.get("K34MERGE"):
                from k34_sep import gen_k34, K34_LDS, K34_GRID
                ks.append((gen_k34, K34_GRID, 256, K34_LDS))
            else:
                from k34 import gen_k34, K34_LDS, K34_GRID
                ks.append((gen_k34, K34_GRID, 512, K34_LDS))
    except ImportError as ex:
        print("partial build:", ex)
    out = sys.argv[1] if len(sys.argv) > 1 else "sequential_preLN__mha_block__moe_arch_mod__prompt.s"
    build(ks, out)
```

```python
from asmlib import *
from layout import *
import os
K2_LDS = 152 * 1024
PROF = int(os.environ.get("PROF", "0"))
PRIO = int(os.environ.get("K2PRIO", "1"))
ZROW = int(os.environ.get("K2ZROW", "1"))
BARALL = int(os.environ.get("K2BAR", "0"))

def gen_k2():
    k = K("k2_kernel")
    e = k.e
    def stamp(i):
        if PROF:
            e(f"s_memtime s[{40+2*i}:{41+2*i}]")
    WSR = 8
    LANE, M, HALF, L16 = 1, 2, 3, 4
    AKM, AVT, AKR = 5, 6, 7
    BKM, BVT, BKR = 8, 9, 10
    T = 11
    QM = 16
    QR = 20
    KR = 22
    KM = [24, 28]
    VF = [32, 36, 40, 44]
    P = 48
    O = 64
    SA, SB = 80, 112
    Lend = "k2_end"
    e(f"""s_cmp_ge_u32 s2, 256
s_cbranch_scc1 {Lend}
s_load_dwordx2 s[4:5], s[0:1], 80
s_load_dwordx4 s[52:55], s[0:1], 40
s_load_dwordx2 s[56:57], s[0:1], 56
s_load_dwordx2 s[58:59], s[0:1], 0
{"s_memtime s[40:41]" if PROF else ""}
{"s_memrealtime s[48:49]" if PROF else ""}
v_and_b32 v{LANE}, 63, v0
v_lshrrev_b32 v{T}, 6, v0
v_and_b32 v{M}, 31, v0
v_readfirstlane_b32 s14, v{T}
v_bfe_u32 v{HALF}, v0, 5, 1
v_lshlrev_b32 v{L16}, 4, v{LANE}
s_and_b32 s12, s2, 7
s_lshl_b32 s12, s12, 2
s_bfe_u32 s16, s2, 0x20003
s_add_u32 s12, s12, s16
s_lshr_b32 s13, s2, 5
s_lshl_b32 s15, s13, 3
s_add_u32 s15, s15, s14
s_mul_i32 s16, s12, {KVH}
s_lshl_b32 s17, s12, 6
s_add_u32 s17, s17, s15
s_lshl_b32 s18, s17, 10
s_add_u32 s18, s18, {WS_QM}
s_lshl_b32 s19, s17, 7
s_add_u32 s19, s19, {WS_QR}
s_lshl_b32 s20, s12, 8
s_add_u32 s20, s20, {WS_KNM}
v_lshlrev_b32 v{T}, 2, v{M}
v_lshlrev_b32 v{T+1}, 2, v{LANE}
s_lshl_b32 s21, s14, 10
s_add_u32 s22, s16, s21
s_waitcnt lgkmcnt(0)
""")
    srd(k, WSR, 4, WS_SIZE)
    W = f"s[{WSR}:{WSR+3}]"
    def dma():
        return f"""s_mov_b32 m0, s21
s_add_u32 s21, s21, 8192
buffer_load_dwordx4 v{L16}, {W}, s22 offen lds
s_add_u32 s22, s22, 8192"""
    e(dma())
    e(f"""buffer_load_dwordx4 {vr(QM,4)}, v{L16}, {W}, s18 offen
buffer_load_dword v{QR}, v{T}, {W}, s19 offen
buffer_load_dword v{T+2}, v{T+1}, {W}, s20 offen
s_add_u32 s20, s20, {WS_KNR-WS_KNM}
buffer_load_dword v{T+3}, v{T+1}, {W}, s20 offen
""")
    e(dma()); e(dma())
    SLC = 0 | (9 << 5) | (13 << 10) | (4 << 15) | (17 << 20)
    e(f"""v_lshrrev_b32 v{T}, 2, v{M}
v_mul_u32_u24 v{T}, 5, v{T}
s_mov_b32 s23, {SLC}
v_bfe_u32 v{T}, s23, v{T}, 5
v_and_b32 v{T+4}, 3, v{M}
v_add_u32 v{T}, v{T}, v{T+4}
v_cmp_lt_u32 s[28:29], 17, v{M}
v_mov_b32 v{KR+1}, 0x3f803f80
v_mul_u32_u24 v{T+4}, 304, v{HALF}
v_cndmask_b32 v{T}, v{T}, 8, s[28:29]
v_lshl_add_u32 v{BVT}, v{T}, 4, v{T+4}
v_add_u32 v{BVT}, 2048, v{BVT}
""")
    if ZROW:
        e(f"""v_and_b32 v{T+4}, 27, v{M}
v_cmp_lt_u32 s[28:29], 18, v{T+4}
v_cmp_eq_u32 s[30:31], 16, v{T+4}
v_cmp_eq_u32 s[32:33], 17, v{T+4}
v_cmp_lt_u32 s[34:35], 19, v{M}
s_or_b64 s[30:31], s[30:31], s[32:33]
s_and_b64 s[30:31], s[30:31], s[34:35]
s_or_b64 s[28:29], s[28:29], s[30:31]
v_mov_b32 v{T+4}, 0x40000
v_cndmask_b32 v{BVT}, v{BVT}, v{T+4}, s[28:29]
""")
    e(f"""v_mov_b32 v{BKM}, v{L16}
v_add_u32 v{BKR}, 4480, v{T+1}
v_mov_b32 v{T+4}, 0
s_waitcnt vmcnt(2)
v_add_f32 v{T+2}, v{T+2}, v{T+3}
v_dot2_f32_bf16 v{T+4}, v{QM}, v{QM}, v{T+4}
v_dot2_f32_bf16 v{T+4}, v{QM+1}, v{QM+1}, v{T+4}
v_max_f32_dpp v{T+2}, v{T+2}, v{T+2} row_shr:1 row_mask:0xf bank_mask:0xf
v_dot2_f32_bf16 v{T+4}, v{QM+2}, v{QM+2}, v{T+4}
v_dot2_f32_bf16 v{T+4}, v{QM+3}, v{QM+3}, v{T+4}
v_max_f32_dpp v{T+2}, v{T+2}, v{T+2} row_shr:2 row_mask:0xf bank_mask:0xf
s_nop 1
v_max_f32_dpp v{T+2}, v{T+2}, v{T+2} row_shr:4 row_mask:0xf bank_mask:0xf
v_mov_b32 v{T+3}, v{T+4}
s_nop 0
v_max_f32_dpp v{T+2}, v{T+2}, v{T+2} row_shr:8 row_mask:0xf bank_mask:0xf
v_permlane32_swap_b32 v{T+3}, v{T+4}
s_nop 0
v_max_f32_dpp v{T+2}, v{T+2}, v{T+2} row_bcast:15 row_mask:0xa bank_mask:0xf
v_add_f32 v{T+4}, v{T+3}, v{T+4}
v_dot2_f32_bf16 v{T+4}, v{QR}, v{QR}, v{T+4}
v_max_f32_dpp v{T+2}, v{T+2}, v{T+2} row_bcast:31 row_mask:0xc bank_mask:0xf
s_nop 1
v_readlane_b32 s24, v{T+2}, 63
s_nop 1
v_mul_f32 v{T+4}, s24, v{T+4}
v_sqrt_f32 v{T+4}, v{T+4}
s_mov_b32 s26, 0
v_mul_f32 v{T+4}, {f32hex(-1.02)}, v{T+4}
v_cvt_pk_bf16_f32 v{QR+1}, v{T+4}, 0
s_waitcnt vmcnt(0)
s_barrier
s_mov_b32 s27, 0
s_lshr_b32 s36, s14, 2
""")
    if PRIO == 2:
        e("s_cmp_eq_u32 s36, 0\ns_cbranch_scc1 k2_p3\ns_setprio 1")
        k.label("k2_p3")
    LMAIN = "k2_main"
    stamp(1)
    k.label(LMAIN)
    RM = lambda Sn: f"v_mfma_f32_32x32x4_2b_bf16 {vr(Sn,32)}, {vr(KR,2)}, {vr(QR,2)}, 0"
    MM = lambda Sn, t: f"v_mfma_f32_32x32x16_bf16 {vr(Sn+16*t,16)}, {vr(KM[t],4)}, {vr(QM,4)}, {vr(Sn+16*t,16)}"
    PV = lambda i: f"v_mfma_f32_32x32x16_bf16 {vr(O,16)}, {vr(VF[i],4)}, {vr(P+4*i,4)}, {vr(O,16)}"
    rdV = lambda i, blk: f"ds_read_b128 {vr(VF[i],4)}, v{AVT} offset:{blk*BLK+608*i}"
    rdKM = lambda t, blk: f"ds_read_b128 {vr(KM[t],4)}, v{AKM} offset:{blk*BLK+1024*t}"
    rdKR = lambda blk: f"ds_read_b32 v{KR}, v{AKR} offset:{blk*BLK}"
    e(f"""v_mov_b32 v{AKM}, v{BKM}
v_mov_b32 v{AVT}, v{BVT}
v_mov_b32 v{AKR}, v{BKR}
{rdKR(0)}
{rdKM(0,0)}
{rdKM(1,0)}
""")
    for r in list(range(O, O + 16)) + list(range(P + 12, P + 16)) + list(range(VF[3], VF[3] + 4)):
        e(f"v_mov_b32 v{r}, 0")
    e(f"""s_waitcnt lgkmcnt(2)
{RM(SA)}
{rdKR(1)}
{rdV(0,0)}
s_nop 15
s_nop 1
s_waitcnt lgkmcnt(2)
{MM(SA,0)}
{rdKM(0,1)}
{rdV(1,0)}
{MM(SA,1)}
{rdKM(1,1)}
{rdV(2,0)}
s_mov_b32 s25, s26
s_nop 4
s_waitcnt lgkmcnt(5)
""")
    def block(b, Sc, Sn, extra=None):
        E = lambda i: f"v_exp_f32 v{Sc+i}, v{Sc+i}"
        C = lambda i: f"v_cvt_pk_bf16_f32 v{P+i}, v{Sc+2*i}, v{Sc+2*i+1}"
        Wt = "s_waitcnt lgkmcnt(6)"
        seq = [Wt, "NOP", PV(3), rdV(3, b),
               E(0), E(1), E(2), E(3), C(0),
               Wt, RM(Sn), rdKR(b + 2),
               E(4), E(5), C(1), E(6), E(7), C(2), C(3), E(8), E(9),
               Wt, PV(0), rdV(0, b + 1),
               E(10), E(11), C(4), E(12), E(13), C(5), E(14), E(15),
               Wt, MM(Sn, 0), rdKM(0, b + 2),
               C(6), C(7), E(16), E(17), E(18),
               Wt, PV(1), rdV(1, b + 1),
               E(19), C(8), E(20), E(21), C(9),
               Wt, MM(Sn, 1), rdKM(1, b + 2),
               E(22), E(23), C(10), C(11), E(24), E(25),
               Wt, PV(2), rdV(2, b + 1),
               E(26), E(27), C(12), E(28), E(29), C(13), E(30), E(31), C(14), C(15)]
        SEQ = os.environ.get("K2SEQ", "0")
        if SEQ == "1":
            seq = [Wt, RM(Sn), rdKR(b + 2),
               E(0), E(1), E(2), E(3), C(0), E(4), E(5),
               Wt, PV(3), rdV(3, b),
               C(1), E(6), E(7), C(2), C(3), E(8), E(9),
               Wt, PV(0), rdV(0, b + 1),
               E(10), E(11), C(4), E(12), E(13), C(5), E(14),
               Wt, MM(Sn, 0), rdKM(0, b + 2),
               E(15), C(6), E(16), C(7), E(17), E(18), E(19),
               Wt, PV(1), rdV(1, b + 1),
               C(8), E(20), E(21), C(9), E(22), E(23), C(10),
               Wt, MM(Sn, 1), rdKM(1, b + 2),
               C(11), E(24), E(25), E(26), E(27),
               Wt, PV(2), rdV(2, b + 1),
               C(12), E(28), E(29), C(13), E(30), E(31), C(14), C(15)]
        NO = os.environ.get("K2NO", "")
        for x in seq:
            if ("mfma" in NO and x.startswith("v_mfma")) or ("exp" in NO and x.startswith("v_exp")) or ("lds" in NO and x.startswith("ds_read")) \
               or ("pv" in NO and x.startswith("v_mfma") and f"{vr(O,16)}," in x) or ("rm" in NO and "2b" in x) or ("cvt" in NO and x.startswith("v_cvt")):
                continue
            if x == "NOP":
                e(extra if extra else "s_nop 0")
            else:
                e(x)
    L = "k2_loop"; LB = "k2_body"; LND = "k2_nodma"
    k.lines.append(".p2align 3")
    k.label(L)
    e(f"""s_cmp_eq_u32 s25, 10
s_cbranch_scc1 k2_pf
s_cmp_gt_u32 s25, 9
s_cbranch_scc1 {LB}
s_bitcmp0_b32 s25, 0
s_cbranch_scc1 {LND}
s_waitcnt vmcnt(0)
s_barrier""")
    k.label(LND)
    e(f"""s_cmp_gt_u32 s25, 7
s_cbranch_scc1 {LB}
{dma()}
{dma()}""")
    k.label(LB)
    if PRIO == 1:
        e("s_xor_b32 s36, s36, 1\ns_cmp_eq_u32 s36, 1\ns_cbranch_scc1 k2_p1\ns_setprio 0\ns_branch k2_p2")
        k.label("k2_p1"); e("s_setprio 1"); k.label("k2_p2")
    block(0, SA, SB)
    block(1, SB, SA)
    e(f"""v_add_u32 v{AKM}, {2*BLK}, v{AKM}
v_add_u32 v{AVT}, {2*BLK}, v{AVT}
v_add_u32 v{AKR}, {2*BLK}, v{AKR}
s_add_u32 s25, s25, 1
s_add_u32 s27, s27, 1
s_cmp_lt_u32 s27, 16
s_cbranch_scc1 {L}
s_waitcnt lgkmcnt(0)
{PV(3)}
s_nop 15
""")
    stamp(2)
    LOK = "k2_ok"; LFB = "k2_fbloop"
    MX = T
    e(f"""v_cmp_nle_f32 vcc, {f32hex(2.0**-90)}, v{O+10}
s_cmp_lg_u32 s26, {1 if os.environ.get("K2NO") else 0}
s_cbranch_scc1 {LOK}
s_cbranch_vccz {LOK}
v_mov_b32 v{QR+1}, 0
v_mov_b32 v{MX}, 0xff800000
v_mov_b32 v{AKM}, v{BKM}
v_mov_b32 v{AKR}, v{BKR}
s_mov_b32 s27, 0
""")
    k.label(LFB)
    e(f"""{rdKR(0)}
{rdKM(0,0)}
{rdKM(1,0)}
s_waitcnt lgkmcnt(0)
{RM(SA)}
s_nop 15
s_nop 3
{MM(SA,0)}
{MM(SA,1)}
v_add_u32 v{AKM}, {BLK}, v{AKM}
v_add_u32 v{AKR}, {BLK}, v{AKR}
s_nop 15
""")
    for i in range(16):
        e(f"v_max3_f32 v{MX}, v{SA+2*i}, v{SA+2*i+1}, v{MX}")
    e(f"""s_add_u32 s27, s27, 1
s_cmp_lt_u32 s27, 32
s_cbranch_scc1 {LFB}
v_mov_b32 v{MX+1}, v{MX}
s_nop 1
v_permlane32_swap_b32 v{MX}, v{MX+1}
v_max_f32 v{MX}, v{MX}, v{MX+1}
v_sub_f32 v{MX}, 0, v{MX}
v_cvt_pk_bf16_f32 v{MX+1}, v{MX}, v{MX}
v_and_b32 v{MX+1}, 0xffff0000, v{MX+1}
v_sub_f32 v{MX+2}, v{MX}, v{MX+1}
v_cvt_pk_bf16_f32 v{QR+1}, v{MX+1}, v{MX+2}
s_mov_b32 s26, 11
s_mov_b32 s27, 0
s_branch {LMAIN}
""")
    k.label("k2_pf")
    PF = int(os.environ.get("K2PF", "1"))
    if PF:
        e(f"""v_mul_u32_u24 v{T}, 405, v0
v_lshrrev_b32 v{T}, 16, v{T}
v_mul_u32_u24 v{T+1}, 162, v{T}
v_sub_u32 v{T+1}, v0, v{T+1}
v_mul_u32_u24 v{T+2}, 7282, v{T+1}
v_lshrrev_b32 v{T+2}, 16, v{T+2}
v_mul_u32_u24 v{T+3}, 9, v{T+2}
v_sub_u32 v{T+1}, v{T+1}, v{T+3}
s_lshr_b32 s34, s2, 3
s_mul_i32 s34, s34, 18
v_add_u32 v{T+2}, s34, v{T+2}
s_and_b32 s35, s2, 7
s_mul_i32 s34, s35, 1152
s_mul_i32 s35, s35, {576*1152}
v_mul_u32_u24 v{T+3}, 9216, v{T+2}
v_add_u32 v{T+3}, s34, v{T+3}
v_mul_u32_u24 v{T+4}, 1152, v{T+2}
v_add_u32 v{T+4}, s35, v{T+4}
v_lshl_add_u32 v{T+3}, v{T+1}, 7, v{T+3}
v_lshl_add_u32 v{T+4}, v{T+1}, 7, v{T+4}
v_cmp_eq_u32 s[34:35], 0, v{T}
v_cmp_eq_u32 s[36:37], 1, v{T}
v_cmp_eq_u32 s[38:39], 2, v{T}
s_nop 0
s_mov_b64 exec, s[34:35]
s_cbranch_execz k2_pf1
global_load_dword v144, v{T+3}, s[52:53]""")
        k.label("k2_pf1")
        e(f"""s_mov_b64 exec, s[36:37]
s_cbranch_execz k2_pf2
global_load_dword v144, v{T+3}, s[54:55]""")
        k.label("k2_pf2")
        e(f"""s_mov_b64 exec, s[38:39]
s_cbranch_execz k2_pf3
global_load_dword v144, v{T+4}, s[56:57]""")
        k.label("k2_pf3")
        if int(os.environ.get("K2PF2", "1")):
            e(f"""s_mov_b64 exec, -1
s_lshr_b32 s34, s2, 3
s_mul_i32 s35, s34, {162*128}
s_add_u32 s35, s35, {WS_WOP}
v_lshlrev_b32 v{T}, 7, v0
s_movk_i32 s36, 162
v_cmp_gt_u32 s[38:39], s36, v0
v_subrev_u32 v{T+1}, 162, v0
s_mul_i32 s34, s34, 72
v_add_u32 v{T+2}, s34, v{T+1}
v_mul_u32_u24 v{T+3}, 1821, v{T+2}
v_lshrrev_b32 v{T+3}, 20, v{T+3}
v_mul_u32_u24 v{T+4}, 576, v{T+3}
v_sub_u32 v{T+2}, v{T+2}, v{T+4}
s_and_b32 s34, s2, 7
v_lshl_add_u32 v{T+3}, v{T+3}, 3, s34
s_mov_b32 s34, 73728
v_mul_lo_u32 v{T+3}, v{T+3}, s34
v_lshl_add_u32 v{T+3}, v{T+2}, 7, v{T+3}
s_movk_i32 s36, 72
v_cmp_gt_u32 s[36:37], s36, v{T+1}
s_mov_b64 exec, s[38:39]
s_cbranch_execz k2_pf5
buffer_load_dword v144, v{T}, {W}, s35 offen""")
            k.label("k2_pf5")
            e(f"""s_mov_b64 exec, s[36:37]
s_cbranch_execz k2_pf6
global_load_dword v144, v{T+3}, s[58:59]""")
            k.label("k2_pf6")
        e(f"""s_mov_b64 exec, -1
s_cmp_lg_u32 s14, 7
s_cbranch_scc1 k2_pf4
s_getpc_b64 s[28:29]
s_add_u32 s28, s28, k3_kernel-.
s_addc_u32 s29, s29, 0
v_lshlrev_b32 v{T}, 7, v{LANE}
global_load_dword v144, v{T}, s[28:29]
v_add_u32 v{T}, 8192, v{T}
s_bfm_b64 exec, (k34_end-k3_kernel-8192+127)>>7, 0
global_load_dword v144, v{T}, s[28:29]
s_mov_b64 exec, -1""")
        k.label("k2_pf4")
        e(f"""s_lshr_b32 s36, s14, 2
s_and_b32 s37, s25, 1
s_xor_b32 s36, s36, s37""")
    e(f"s_branch {LB}")
    k.label(LOK)
    e(f"""v_rcp_f32 v{T}, v{O+10}
s_mul_i32 s18, s15, 36
s_add_u32 s19, s18, s12
s_lshl_b32 s19, s19, 10
s_add_u32 s19, s19, {WS_OP}
s_lshr_b32 s20, s12, 3
s_add_u32 s18, s18, s20
s_add_u32 s18, s18, 32
s_lshl_b32 s18, s18, 10
s_bfe_u32 s20, s12, 0x10002
s_lshl_b32 s20, s20, 9
s_add_u32 s18, s18, s20
s_and_b32 s20, s12, 3
s_lshl_b32 s20, s20, 2
s_add_u32 s18, s18, s20
s_add_u32 s18, s18, {WS_OP}
""")
    for i in range(10):
        e(f"v_mul_f32 v{O+i}, v{O+i}, v{T}")
    for i in range(5):
        e(f"v_cvt_pk_bf16_f32 v{P+i}, v{O+2*i}, v{O+2*i+1}")
    e(f"""buffer_store_dwordx4 {vr(P,4)}, v{L16}, {W}, s19 offen
s_mov_b32 exec_hi, 0
buffer_store_dword v{P+4}, v{L16}, {W}, s18 offen
""")
    if PROF:
        e(f"""s_waitcnt vmcnt(0)
s_memtime s[46:47]
s_memrealtime s[50:51]
s_waitcnt lgkmcnt(0)
s_sub_u32 s42, s42, s40
s_sub_u32 s44, s44, s40
s_sub_u32 s46, s46, s40
s_sub_u32 s50, s50, s48
v_mov_b32 v20, s42
v_mov_b32 v21, s44
v_mov_b32 v22, s46
v_mov_b32 v23, s50
s_lshl_b32 s18, s2, 3
s_add_u32 s18, s18, s14
s_lshl_b32 s18, s18, 4
s_add_u32 s18, s18, 0xF00000
v_mov_b32 v24, 0
s_mov_b32 exec_lo, 1
buffer_store_dwordx4 v[20:23], v24, {W}, s18 offen""")
    k.label(Lend)
    e("s_endpgm")
    return k, 145, 64
```
